```python
import torch

def _softmax(x, axis=-1):
    return torch.softmax(x, dim=axis)
def _gelu(x):
    return torch.nn.functional.gelu(x, approximate="tanh")
def _silu(x):
    return torch.nn.functional.silu(x)
def _sigmoid(x):
    return torch.sigmoid(x)
def _layernorm(x, axis=-1, eps=1e-5):
    m = x.mean(dim=axis, keepdim=True)
    v = x.var(dim=axis, keepdim=True, unbiased=False)
    return (x - m) / torch.sqrt(v + eps)
def _scatter_add(tgt, idx, src, axis=0):
    return tgt.clone().index_add_(axis, idx, src)
def _segment_sum(src, seg, n):
    out = torch.zeros((n,) + src.shape[1:], dtype=src.dtype)
    return out.index_add_(0, seg, src)
def _pad(x, pw):
    flat = tuple(v for pair in reversed(pw) for v in pair)
    return torch.nn.functional.pad(x, flat)

kernel_name = 'sequential_preLN__linear_kernel_hedgehog__mixer_channel_mlp__prompt'

def setup_inputs():

    _w = (lambda a: (lambda t: t.to(torch.bfloat16) if t.is_floating_point() else t)(torch.as_tensor(a)))
    def _A_setup():
        B, S, D, H = 1, 2048, 448, 16
        Dh = D // H
        return {
            "x": _w((lambda *s: torch.randn(*s, dtype=torch.bfloat16) * 0.05)(B, S, D)),
            "wqkv": _w((lambda *s: torch.randn(*s, dtype=torch.bfloat16) * 0.2)(D, 3 * D)),
            "w_phi": _w((lambda *s: torch.randn(*s, dtype=torch.bfloat16) * 0.2)(H, Dh, Dh) * (Dh ** -0.5)),
            "wo": _w((lambda *s: torch.randn(*s, dtype=torch.bfloat16) * 0.05)(D, D)),
        }
    _A_in = _A_setup()

    def _B_setup():
        B, S, D, F = 1, 2048, 448, 1792
        return {
            "x": _w((lambda *s: torch.randn(*s, dtype=torch.bfloat16) * 0.05)(B, S, D)),
            "w1": _w((lambda *s: torch.randn(*s, dtype=torch.bfloat16) * 3.2)(D, F) * (D ** -0.5)),
            "b1": _w((lambda *s: torch.randn(*s, dtype=torch.bfloat16) * 0.8)(F)),
            "w2": _w((lambda *s: torch.randn(*s, dtype=torch.bfloat16) * 0.1)(F, D) * (F ** -0.5)),
            "b2": _w((lambda *s: torch.randn(*s, dtype=torch.bfloat16) * 0.1)(D)),
        }
    _B_in = _B_setup()

    return {
        "A_x": _A_in["x"],
        "A_wqkv": _A_in["wqkv"],
        "A_w_phi": _A_in["w_phi"],
        "A_wo": _A_in["wo"],
        "B_x": _B_in["x"],
        "B_w1": _B_in["w1"],
        "B_b1": _B_in["b1"],
        "B_w2": _B_in["w2"],
        "B_b2": _B_in["b2"],
    }

def reference(A_x, A_wqkv, A_w_phi, A_wo, B_x, B_w1, B_b1, B_w2, B_b2):
    def _A_ref(x, wqkv, w_phi, wo):
        B, S, D = x.shape
        H = 16; Dh = D // H
        qkv = (lambda x, *d: x.permute(*d))((x @ wqkv).reshape(B, S, 3, H, Dh), 2, 0, 3, 1, 4)
        q, k, v = qkv[0], qkv[1], qkv[2]
        pq = torch.einsum("bhsd,hdf->bhsf", q, w_phi)
        pk = torch.einsum("bhsd,hdf->bhsf", k, w_phi)
        phi_q = torch.concatenate([_softmax(pq, axis=-1), _softmax(-pq, axis=-1)], axis=-1)
        phi_k = torch.concatenate([_softmax(pk, axis=-1), _softmax(-pk, axis=-1)], axis=-1)
        kv = torch.einsum("bhsf,bhsd->bhfd", phi_k, v)
        z  = torch.einsum("bhsf->bhf", phi_k)
        num = torch.einsum("bhqf,bhfd->bhqd", phi_q, kv)
        den = torch.einsum("bhqf,bhf->bhq", phi_q, z)[..., None] + 1e-6
        o = num / den
        return (lambda x, *d: x.permute(*d))(o, 0, 2, 1, 3).reshape(B, S, D) @ wo

    def _B_ref(x, w1, b1, w2, b2):
        y = _layernorm(x, axis=-1)
        h = _gelu(torch.einsum("bsd,df->bsf", y, w1) + b1)
        return torch.einsum("bsf,fd->bsd", h, w2) + b2

    x = A_x
    h = x + _A_ref(_layernorm(x, axis=-1), A_wqkv, A_w_phi, A_wo)
    h2 = h + _B_ref(_layernorm(h, axis=-1), B_w1, B_b1, B_w2, B_b2)
    return h2
```

```python
import re

TRANS = ("v_exp_f32", "v_log_f32", "v_rcp_f32", "v_rsq_f32", "v_sqrt_f32", "v_sin_f32", "v_cos_f32")

_reg_re = re.compile(r"^(-?)(?:abs\()?([vsa])(?:(\d+)|\[(\d+):(\d+)\])\)?$")


def regs_of(tok):
    tok = tok.strip()
    if tok in ("vcc", "exec", "m0", "scc"):
        return [(tok, 0)]
    if tok in ("vcc_lo", "vcc_hi"):
        return [("vcc", 0)]
    if tok in ("exec_lo", "exec_hi"):
        return [("exec", 0)]
    m = _reg_re.match(tok)
    if not m:
        return []
    k = m.group(2)
    if m.group(3) is not None:
        return [(k, int(m.group(3)))]
    return [(k, i) for i in range(int(m.group(4)), int(m.group(5)) + 1)]


def split_ops(s):
    out, depth, cur = [], 0, ""
    for ch in s:
        if ch in "[(":
            depth += 1
        if ch in "])":
            depth -= 1
        if ch == "," and depth == 0:
            out.append(cur.strip())
            cur = ""
        else:
            cur += ch
    if cur.strip():
        out.append(cur.strip())
    return out


class Ins:
    __slots__ = ("text", "op", "dst", "src", "kind", "srcC", "srcAB", "tag", "passes", "data", "lds_dma", "extra")

    def __init__(self, text, tag=None):
        self.text = text
        self.tag = tag
        self.extra = None
        t = text.split(";")[0].strip()
        parts = t.split(None, 1)
        self.op = op = parts[0]
        rest = parts[1] if len(parts) > 1 else ""
        ops = split_ops(rest)
        mods = ""
        if ops:
            last = ops[-1].split()
            ops[-1] = last[0]
            mods = " ".join(last[1:])
        self.dst, self.src = [], []
        self.srcC, self.srcAB, self.data = [], [], []
        self.passes = 0
        self.lds_dma = False
        R = [regs_of(o) for o in ops]
        if op.endswith(":") or op.startswith("."):
            self.kind = "label"
        elif op.startswith("v_mfma"):
            self.kind = "mfma"
            self.dst = R[0]
            self.srcAB = R[1] + R[2]
            self.srcC = R[3]
            self.src = self.srcAB + self.srcC
            self.passes = 8 if "32x32" in op else 4
        elif op.startswith("v_"):
            self.kind = "valu"
            if op.startswith("v_cmp"):
                self.dst = R[0]
                self.src = sum(R[1:], [])
            elif op.startswith("v_permlane") and "swap" in op:
                self.dst = R[0] + R[1]
                self.src = R[0] + R[1]
            elif op in ("v_add_co_u32", "v_addc_co_u32", "v_sub_co_u32", "v_subb_co_u32"):
                self.dst = R[0] + R[1]
                self.src = sum(R[2:], [])
            else:
                self.dst = R[0]
                self.src = sum(R[1:], [])
                if op.startswith(("v_fmac", "v_dot2c", "v_pk_fmac")) or (op.startswith("v_mov_b32") and "dpp" in op):
                    self.src += R[0]
                if op.startswith("v_cndmask") and len(R) == 3:
                    self.src += [("vcc", 0)]
        elif op.startswith(("buffer_", "global_")):
            self.kind = "vmem"
            allmods = (" " + mods + " ")
            is_lds = " lds " in allmods or "_lds_" in op
            if op.startswith("buffer_"):
                if op in ("buffer_wbl2", "buffer_inv"):
                    pass
                elif is_lds:
                    self.lds_dma = True
                    self.src = sum(R, []) + [("m0", 0)]
                elif "load" in op:
                    self.dst = R[0]
                    self.src = sum(R[1:], [])
                    if "d16" in op:
                        self.src += R[0]
                elif "atomic" in op:
                    self.data = R[0]
                    self.src = sum(R, [])
                    if " sc0 " in allmods:
                        self.dst = R[0][: max(1, len(R[0]) // (2 if "cmpswap" in op else 1))]
                else:
                    self.data = R[0]
                    self.src = sum(R, [])
            else:
                if is_lds:
                    self.lds_dma = True
                    self.src = sum(R, []) + [("m0", 0)]
                elif "load" in op:
                    self.dst = R[0]
                    self.src = sum(R[1:], [])
                elif "atomic" in op:
                    if " sc0 " in allmods:
                        self.dst = R[0]
                        self.src = sum(R[1:], [])
                        self.data = R[2]
                    else:
                        self.src = sum(R, [])
                        self.data = R[1]
                else:
                    self.data = R[1]
                    self.src = sum(R, [])
        elif op.startswith("ds_"):
            self.kind = "ds"
            if "read" in op or "permute" in op or "swizzle" in op:
                self.dst = R[0]
                self.src = sum(R[1:], [])
            else:
                self.src = sum(R, [])
        elif op.startswith(("s_load", "s_buffer_load", "s_memtime", "s_memrealtime")):
            self.kind = "smem"
            self.dst = R[0]
            self.src = sum(R[1:], [])
        elif op in ("s_waitcnt", "s_nop", "s_barrier", "s_endpgm", "s_sleep", "s_setprio", "s_branch") or op.startswith("s_cbranch"):
            self.kind = "ctl"
        elif op.startswith("s_"):
            self.kind = "salu"
            if op.startswith("s_cmp"):
                self.src = sum(R, [])
            else:
                self.dst = R[0]
                self.src = sum(R[1:], [])
                if "saveexec" in op:
                    self.dst = self.dst + [("exec", 0)]
        else:
            raise ValueError("unknown instruction: " + text)


class Wait:
    def __init__(self, what, tag=None):
        self.what = what
        self.tag = tag


class Prog:
    def __init__(self):
        self.items = []

    def __call__(self, text, tag=None):
        for line in text.strip().split("\n"):
            line = line.strip()
            if line and not line.startswith(";"):
                self.items.append(Ins(line, tag))

    def add(self, items):
        self.items.extend(items)

    def wait_vm(self, tag):
        self.items.append(Wait("vmtag", tag))

    def wait_vm0(self):
        self.items.append(Wait("vm0"))

    def wait_lgkm0(self):
        self.items.append(Wait("lgkm0"))

    def barrier(self, lgkm=True):
        if lgkm:
            self.wait_lgkm0()
        self("s_barrier")

    def sub(self):
        return Prog()


def merge(main, fill, per=None, start=0):
    idx = [i for i, it in enumerate(main) if isinstance(it, Ins) and it.kind == "mfma"]
    idx = idx[start:]
    out = []
    n = len(idx)
    if n == 0:
        return list(main) + list(fill)
    pos = 0
    total = len(fill)
    slot = 0
    idxset = {i: k for k, i in enumerate(idx)}
    for i, it in enumerate(main):
        out.append(it)
        if i in idxset:
            k = idxset[i] + 1
            want = (total * k + n - 1) // n if per is None else min(total, per * k)
            while pos < want:
                out.append(fill[pos])
                pos += 1
    out.extend(fill[pos:])
    return out


def finalize(items, name="", check_uninit=False):
    out = []
    vm_issued = 0
    vm_done = 0
    lg_issued = 0
    lg_done = 0
    smem_pending = False
    pend_vm = {}
    pend_lg = {}
    pend_smem = set()
    tag_vm = {}
    hist = []
    pos = 0

    def emit(ins):
        nonlocal pos
        out.append(ins)
        if ins.kind == "label":
            return
        hist.append((ins, pos))
        if ins.op == "s_nop":
            pos += int(ins.text.split()[1], 0) + 1
        else:
            pos += 1
        if len(hist) > 40:
            del hist[0]

    def do_wait(vm=None, lg=None):
        nonlocal vm_done, lg_done, smem_pending
        parts = []
        if vm is not None:
            n = vm_issued - vm
            if vm > vm_done:
                if n <= 63:
                    parts.append(f"vmcnt({n})")
                vm_done = vm
        if lg is not None:
            if smem_pending:
                parts.append("lgkmcnt(0)")
                lg_done = lg_issued
                smem_pending = False
                pend_smem.clear()
            elif lg > lg_done:
                n = lg_issued - lg
                if n <= 15:
                    parts.append(f"lgkmcnt({n})")
                lg_done = lg
        if parts:
            emit(Ins("s_waitcnt " + " ".join(parts)))

    for it in items:
        if isinstance(it, Wait):
            if it.what == "vmtag":
                assert it.tag in tag_vm, f"unknown vm tag {it.tag}"
                do_wait(vm=tag_vm[it.tag])
            elif it.what == "vm0":
                do_wait(vm=vm_issued)
            elif it.what == "lgkm0":
                if smem_pending or lg_issued > lg_done:
                    do_wait(lg=lg_issued)
            continue
        ins = it
        if ins.kind == "label" or (ins.kind == "ctl" and (ins.op.startswith("s_cbranch") or ins.op == "s_branch")):
            emit(ins)
            continue
        if ins.op == "s_waitcnt":
            m = re.search(r"vmcnt\((\d+)\)", ins.text)
            if m:
                vm_done = max(vm_done, vm_issued - int(m.group(1)))
            m = re.search(r"lgkmcnt\((\d+)\)", ins.text)
            if m:
                n = int(m.group(1))
                if n == 0:
                    lg_done = lg_issued
                    smem_pending = False
                    pend_smem.clear()
                elif not smem_pending:
                    lg_done = max(lg_done, lg_issued - n)
            emit(ins)
            continue
        need_vm, need_lg = 0, 0
        touch = list(ins.src) + list(ins.dst)
        for r in touch:
            if r in pend_vm and pend_vm[r] > vm_done:
                need_vm = max(need_vm, pend_vm[r])
            if r in pend_lg and pend_lg[r] > lg_done:
                need_lg = max(need_lg, pend_lg[r])
            if r in pend_smem and smem_pending:
                need_lg = max(need_lg, lg_issued, 1)
        if need_vm or need_lg:
            do_wait(vm=need_vm or None, lg=need_lg or None)
        need = 0
        srcs, dsts = set(ins.src), set(ins.dst)
        for (p, ppos) in hist:
            dist = pos - ppos - 1
            if p.op == "s_nop":
                continue
            req = 0
            pd = set(p.dst)
            if p.kind == "valu":
                isdot = p.op.startswith("v_dot")
                if ins.kind == "mfma" and pd & srcs:
                    req = max(req, 3 if isdot else 2)
                if ins.kind == "valu":
                    if p.op.startswith(TRANS) and not ins.op.startswith(TRANS) and pd & srcs:
                        req = max(req, 1)
                    if ins.op.startswith("v_permlane") and pd & srcs:
                        req = max(req, 2)
                    if "dpp" in ins.text and pd & srcs:
                        req = max(req, 2)
                    if ins.op.startswith(("v_readfirstlane", "v_readlane")) and pd & srcs:
                        req = max(req, 1)
                    sg = {r for r in pd if r[0] in ("s", "vcc")}
                    if sg & srcs:
                        req = max(req, 4 if ins.op.startswith(("v_readlane", "v_writelane")) else 2)
                    if isdot and pd & (srcs | dsts):
                        same = ins.op == p.op
                        if same:
                            ab = set(ins.src[:-1]) if ins.op.startswith("v_dot2c") else set(ins.src[:2])
                            if pd & ab:
                                req = max(req, 3)
                        else:
                            req = max(req, 3)
                if ins.kind in ("vmem", "ds") and isdot and pd & srcs:
                    req = max(req, 3)
                if ins.kind == "vmem":
                    sg = {r for r in pd if r[0] in ("s", "vcc")}
                    if sg & srcs:
                        req = max(req, 5)
                if ("exec", 0) in pd:
                    req = max(req, 5)
            elif p.kind == "mfma":
                big = p.passes == 8
                if ins.kind == "mfma":
                    c = set(ins.srcC)
                    if pd & c and not (list(p.dst) == list(ins.srcC) and p.passes == ins.passes):
                        req = max(req, 10 if big else 6)
                    if pd & set(ins.srcAB):
                        req = max(req, 12 if big else 8)
                    if pd & dsts and not (list(p.dst) == list(ins.srcC)):
                        req = max(req, 12 if big else 8)
                elif ins.kind in ("valu", "vmem", "ds"):
                    if pd & (srcs | dsts):
                        req = max(req, 12 if big else 8)
                    if set(p.srcC) & dsts:
                        req = max(req, 7 if big else 3)
            elif p.kind == "salu":
                if ("m0", 0) in pd and ins.kind == "vmem" and ins.lds_dma:
                    req = max(req, 1)
            elif p.kind == "vmem":
                if len(p.data) >= 3 and set(p.data) & dsts:
                    req = max(req, 2)
            if req > dist:
                need = max(need, req - dist)
        while need > 0:
            n = min(need, 16)
            emit(Ins(f"s_nop {n - 1}"))
            need -= n
        emit(ins)
        if ins.kind == "vmem":
            vm_issued += 1
            for r in ins.dst:
                pend_vm[r] = vm_issued
            if ins.tag is not None:
                tag_vm[ins.tag] = vm_issued
        elif ins.kind == "ds":
            lg_issued += 1
            for r in ins.dst:
                pend_lg[r] = lg_issued
        elif ins.kind == "smem":
            lg_issued += 1
            smem_pending = True
            for r in ins.dst:
                pend_smem.add(r)
    return [("" if i.kind == "label" else "    ") + i.text for i in out]


def vr(n, c=1):
    return f"v{n}" if c == 1 else f"v[{n}:{n + c - 1}]"


def ar(n, c=1):
    return f"a{n}" if c == 1 else f"a[{n}:{n + c - 1}]"


def sr(n, c=1):
    return f"s{n}" if c == 1 else f"s[{n}:{n + c - 1}]"


class RegAlloc:
    def __init__(self, start, limit):
        self.next = start
        self.limit = limit
        self.hi = start

    def __call__(self, n=1, align=None):
        if align is None:
            align = 1 if n == 1 else (2 if n == 2 else 4)
        self.next = (self.next + align - 1) // align * align
        r = self.next
        self.next += n
        assert self.next <= self.limit, f"out of registers: {self.next} > {self.limit}"
        self.hi = max(self.hi, self.next)
        return r

    def mark(self):
        return self.next

    def release(self, m):
        self.next = m
```

```python
import sys, math, struct
from dsl import *

NAME = "sequential_preLN__linear_kernel_hedgehog__mixer_channel_mlp__prompt"
S, D, H, DH, F = 2048, 448, 16, 28, 1792

WS_PHIQ = 0
WS_KVP = 4 << 20
WS_OF = 6 << 20
WS_HF = 8 << 20
WS_H1F = 10 << 20
WS_TS = 32 << 20
WS_SIZE = 256 << 20

LOG2E = 1.4426950408889634


def f32(x):
    return "0x%08x" % struct.unpack("<I", struct.pack("<f", x))[0]


SX, SWQKV, SWPHI, SWO, SBX, SW1, SB1, SW2, SB2, SOUT, SDBG, SWS = [16 + 2 * i for i in range(12)]

DIAG = False


def srd(p, d, src, nbytes):
    p(f"s_mov_b32 s{d}, s{src}")
    p(f"s_mov_b32 s{d+1}, s{src+1}")
    p(f"s_mov_b32 s{d+2}, {nbytes}")
    p(f"s_mov_b32 s{d+3}, 0x00020000")


def prologue(p, name, grid):
    p(f"s_cmp_ge_u32 s2, {grid}")
    p(f"s_cbranch_scc1 L_{name}_end")
    p("s_load_dwordx16 s[16:31], s[0:1], 0")
    p("s_load_dwordx8 s[32:39], s[0:1], 64")
    p("v_lshrrev_b32 v1, 6, v0")
    p("v_readfirstlane_b32 s4, v1")
    p("v_and_b32 v1, 63, v0")


def xhalf(p, op, a, t):
    p(f"v_mov_b32 v{t}, v{a}")
    p(f"v_permlane32_swap_b32 v{a}, v{t}")
    p(f"{op} v{a}, v{a}, v{t}")


def dma(p, voff, srdreg, soff, ldsaddr, tag=None):
    p(f"s_mov_b32 m0, {ldsaddr}")
    p(f"buffer_load_dwordx4 v{voff}, s[{srdreg}:{srdreg+3}], {soff} offen lds", tag=tag)


def kernel_text(name, items, nvgpr, nsgpr=96, nagpr=0):
    body = finalize(items, name)
    acc = (nvgpr + 3) // 4 * 4
    txt = [f".globl {name}_kernel", ".p2align 8", f".type {name}_kernel,@function", f"{name}_kernel:"]
    txt += body
    txt += [f"L_{name}_end:", "    s_endpgm"]
    kd = f""".amdhsa_kernel {name}_kernel
  .amdhsa_next_free_vgpr {acc + nagpr if nagpr else nvgpr}
  .amdhsa_next_free_sgpr {nsgpr}
  .amdhsa_accum_offset {acc}
  .amdhsa_group_segment_fixed_size 0
  .amdhsa_kernarg_size 96
  .amdhsa_user_sgpr_count 2
  .amdhsa_user_sgpr_kernarg_segment_ptr 1
  .amdhsa_system_sgpr_workgroup_id_x 1
.end_amdhsa_kernel"""
    return "\n".join(txt), kd


def tr_lane_consts(p, va, vb, vc):
    p(f"v_bfe_u32 v{va}, v1, 2, 2")
    p(f"v_and_b32 v{vb}, 3, v1")
    p(f"v_lshlrev_b32 v{vb}, 3, v{vb}")
    p(f"v_bfe_u32 v{vc}, v1, 4, 1")
    p(f"v_lshl_add_u32 v{vb}, v{vc}, 5, v{vb}")
    p(f"v_lshrrev_b32 v{vc}, 5, v1")


def softmax_pm(p, P, E, OUT, vsc, T):
    mx, mn, t0, t1 = T, T + 1, T + 2, T + 4
    p(f"v_max3_f32 v{mx}, v{P}, v{P+1}, v{P+2}")
    p(f"v_min3_f32 v{mn}, v{P}, v{P+1}, v{P+2}")
    for j in range(3, 13, 2):
        p(f"v_max3_f32 v{mx}, v{mx}, v{P+j}, v{P+j+1}")
        p(f"v_min3_f32 v{mn}, v{mn}, v{P+j}, v{P+j+1}")
    p(f"v_max_f32 v{mx}, v{mx}, v{P+13}")
    p(f"v_max_f32 v{mn}, -v{mn}, -v{P+13}")
    p(f"v_permlane32_swap_b32 v{mx}, v{mn}")
    p(f"v_max_f32 v{mx}, v{mx}, v{mn}")
    p(f"v_mul_f32 v{t0}, v{mx}, v{vsc}")
    p(f"v_mov_b32 v{t1}, v{t0}")
    p(f"v_permlane32_swap_b32 v{t0}, v{t1}")
    for j in range(0, 14, 2):
        p(f"v_pk_fma_f32 v[{E+j}:{E+j+1}], v[{P+j}:{P+j+1}], v[{vsc}:{vsc+1}], v[{t0}:{t0+1}] op_sel_hi:[1,0,0] neg_lo:[0,0,1] neg_hi:[0,0,1]")
        p(f"v_pk_fma_f32 v[{E+14+j}:{E+14+j+1}], v[{P+j}:{P+j+1}], v[{vsc}:{vsc+1}], v[{t1}:{t1+1}] op_sel_hi:[1,0,0] neg_lo:[1,0,1] neg_hi:[1,0,1]")
    for j in range(28):
        p(f"v_exp_f32 v{E+j}, v{E+j}")
    for sgn, t in ((0, t0), (1, t1)):
        b = E + 14 * sgn
        p(f"v_pk_add_f32 v[{t}:{t+1}], v[{b}:{b+1}], v[{b+2}:{b+3}]")
        for j in range(4, 14, 2):
            p(f"v_pk_add_f32 v[{t}:{t+1}], v[{t}:{t+1}], v[{b+j}:{b+j+1}]")
    p(f"v_add_f32 v{mx}, v{t0}, v{t0+1}")
    p(f"v_add_f32 v{mn}, v{t1}, v{t1+1}")
    p(f"v_permlane32_swap_b32 v{mx}, v{mn}")
    p(f"v_add_f32 v{mx}, v{mx}, v{mn}")
    p(f"v_rcp_f32 v{t0}, v{mx}")
    p(f"v_mov_b32 v{t1}, v{t0}")
    p(f"v_permlane32_swap_b32 v{t0}, v{t1}")
    for sgn, t in ((0, t0), (1, t1)):
        b = E + 14 * sgn
        for j in range(0, 14, 2):
            p(f"v_pk_mul_f32 v[{b+j}:{b+j+1}], v[{b+j}:{b+j+1}], v[{t}:{t+1}] op_sel_hi:[1,0]")
        for j in range(0, 14, 2):
            p(f"v_cvt_pk_bf16_f32 v{OUT+8*sgn+j//2}, v{b+j}, v{b+j+1}")
        p(f"v_mov_b32 v{OUT+8*sgn+7}, 0")


def gen_k1():
    name = "k1"
    p = Prog()
    L_WKV, L_WQ, L_XR, L_WPHI, L_MISC = 0, 57344, 86016, 151552, 155648
    LDS = 159744
    prologue(p, name, 256)
    p("s_and_b32 s5, s2, 7")
    p("s_lshr_b32 s6, s2, 3")
    p("s_and_b32 s7, s6, 1")
    p("s_lshl_b32 s5, s5, 1")
    p("s_add_u32 s7, s7, s5")
    p("s_lshr_b32 s5, s6, 1")
    p("s_mov_b32 s6, s7")
    ra = RegAlloc(2, 256)
    vXe, vXo, vWkv, vWq, vPh = ra(), ra(), ra(), ra(), ra()
    vXr = [ra() for _ in range(4)]
    vAk, vAv, vAq, vAphi, vApk = ra(), ra(), ra(), ra(), ra()
    t0, t1, t2, t3 = ra(), ra(), ra(), ra()
    vOnes = ra()
    vS, vQ, vCk, vCv, vCq = ra(), ra(), ra(), ra(), ra()
    X = ra(16, 4)
    WF = ra(32, 4)
    AK, AV, AQ = ra(16, 4), ra(16, 4), ra(16, 4)
    p(f"v_lshrrev_b32 v{t0}, 3, v1")
    p(f"v_mul_u32_u24 v{t0}, 896, v{t0}")
    p(f"v_and_b32 v{t1}, 7, v1")
    p(f"v_lshrrev_b32 v{t2}, 4, v1")
    p(f"v_xor_b32 v{t1}, v{t1}, v{t2}")
    p(f"v_lshl_add_u32 v{vXe}, v{t1}, 4, v{t0}")
    p(f"v_xor_b32 v{t1}, 4, v{t1}")
    p(f"v_lshl_add_u32 v{vXo}, v{t1}, 4, v{t0}")
    p(f"v_add_u32 v{vXo}, {8*896}, v{vXo}")
    p(f"v_lshrrev_b32 v{t0}, 3, v1")
    p(f"v_mul_u32_u24 v{t0}, 2688, v{t0}")
    p(f"v_lshrrev_b32 v{t1}, 2, v1")
    p(f"v_xor_b32 v{t1}, v{t1}, v{t2}")
    p(f"v_and_b32 v{t1}, 1, v{t1}")
    p(f"v_mul_u32_u24 v{t1}, 896, v{t1}")
    p(f"v_and_b32 v{t3}, 3, v1")
    p(f"v_lshlrev_b32 v{t3}, 4, v{t3}")
    p(f"v_add3_u32 v{vWkv}, v{t0}, v{t1}, v{t3}")
    p(f"v_add_u32 v{vWkv}, 896, v{vWkv}")
    p(f"v_lshrrev_b32 v{t0}, 2, v1")
    p(f"v_mul_u32_u24 v{t0}, 2688, v{t0}")
    p(f"v_add_u32 v{vWq}, v{t0}, v{t3}")
    p(f"v_lshlrev_b32 v{vPh}, 4, v1")
    p("s_lshl_b32 s8, s6, 2")
    p("s_add_u32 s8, s8, s4")
    p("s_mov_b32 s9, s8")
    p(f"s_mul_i32 s8, s8, {32*896}")
    p("s_mul_i32 s10, s5, 56")
    p(f"s_lshl_b32 s11, s4, 14")
    p(f"s_add_u32 s11, s11, {L_XR}")
    srd(p, 40, SX, S * D * 2)
    srd(p, 44, SWQKV, D * 3 * D * 2)
    srd(p, 48, SWPHI, H * DH * DH * 2)
    srd(p, 52, SWS, WS_SIZE)

    def dma_x(c):
        for j in range(4):
            p(f"s_add_u32 s12, s8, {(j >> 1) * 16 * 896 + c * 128}")
            p(f"s_add_u32 s13, s11, {(c & 3) * 4096 + j * 1024}")
            dma(p, vXo if j & 1 else vXe, 40, "s12", "s13", tag=f"x{c}")

    p(f"s_mul_i32 s14, s4, {16*2688}")
    p("s_add_u32 s14, s14, s10")
    p("s_lshl_b32 s15, s4, 11")

    def dma_wkv(c):
        for j in range(2):
            p(f"s_add_u32 s12, s14, {(64 * c + 8 * j) * 2688}")
            p(f"s_add_u32 s13, s15, {L_WKV + c * 8192 + j * 1024}")
            dma(p, vWkv, 44, "s12", "s13", tag=f"wkv{c}")

    for c in range(7):
        if c < 4:
            dma_x(c)
        dma_wkv(c)

    tr_lane_consts(p, t0, t1, t2)
    p(f"v_lshl_add_u32 v{t3}, v{t2}, 3, v{t0}")
    p(f"v_lshl_add_u32 v{vAk}, v{t3}, 7, v{t1}")
    p(f"v_lshl_add_u32 v{vAq}, v{t3}, 6, v{t1}")
    p(f"v_add_u32 v{vAq}, {L_WQ}, v{vAq}")
    p(f"v_lshrrev_b32 v{t3}, 1, v{t0}")
    p(f"v_lshl_add_u32 v{vAk}, v{t3}, 6, v{vAk}")
    p(f"v_xor_b32 v{vAv}, 64, v{vAk}")
    p(f"v_lshl_add_u32 v{t3}, v{t2}, 2, v{t0}")
    p(f"v_mul_u32_u24 v{vAphi}, 56, v{t3}")
    p(f"v_add_u32 v{vAphi}, v{vAphi}, v{t1}")
    p(f"v_add_u32 v{vAphi}, {L_WPHI}, v{vAphi}")
    p(f"v_cmp_eq_u32 vcc, 56, v{t1}")
    p(f"v_add_u32 v{vApk}, {2048 - 8}, v{vAphi}")
    p(f"v_cndmask_b32 v{vAphi}, v{vAphi}, v{vApk}, vcc")
    p(f"v_mul_u32_u24 v{vApk}, 136, v{t3}")
    p(f"v_add3_u32 v{vApk}, v{vApk}, v{t1}, s11")
    p(f"v_and_b32 v{t0}, 31, v1")
    p(f"v_bfe_u32 v{t1}, v1, 1, 3")
    p(f"v_xor_b32 v{t1}, v{t1}, v{t2}")
    p(f"v_lshlrev_b32 v{t0}, 7, v{t0}")
    p(f"v_add_u32 v{t0}, s11, v{t0}")
    for s in range(4):
        p(f"v_xor_b32 v{t3}, {2*s}, v{t1}")
        p(f"v_lshl_add_u32 v{vXr[s]}, v{t3}, 4, v{t0}")
    p(f"v_mov_b32 v{vOnes}, 0x3f803f80")
    for r in (vS, vQ, vCk, vCv, vCq):
        p(f"v_mov_b32 v{r}, 0")
    for r in range(16):
        p(f"v_mov_b32 v{AK+r}, 0")
        p(f"v_mov_b32 v{AV+r}, 0")
        p(f"v_mov_b32 v{AQ+r}, 0")

    for c in range(7):
        p.wait_vm(f"x{c}")
        p.wait_vm(f"wkv{c}")
        p("s_barrier")
        for s in range(4):
            xa = 4 * (4 * c + s)
            p(f"ds_read_b128 a[{xa}:{xa+3}], v{vXr[s]} offset:{(c & 3) * 4096}")
        for s in range(4):
            xr = X + 4 * s
            p(f"ds_read_b128 v[{xr}:{xr+3}], v{vXr[s]} offset:{(c & 3) * 4096}")
        for s in range(4):
            ks = 4 * c + s
            wk, wv = WF + 8 * s, WF + 8 * s + 4
            for u in range(2):
                p(f"ds_read_b64_tr_b16 v[{wk+2*u}:{wk+2*u+1}], v{vAk} offset:{ks*2048+u*512}")
            for u in range(2):
                p(f"ds_read_b64_tr_b16 v[{wv+2*u}:{wv+2*u+1}], v{vAv} offset:{ks*2048+u*512}")
            if s == 0:
                for ss in range(4):
                    xr = X + 4 * ss
                    for j in range(4):
                        p(f"v_dot2c_f32_bf16 v{vS}, v{xr+j}, v{vOnes}")
                        p(f"v_dot2c_f32_bf16 v{vQ}, v{xr+j}, v{xr+j}")
                if c + 4 < 7:
                    dma_x(c + 4)
                if c == 2:
                    p("s_and_b32 s12, s4, 1")
                    p("s_lshl_b32 s12, s12, 10")
                    p("s_lshr_b32 s13, s4, 1")
                    p("s_lshl_b32 s13, s13, 2")
                    p("s_add_u32 s12, s12, s13")
                    p(f"s_mul_i32 s13, s5, {DH*DH*2}")
                    p("s_add_u32 s12, s12, s13")
                    p("s_lshl_b32 s13, s4, 10")
                    p(f"s_add_u32 s13, s13, {L_WPHI}")
                    dma(p, vPh, 48, "s12", "s13", tag="wphi")
                    p(f"s_mul_i32 s14, s4, {7*16*2688}")
                    p("s_add_u32 s14, s14, s10")
                    p(f"s_mul_i32 s15, s4, {7*1024}")
                    for j in range(7):
                        p(f"s_add_u32 s12, s14, {16*j*2688}")
                        p(f"s_add_u32 s13, s15, {L_WQ + j*1024}")
                        dma(p, vWq, 44, "s12", "s13", tag="wq")
        for s in range(4):
            xr = X + 4 * s
            wk, wv = WF + 8 * s, WF + 8 * s + 4
            p(f"v_mfma_f32_32x32x16_bf16 v[{AK}:{AK+15}], v[{wk}:{wk+3}], v[{xr}:{xr+3}], v[{AK}:{AK+15}]")
            for j in range(4):
                p(f"v_dot2c_f32_bf16 v{vCk}, v{wk+j}, v{vOnes}")
            p(f"v_mfma_f32_32x32x16_bf16 v[{AV}:{AV+15}], v[{xr}:{xr+3}], v[{wv}:{wv+3}], v[{AV}:{AV+15}]")
            for j in range(4):
                p(f"v_dot2c_f32_bf16 v{vCv}, v{wv+j}, v{vOnes}")

    vNM = ra(2, 2)
    vRS = ra(2, 2)
    vSC = ra(2, 2)
    vCv2 = ra(2, 2)
    vMisc = ra()
    vMr = ra()
    xhalf(p, "v_add_f32", vS, t0)
    xhalf(p, "v_add_f32", vQ, t0)
    xhalf(p, "v_add_f32", vCk, t0)
    xhalf(p, "v_add_f32", vCv, t0)
    p(f"v_mul_f32 v{vNM}, {f32(-1.0/D)}, v{vS}")
    p(f"v_mul_f32 v{t0}, {f32(1.0/D)}, v{vQ}")
    p(f"v_fma_f32 v{t0}, -v{vNM}, v{vNM}, v{t0}")
    p(f"v_max_f32 v{t0}, 0, v{t0}")
    p(f"v_add_f32 v{t0}, {f32(1e-5)}, v{t0}")
    p(f"v_rsq_f32 v{vRS}, v{t0}")
    p(f"s_lshl_b32 s12, s4, 10")
    p(f"s_add_u32 s12, s12, {L_MISC}")
    p(f"v_and_b32 v{vMisc}, 31, v1")
    p(f"v_lshl_add_u32 v{vMisc}, v{vMisc}, 2, s12")
    p(f"v_lshrrev_b32 v{vMr}, 5, v1")
    p(f"v_lshl_add_u32 v{vMr}, v{vMr}, 4, s12")
    p(f"v_mul_f32 v{vSC}, {f32(LOG2E)}, v{vRS}")
    p(f"v_mul_f32 v{t0}, v{vNM}, v{vRS}")
    p(f"v_mov_b32 v{vCv2}, v{vCv}")
    p(f"ds_write_b32 v{vMisc}, v{vCk}")
    p(f"ds_write_b32 v{vMisc}, v{vRS} offset:128")
    p(f"ds_write_b32 v{vMisc}, v{t0} offset:256")
    E = ra(28, 4)
    T = ra(6, 2)
    PH = ra(8, 4)
    CS = WF
    R2 = WF + 16
    PK = E
    KB = ra(8, 4)
    VB = ra(8, 4)
    OUT = ra(16, 4)
    for g in range(4):
        p(f"ds_read_b128 v[{CS+4*g}:{CS+4*g+3}], v{vMr} offset:{32*g}")
    p.wait_vm("wphi")
    p.wait_vm("wq")
    p("s_barrier")
    for t in range(2):
        for u in range(2):
            p(f"ds_read_b64_tr_b16 v[{PH+4*t+2*u}:{PH+4*t+2*u+1}], v{vAphi} offset:{(16*t+8*u)*56}")
    for j in range(0, 16, 2):
        p(f"v_pk_fma_f32 v[{AK+j}:{AK+j+1}], v[{CS+j}:{CS+j+1}], v[{vNM}:{vNM+1}], v[{AK+j}:{AK+j+1}] op_sel_hi:[1,0,1]")
    for j in range(0, 16, 2):
        p(f"v_cvt_pk_bf16_f32 v{KB+j//2}, v{AK+j}, v{AK+j+1}")
    p("s_mov_b32 s12, 0")
    p("s_mov_b32 s13, -1")
    p(f"v_mov_b32 v{t0}, v{PH+6}")
    p(f"v_mov_b32 v{t0}, v{PH+7}")
    p("s_mov_b64 exec, s[12:13]")
    p(f"v_mov_b32 v{PH+6}, 0")
    p(f"v_mov_b32 v{PH+7}, 0")
    p("s_mov_b64 exec, -1")
    for g in range(4):
        p(f"ds_read_b128 v[{CS+4*g}:{CS+4*g+3}], v{vMr} offset:{128+32*g}")
    for g in range(4):
        p(f"ds_read_b128 v[{R2+4*g}:{R2+4*g+3}], v{vMr} offset:{256+32*g}")
    p(f"v_mfma_f32_32x32x16_bf16 v[{AK}:{AK+15}], v[{PH}:{PH+3}], v[{KB}:{KB+3}], 0")
    p(f"v_mfma_f32_32x32x16_bf16 v[{AK}:{AK+15}], v[{PH+4}:{PH+7}], v[{KB+4}:{KB+7}], v[{AK}:{AK+15}]")
    for j in range(0, 16, 2):
        p(f"v_pk_mul_f32 v[{R2+j}:{R2+j+1}], v[{R2+j}:{R2+j+1}], v[{vCv2}:{vCv2+1}] op_sel_hi:[1,0]")
    for j in range(0, 16, 2):
        p(f"v_pk_fma_f32 v[{AV+j}:{AV+j+1}], v[{AV+j}:{AV+j+1}], v[{CS+j}:{CS+j+1}], v[{R2+j}:{R2+j+1}]")
    for j in range(0, 16, 2):
        p(f"v_cvt_pk_bf16_f32 v{VB+j//2}, v{AV+j}, v{AV+j+1}")
    p("s_mov_b32 s12, 0xf0000000")
    p("s_mov_b32 s13, 0xf0000000")
    p("s_mov_b64 exec, s[12:13]")
    for j in range(8):
        p(f"v_mov_b32 v{VB+j}, v{vOnes}")
    p("s_mov_b64 exec, -1")
    softmax_pm(p, AK, E, OUT, vSC, T)
    p(f"v_and_b32 v{t0}, 31, v1")
    p(f"v_mul_u32_u24 v{t0}, 136, v{t0}")
    p(f"v_lshrrev_b32 v{t1}, 5, v1")
    p(f"v_lshlrev_b32 v{t1}, 3, v{t1}")
    p(f"v_add3_u32 v{t0}, v{t0}, v{t1}, s11")
    for sg in range(2):
        for g in range(4):
            r = OUT + 8 * sg + 2 * g
            p(f"ds_write_b64 v{t0}, v[{r}:{r+1}] offset:{64*sg+16*g}")
    p.wait_lgkm0()
    PF = WF
    for sg in range(2):
        for t in range(2):
            for u in range(2):
                r = PF + 8 * sg + 4 * t + 2 * u
                p(f"ds_read_b64_tr_b16 v[{r}:{r+1}], v{vApk} offset:{(16*t+8*u)*136+64*sg}")
    KV = [AK, AV]
    for sg in range(2):
        r = PF + 8 * sg
        p(f"v_mfma_f32_32x32x16_bf16 v[{KV[sg]}:{KV[sg]+15}], v[{r}:{r+3}], v[{VB}:{VB+3}], 0")
    for sg in range(2):
        r = PF + 8 * sg + 4
        p(f"v_mfma_f32_32x32x16_bf16 v[{KV[sg]}:{KV[sg]+15}], v[{r}:{r+3}], v[{VB+4}:{VB+7}], v[{KV[sg]}:{KV[sg]+15}]")
    p(f"v_lshl_add_u32 v{t0}, v1, 4, s11")
    for sg in range(2):
        for g in range(4):
            r = KV[sg] + 4 * g
            p(f"ds_write_b128 v{t0}, v[{r}:{r+3}] offset:{8192 + (4*sg+g)*1024}")
    p.barrier()
    p("s_lshl_b32 s12, s4, 11")
    p(f"s_add_u32 s12, s12, {L_XR + 8192}")
    p(f"v_lshl_add_u32 v{t0}, v1, 4, s12")
    RD = WF
    for w2 in range(4):
        for g in range(2):
            r = RD + 8 * w2 + 4 * g
            p(f"ds_read_b128 v[{r}:{r+3}], v{t0} offset:{w2*16384 + g*1024}")
    for j in range(0, 8, 2):
        p(f"v_pk_add_f32 v[{RD+j}:{RD+j+1}], v[{RD+j}:{RD+j+1}], v[{RD+8+j}:{RD+8+j+1}]")
        p(f"v_pk_add_f32 v[{RD+16+j}:{RD+16+j+1}], v[{RD+16+j}:{RD+16+j+1}], v[{RD+24+j}:{RD+24+j+1}]")
    for j in range(0, 8, 2):
        p(f"v_pk_add_f32 v[{E+j}:{E+j+1}], v[{RD+j}:{RD+j+1}], v[{RD+16+j}:{RD+16+j+1}]")
    p("s_lshl_b32 s12, s5, 4")
    p("s_add_u32 s12, s12, s6")
    p("s_lshl_b32 s12, s12, 2")
    p("s_add_u32 s12, s12, s4")
    p("s_lshl_b32 s12, s12, 11")
    p(f"s_add_u32 s12, s12, {WS_KVP}")
    p(f"buffer_store_dwordx4 v[{E}:{E+3}], v{vPh}, s[52:55], s12 offen")
    p(f"buffer_store_dwordx4 v[{E+4}:{E+7}], v{vPh}, s[52:55], s12 offen offset:1024")

    for c in range(7):
        for s in range(4):
            ks = 4 * c + s
            wq = WF + 16 * (c & 1) + 4 * s
            for u in range(2):
                p(f"ds_read_b64_tr_b16 v[{wq+2*u}:{wq+2*u+1}], v{vAq} offset:{ks*1024+u*256}")
        if c > 0:
            cc = c - 1
            for s in range(4):
                xr = 4 * (4 * cc + s)
                wq = WF + 16 * (cc & 1) + 4 * s
                p(f"v_mfma_f32_32x32x16_bf16 v[{AQ}:{AQ+15}], v[{wq}:{wq+3}], a[{xr}:{xr+3}], v[{AQ}:{AQ+15}]")
                for j in range(4):
                    p(f"v_dot2c_f32_bf16 v{vCq}, v{wq+j}, v{vOnes}")
    cc = 6
    for s in range(4):
        xr = 4 * (4 * cc + s)
        wq = WF + 16 * (cc & 1) + 4 * s
        p(f"v_mfma_f32_32x32x16_bf16 v[{AQ}:{AQ+15}], v[{wq}:{wq+3}], a[{xr}:{xr+3}], v[{AQ}:{AQ+15}]")
        for j in range(4):
            p(f"v_dot2c_f32_bf16 v{vCq}, v{wq+j}, v{vOnes}")
    xhalf(p, "v_add_f32", vCq, t0)
    p(f"ds_write_b32 v{vMisc}, v{vCq} offset:384")
    p.wait_lgkm0()
    CS = WF + 16
    for g in range(4):
        p(f"ds_read_b128 v[{CS+4*g}:{CS+4*g+3}], v{vMr} offset:{384+32*g}")
    for j in range(0, 16, 2):
        p(f"v_pk_fma_f32 v[{AQ+j}:{AQ+j+1}], v[{CS+j}:{CS+j+1}], v[{vNM}:{vNM+1}], v[{AQ+j}:{AQ+j+1}] op_sel_hi:[1,0,1]")
    for j in range(0, 16, 2):
        p(f"v_cvt_pk_bf16_f32 v{KB+j//2}, v{AQ+j}, v{AQ+j+1}")
    p(f"v_mfma_f32_32x32x16_bf16 v[{AK}:{AK+15}], v[{PH}:{PH+3}], v[{KB}:{KB+3}], 0")
    p(f"v_mfma_f32_32x32x16_bf16 v[{AK}:{AK+15}], v[{PH+4}:{PH+7}], v[{KB+4}:{KB+7}], v[{AK}:{AK+15}]")
    softmax_pm(p, AK, E, OUT, vSC, T)
    p("s_lshl_b32 s12, s5, 6")
    p("s_add_u32 s12, s12, s9")
    p("s_lshl_b32 s12, s12, 12")
    p(f"s_add_u32 s12, s12, {WS_PHIQ}")
    for kk in range(4):
        p(f"buffer_store_dwordx4 v[{OUT+4*kk}:{OUT+4*kk+3}], v{vPh}, s[52:55], s12 offen offset:{kk*1024}")
    return name, 256, LDS, kernel_text(name, p.items, ra.hi, nagpr=112)


def gen_k15():
    name = "k15"
    p = Prog()
    LDS = 4096
    prologue(p, name, 256)
    p("s_and_b32 s5, s2, 7")
    p("s_lshr_b32 s6, s2, 3")
    p("s_and_b32 s7, s6, 1")
    p("s_lshl_b32 s5, s5, 1")
    p("s_add_u32 s7, s7, s5")
    p("s_lshr_b32 s5, s6, 1")
    p("s_mov_b32 s6, s7")
    p("s_lshl_b32 s9, s6, 2")
    p("s_add_u32 s9, s9, s4")
    ra = RegAlloc(2, 256)
    vL16, t0, t1 = ra(), ra(), ra()
    vR = ra(2, 2)
    PART = ra(128, 4)
    PQ = ra(16, 4)
    AF = ra(16, 4)
    ACC = ra(16, 4)
    OB = ra(8, 4)
    p(f"v_lshlrev_b32 v{vL16}, 4, v1")
    srd(p, 52, SWS, WS_SIZE)
    p("s_lshl_b32 s12, s5, 17")
    p("s_lshl_b32 s13, s4, 11")
    p("s_add_u32 s12, s12, s13")
    p(f"s_add_u32 s12, s12, {WS_KVP}")
    for pp in range(16):
        if pp:
            p(f"s_add_u32 s12, s12, 8192")
        for g in range(2):
            r = PART + 8 * pp + 4 * g
            p(f"buffer_load_dwordx4 v[{r}:{r+3}], v{vL16}, s[52:55], s12 offen offset:{g*1024}")
    p("s_lshl_b32 s12, s5, 6")
    p("s_add_u32 s12, s12, s9")
    p("s_lshl_b32 s12, s12, 12")
    p(f"s_add_u32 s12, s12, {WS_PHIQ}")
    for kk in range(4):
        p(f"buffer_load_dwordx4 v[{PQ+4*kk}:{PQ+4*kk+3}], v{vL16}, s[52:55], s12 offen offset:{kk*1024}")
    for pp in range(1, 16):
        for j in range(0, 8, 2):
            p(f"v_pk_add_f32 v[{PART+j}:{PART+j+1}], v[{PART+j}:{PART+j+1}], v[{PART+8*pp+j}:{PART+8*pp+j+1}]")
    for j in range(4):
        p(f"v_cvt_pk_bf16_f32 v{OB+j}, v{PART+2*j}, v{PART+2*j+1}")
    p("s_lshl_b32 s12, s4, 10")
    p(f"v_add_u32 v{t0}, s12, v{vL16}")
    p(f"ds_write_b128 v{t0}, v[{OB}:{OB+3}]")
    p.barrier()
    for kk in range(4):
        p(f"ds_read_b128 v[{AF+4*kk}:{AF+4*kk+3}], v{vL16} offset:{kk*1024}")
    for kk in range(4):
        c = "0" if kk == 0 else f"v[{ACC}:{ACC+15}]"
        p(f"v_mfma_f32_32x32x16_bf16 v[{ACC}:{ACC+15}], v[{AF+4*kk}:{AF+4*kk+3}], v[{PQ+4*kk}:{PQ+4*kk+3}], {c}")
    p(f"v_mov_b32 v{t0}, v{ACC+12}")
    p(f"v_mov_b32 v{t1}, v{ACC+12}")
    p(f"v_permlane32_swap_b32 v{t0}, v{t1}")
    p(f"v_add_f32 v{t1}, {f32(1e-6)}, v{t1}")
    p(f"v_rcp_f32 v{vR}, v{t1}")
    for j in range(0, 16, 2):
        p(f"v_pk_mul_f32 v[{ACC+j}:{ACC+j+1}], v[{ACC+j}:{ACC+j+1}], v[{vR}:{vR+1}] op_sel_hi:[1,0]")
    for j in range(0, 16, 2):
        p(f"v_cvt_pk_bf16_f32 v{OB+j//2}, v{ACC+j}, v{ACC+j+1}")
    p("s_mov_b32 s12, 0")
    p("s_mov_b32 s13, -1")
    p("s_mov_b64 exec, s[12:13]")
    p(f"v_mov_b32 v{OB+6}, 0")
    p(f"v_mov_b32 v{OB+7}, 0")
    p("s_mov_b64 exec, -1")
    p("s_lshl_b32 s12, s9, 4")
    p("s_add_u32 s12, s12, s5")
    p("s_lshl_b32 s12, s12, 11")
    p(f"s_add_u32 s12, s12, {WS_OF}")
    for t in range(2):
        p(f"buffer_store_dwordx4 v[{OB+4*t}:{OB+4*t+3}], v{vL16}, s[52:55], s12 offen offset:{t*1024}")
    return name, 256, LDS, kernel_text(name, p.items, ra.hi)


def tile64_ids(p):
    p("s_and_b32 s6, s2, 7")
    p("s_lshr_b32 s5, s2, 3")
    p("s_and_b32 s7, s5, 3")
    p("s_lshl_b32 s6, s6, 2")
    p("s_add_u32 s6, s6, s7")
    p("s_lshr_b32 s5, s5, 2")


def w64_dma_voff(p, vW, t0, t1, t2):
    p(f"v_lshrrev_b32 v{t0}, 3, v1")
    p(f"v_mul_u32_u24 v{t0}, 896, v{t0}")
    p(f"v_lshrrev_b32 v{t1}, 2, v1")
    p(f"v_lshrrev_b32 v{t2}, 4, v1")
    p(f"v_xor_b32 v{t1}, v{t1}, v{t2}")
    p(f"v_and_b32 v{t1}, 1, v{t1}")
    p(f"v_lshlrev_b32 v{t1}, 6, v{t1}")
    p(f"v_and_b32 v{t2}, 3, v1")
    p(f"v_lshlrev_b32 v{t2}, 4, v{t2}")
    p(f"v_add3_u32 v{vW}, v{t0}, v{t1}, v{t2}")


def w64_tr_addr(p, vA0, vA1, t0, t1, t2, t3, sbase):
    tr_lane_consts(p, t0, t1, t2)
    p(f"v_lshl_add_u32 v{t3}, v{t2}, 2, v{t0}")
    p(f"v_lshl_add_u32 v{vA0}, v{t3}, 7, v{t1}")
    p(f"v_lshrrev_b32 v{t3}, 1, v{t0}")
    p(f"v_lshl_add_u32 v{vA0}, v{t3}, 6, v{vA0}")
    p(f"v_xor_b32 v{vA1}, 64, v{vA0}")
    p(f"v_add_u32 v{vA0}, {sbase}, v{vA0}")
    p(f"v_add_u32 v{vA1}, {sbase}, v{vA1}")


def splitk_reduce(p, ACC, RD, vL16, t0, red_base):
    p("s_lshl_b32 s12, s4, 14")
    p(f"s_add_u32 s12, s12, {red_base}")
    p(f"v_add_u32 v{t0}, s12, v{vL16}")
    for tl in range(4):
        for g in range(4):
            r = ACC + 16 * tl + 4 * g
            p(f"ds_write_b128 v{t0}, v[{r}:{r+3}] offset:{tl*4096+g*1024}")
    p.barrier()
    p("s_lshl_b32 s12, s4, 12")
    p(f"s_add_u32 s12, s12, {red_base}")
    p(f"v_add_u32 v{t0}, s12, v{vL16}")
    for w2 in range(4):
        for g in range(4):
            r = RD + 16 * w2 + 4 * g
            p(f"ds_read_b128 v[{r}:{r+3}], v{t0} offset:{w2*16384+g*1024}")
    for j in range(0, 16, 2):
        p(f"v_pk_add_f32 v[{RD+j}:{RD+j+1}], v[{RD+j}:{RD+j+1}], v[{RD+16+j}:{RD+16+j+1}]")
    for j in range(0, 16, 2):
        p(f"v_pk_add_f32 v[{RD+32+j}:{RD+32+j+1}], v[{RD+32+j}:{RD+32+j+1}], v[{RD+48+j}:{RD+48+j+1}]")
    for j in range(0, 16, 2):
        p(f"v_pk_add_f32 v[{RD+j}:{RD+j+1}], v[{RD+j}:{RD+j+1}], v[{RD+32+j}:{RD+32+j+1}]")


def gen_k2():
    name = "k2"
    p = Prog()
    L_W, L_RED = 0, 65536
    LDS = 131072
    prologue(p, name, 224)
    tile64_ids(p)
    ra = RegAlloc(2, 256)
    vL16, vW, vA0, vA1, t0, t1, t2, t3, vXo = [ra() for _ in range(9)]
    B = ra(64, 4)
    AFR = ra(32, 4)
    ACC = ra(64, 4)
    RD = ra(64, 4)
    XR = ra(8, 4)
    OB = ra(8, 4)
    p(f"v_lshlrev_b32 v{vL16}, 4, v1")
    w64_dma_voff(p, vW, t0, t1, t2)
    srd(p, 40, SX, S * D * 2)
    srd(p, 44, SWO, D * D * 2)
    srd(p, 52, SWS, WS_SIZE)
    p("s_lshl_b32 s11, s4, 14")
    p(f"s_mul_i32 s14, s4, {112*896}")
    p("s_lshl_b32 s12, s5, 7")
    p("s_add_u32 s14, s14, s12")
    p("s_lshl_b32 s15, s6, 16")
    p("s_lshl_b32 s12, s4, 13")
    p("s_add_u32 s15, s15, s12")
    p(f"s_add_u32 s15, s15, {WS_OF}")
    p("s_add_u32 s10, s15, 32768")
    p("s_add_u32 s8, s15, 4096")
    p("s_add_u32 s9, s10, 4096")

    def ldB(k):
        for nt in range(2):
            r = B + 8 * k + 4 * nt
            sb = [["s15", "s8"], ["s10", "s9"]][nt][k >> 2]
            p(f"buffer_load_dwordx4 v[{r}:{r+3}], v{vL16}, s[52:55], {sb} offen offset:{(k&3)*1024}")

    nd = 0
    for k in range(8):
        need = (28 * (k >> 1) + 16 * (k & 1) + 16 + 7) // 8
        while nd < need:
            p(f"s_add_u32 s12, s14, {nd*8*896}")
            p(f"s_add_u32 s13, s11, {nd*1024}")
            dma(p, vW, 44, "s12", "s13", tag=f"w{k}")
            nd += 1
        ldB(k)
    p(f"v_and_b32 v{t0}, 31, v1")
    p(f"v_mul_u32_u24 v{t0}, 896, v{t0}")
    p(f"v_lshrrev_b32 v{t1}, 5, v1")
    p(f"v_lshl_add_u32 v{vXo}, v{t1}, 3, v{t0}")
    p("s_lshr_b32 s12, s4, 1")
    p("s_lshl_b32 s13, s6, 1")
    p("s_add_u32 s7, s12, s13")
    p(f"s_mul_i32 s12, s7, {32*896}")
    p("s_and_b32 s13, s4, 1")
    p("s_lshl_b32 s3, s5, 1")
    p("s_add_u32 s3, s3, s13")
    p("s_lshl_b32 s13, s3, 6")
    p("s_add_u32 s12, s12, s13")
    for g in range(4):
        p(f"buffer_load_dwordx2 v[{XR+2*g}:{XR+2*g+1}], v{vXo}, s[40:43], s12 offen offset:{16*g}")
    w64_tr_addr(p, vA0, vA1, t0, t1, t2, t3, "s11")
    for k in range(8):
        p.wait_vm(f"w{k}")
        row0 = 28 * (k >> 1) + 16 * (k & 1)
        a = AFR + 8 * (k & 3)
        for mt in range(2):
            for u in range(2):
                p(f"ds_read_b64_tr_b16 v[{a+4*mt+2*u}:{a+4*mt+2*u+1}], v{[vA0, vA1][mt]} offset:{(row0+8*u)*128}")
        for nt in range(2):
            for mt in range(2):
                acc = ACC + 16 * (mt + 2 * nt)
                c = "0" if k == 0 else f"v[{acc}:{acc+15}]"
                b = B + 8 * k + 4 * nt
                p(f"v_mfma_f32_32x32x16_bf16 v[{acc}:{acc+15}], v[{a+4*mt}:{a+4*mt+3}], v[{b}:{b+3}], {c}")
    splitk_reduce(p, ACC, RD, vL16, t0, L_RED)
    for j in range(8):
        p(f"v_lshlrev_b32 v{t0}, 16, v{XR+j}")
        p(f"v_and_b32 v{t1}, 0xffff0000, v{XR+j}")
        p(f"v_add_f32 v{RD+2*j}, v{RD+2*j}, v{t0}")
        p(f"v_add_f32 v{RD+2*j+1}, v{RD+2*j+1}, v{t1}")
        p(f"v_cvt_pk_bf16_f32 v{OB+j}, v{RD+2*j}, v{RD+2*j+1}")
    p(f"s_mul_i32 s12, s7, {28*1024}")
    p("s_lshl_b32 s13, s3, 11")
    p("s_add_u32 s12, s12, s13")
    p(f"s_add_u32 s12, s12, {WS_HF}")
    for t in range(2):
        p(f"buffer_store_dwordx4 v[{OB+4*t}:{OB+4*t+3}], v{vL16}, s[52:55], s12 offen offset:{t*1024}")
    return name, 224, LDS, kernel_text(name, p.items, ra.hi)


def gen_k3():
    name = "k3"
    p = Prog()
    L_W, L_MISC = 0, 114688
    LDS = 114688 + 1024
    prologue(p, name, 224)
    p("s_and_b32 s5, s2, 7")
    p("s_lshr_b32 s6, s2, 3")
    p("s_and_b32 s7, s6, 1")
    p("s_lshl_b32 s5, s5, 1")
    p("s_add_u32 s7, s7, s5")
    p("s_lshr_b32 s5, s6, 1")
    p("s_mov_b32 s6, s7")
    p("s_lshl_b32 s9, s6, 2")
    p("s_add_u32 s9, s9, s4")
    ra = RegAlloc(2, 256)
    vL16, vW, t0, t1, t2, t3, vOnes, vS, vQ, vC, vB1, vAw = [ra() for _ in range(12)]
    vA = [ra() for _ in range(4)]
    vA2 = [ra() for _ in range(4)]
    vSs, vNms = ra(2, 2), ra(2, 2)
    X = ra(112, 4)
    ACC = ra(64, 4)
    AFR = ra(32, 4)
    CW = ra(8, 4)
    p(f"v_lshlrev_b32 v{vL16}, 4, v1")
    p(f"v_lshrrev_b32 v{t0}, 4, v1")
    p(f"v_bfe_u32 v{t1}, v1, 2, 2")
    p(f"v_xor_b32 v{t1}, v{t1}, v{t0}")
    p(f"v_mul_u32_u24 v{t0}, 3584, v{t0}")
    p(f"v_lshl_add_u32 v{t0}, v{t1}, 6, v{t0}")
    p(f"v_and_b32 v{t1}, 3, v1")
    p(f"v_lshl_add_u32 v{vW}, v{t1}, 4, v{t0}")
    srd(p, 44, SW1, D * F * 2)
    srd(p, 48, SB1, F * 2)
    srd(p, 52, SWS, WS_SIZE)
    p(f"s_mul_i32 s14, s4, {16*3584}")
    p("s_lshl_b32 s12, s5, 8")
    p("s_add_u32 s14, s14, s12")
    p("s_lshl_b32 s15, s4, 12")
    p(f"s_mul_i32 s10, s9, {28*1024}")
    p(f"s_add_u32 s10, s10, {WS_HF}")
    for c in range(7):
        for j in range(4):
            p(f"s_add_u32 s12, s14, {(64*c+4*j)*3584}")
            p(f"s_add_u32 s13, s15, {c*16384+j*1024}")
            dma(p, vW, 44, "s12", "s13", tag=f"w{c}")
        p(f"s_add_u32 s12, s10, {c*4096}")
        for s in range(4):
            r = X + 4 * (4 * c + s)
            p(f"buffer_load_dwordx4 v[{r}:{r+3}], v{vL16}, s[52:55], s12 offen offset:{s*1024}")
    p(f"v_and_b32 v{t0}, 31, v1")
    p(f"v_lshlrev_b32 v{t0}, 1, v{t0}")
    p("s_lshl_b32 s12, s5, 8")
    p("s_lshl_b32 s13, s4, 6")
    p("s_add_u32 s12, s12, s13")
    p(f"buffer_load_ushort v{vB1}, v{t0}, s[48:51], s12 offen")
    tr_lane_consts(p, t0, t1, t2)
    p(f"v_lshl_add_u32 v{t3}, v{t2}, 2, v{t0}")
    p(f"v_lshl_add_u32 v{t3}, v{t3}, 8, v{t1}")
    for T in range(4):
        p(f"v_xor_b32 v{t2}, {T}, v{t0}")
        p(f"v_lshl_add_u32 v{vA[T]}, v{t2}, 6, v{t3}")
        p(f"v_add_u32 v{vA2[T]}, 65536, v{vA[T]}")
    p(f"v_xor_b32 v{t2}, s4, v{t0}")
    p(f"v_lshl_add_u32 v{vAw}, v{t2}, 6, v{t3}")
    p(f"v_mov_b32 v{vOnes}, 0x3f803f80")
    for r in (vS, vQ, vC):
        p(f"v_mov_b32 v{r}, 0")

    def trd(dst, T, ks, u, own=False):
        off = (16 * ks + 8 * u) * 256
        if own:
            p(f"ds_read_b64_tr_b16 v[{dst}:{dst+1}], v{vAw} offset:{off & 0xffff}")
        elif off < 65536:
            p(f"ds_read_b64_tr_b16 v[{dst}:{dst+1}], v{vA[T]} offset:{off}")
        else:
            p(f"ds_read_b64_tr_b16 v[{dst}:{dst+1}], v{vA2[T]} offset:{off-65536}")

    for c in range(7):
        p.wait_vm(f"w{c}")
        p("s_barrier")
        if c == 4:
            p(f"v_add_u32 v{vAw}, 65536, v{vAw}")
        for s in range(4):
            ks = 4 * c + s
            a = AFR + 16 * (s & 1)
            cw = CW + 4 * (s & 1)
            for T in range(4):
                for u in range(2):
                    trd(a + 4 * T + 2 * u, T, ks, u)
            for u in range(2):
                trd(cw + 2 * u, 0, ks, u, own=True)
            xr = X + 4 * ks
            for T in range(4):
                acc = ACC + 16 * T
                cc = "0" if ks == 0 else f"v[{acc}:{acc+15}]"
                p(f"v_mfma_f32_32x32x16_bf16 v[{acc}:{acc+15}], v[{a+4*T}:{a+4*T+3}], v[{xr}:{xr+3}], {cc}")
                p(f"v_dot2c_f32_bf16 v{vS}, v{xr+T}, v{vOnes}")
                p(f"v_dot2c_f32_bf16 v{vQ}, v{xr+T}, v{xr+T}")
            for j in range(4):
                p(f"v_dot2c_f32_bf16 v{vC}, v{cw+j}, v{vOnes}")
    xhalf(p, "v_add_f32", vS, t0)
    xhalf(p, "v_add_f32", vQ, t0)
    xhalf(p, "v_add_f32", vC, t0)
    p(f"v_and_b32 v{t0}, 31, v1")
    p("s_lshl_b32 s12, s4, 7")
    p(f"s_add_u32 s12, s12, {L_MISC}")
    p(f"v_lshl_add_u32 v{t0}, v{t0}, 2, s12")
    p(f"v_lshlrev_b32 v{vB1}, 16, v{vB1}")
    p(f"ds_write_b32 v{t0}, v{vC}")
    p(f"ds_write_b32 v{t0}, v{vB1} offset:512")
    p(f"v_mul_f32 v{t1}, {f32(-1.0/D)}, v{vS}")
    p(f"v_mul_f32 v{t2}, {f32(1.0/D)}, v{vQ}")
    p(f"v_fma_f32 v{t2}, -v{t1}, v{t1}, v{t2}")
    p(f"v_max_f32 v{t2}, 0, v{t2}")
    p(f"v_add_f32 v{t3}, {f32(1e-5)}, v{t2}")
    p(f"v_mov_b32 v{vSs}, {f32(1e-5)}")
    p(f"v_fma_f32 v{t2}, v{t3}, v{vSs}, v{t2}")
    p(f"v_rsq_f32 v{vSs}, v{t2}")
    p(f"v_mul_f32 v{vNms}, v{t1}, v{vSs}")
    p.barrier()
    p(f"v_lshrrev_b32 v{t0}, 5, v1")
    p(f"v_lshlrev_b32 v{t0}, 4, v{t0}")
    p(f"v_add_u32 v{t0}, {L_MISC}, v{t0}")
    K0 = math.sqrt(2.0 / math.pi)
    c1 = -2.0 * K0 * LOG2E
    c2 = c1 * 0.044715
    vC1, vC2, vOne = X, X + 2, X + 4
    p(f"v_mov_b32 v{vC1}, {f32(c1)}")
    p(f"v_mov_b32 v{vC2}, {f32(c2)}")
    p(f"v_mov_b32 v{vOne}, 1.0")
    CSr, B1r, G, OB = X + 8, X + 24, X + 40, X + 56
    p(f"s_mul_i32 s12, s9, {112*1024}")
    p("s_lshl_b32 s13, s5, 13")
    p("s_add_u32 s12, s12, s13")
    p(f"s_add_u32 s12, s12, {WS_H1F}")
    for T in range(4):
        acc = ACC + 16 * T
        ob = OB + 8 * T
        for g in range(4):
            p(f"ds_read_b128 v[{CSr+4*g}:{CSr+4*g+3}], v{t0} offset:{T*128+32*g}")
            p(f"ds_read_b128 v[{B1r+4*g}:{B1r+4*g+3}], v{t0} offset:{512+T*128+32*g}")
        pr = lambda r, j: f"v[{r+j}:{r+j+1}]"
        for j in range(0, 16, 2):
            p(f"v_pk_fma_f32 {pr(B1r,j)}, {pr(CSr,j)}, {pr(vNms,0)}, {pr(B1r,j)} op_sel_hi:[1,0,1]")
        for j in range(0, 16, 2):
            p(f"v_pk_fma_f32 {pr(acc,j)}, {pr(acc,j)}, {pr(vSs,0)}, {pr(B1r,j)} op_sel_hi:[1,0,1]")
        for j in range(0, 16, 2):
            p(f"v_pk_mul_f32 {pr(G,j)}, {pr(acc,j)}, {pr(acc,j)}")
        for j in range(0, 16, 2):
            p(f"v_pk_fma_f32 {pr(G,j)}, {pr(G,j)}, {pr(vC2,0)}, {pr(vC1,0)} op_sel_hi:[1,0,0]")
        for j in range(0, 16, 2):
            p(f"v_pk_mul_f32 {pr(G,j)}, {pr(G,j)}, {pr(acc,j)}")
        for j in range(16):
            p(f"v_exp_f32 v{G+j}, v{G+j}")
        for j in range(0, 16, 2):
            p(f"v_pk_add_f32 {pr(G,j)}, {pr(G,j)}, {pr(vOne,0)} op_sel_hi:[1,0]")
        for j in range(16):
            p(f"v_rcp_f32 v{G+j}, v{G+j}")
        for j in range(0, 16, 2):
            p(f"v_pk_mul_f32 {pr(G,j)}, {pr(G,j)}, {pr(acc,j)}")
        for j in range(0, 16, 2):
            p(f"v_cvt_pk_bf16_f32 v{ob+j//2}, v{G+j}, v{G+j+1}")
        if T == 2:
            p("s_add_u32 s12, s12, 4096")
        for t in range(2):
            p(f"buffer_store_dwordx4 v[{ob+4*t}:{ob+4*t+3}], v{vL16}, s[52:55], s12 offen offset:{((2*T+t)&3)*1024}")
    return name, 224, LDS, kernel_text(name, p.items, ra.hi)


def gen_k4():
    name = "k4"
    p = Prog()
    NSLOT = 20
    LDS = 163840
    prologue(p, name, 224)
    tile64_ids(p)
    ra = RegAlloc(2, 256)
    vL16, vW, vA0, vA1, t0, t1, t2, t3, vOo = [ra() for _ in range(9)]
    NB = 14
    B = ra(8 * NB, 4)
    AFR = ra(32, 4)
    ACC = ra(64, 4)
    HR = ra(8, 4)
    B2 = ra(8, 4)
    OB = ra(8, 4)
    RD = B
    p(f"v_lshlrev_b32 v{vL16}, 4, v1")
    w64_dma_voff(p, vW, t0, t1, t2)
    srd(p, 40, SOUT, S * D * 2)
    srd(p, 44, SW2, F * D * 2)
    srd(p, 48, SB2, D * 2)
    srd(p, 52, SWS, WS_SIZE)
    p(f"s_mul_i32 s11, s4, {NSLOT*2048}")
    p(f"s_mul_i32 s14, s4, {448*896}")
    p("s_lshl_b32 s12, s5, 7")
    p("s_add_u32 s14, s14, s12")
    p(f"s_mul_i32 s15, s6, {2*112*1024}")
    p(f"s_mul_i32 s12, s4, {28*1024}")
    p("s_add_u32 s15, s15, s12")
    p(f"s_add_u32 s15, s15, {WS_H1F}")

    def ldW(k):
        for j in range(2):
            p(f"s_add_u32 s12, s14, {(16*k+8*j)*896}")
            p(f"s_add_u32 s13, s11, {(k % NSLOT)*2048+j*1024}")
            dma(p, vW, 44, "s12", "s13", tag=f"w{k}")

    def ldB(k):
        for nt in range(2):
            r = B + 8 * (k % NB) + 4 * nt
            p(f"s_add_u32 s12, s15, {nt*112*1024 + k*1024}")
            p(f"buffer_load_dwordx4 v[{r}:{r+3}], v{vL16}, s[52:55], s12 offen")

    for k in range(NB):
        ldW(k)
        ldB(k)
    p("s_lshr_b32 s12, s4, 1")
    p("s_lshl_b32 s13, s6, 1")
    p("s_add_u32 s7, s12, s13")
    p("s_and_b32 s13, s4, 1")
    p("s_lshl_b32 s3, s5, 1")
    p("s_add_u32 s3, s3, s13")
    w64_tr_addr(p, vA0, vA1, t0, t1, t2, t3, "s11")
    for k in range(28):
        p.wait_vm(f"w{k}")
        a = AFR + 8 * (k & 3)
        for mt in range(2):
            for u in range(2):
                p(f"ds_read_b64_tr_b16 v[{a+4*mt+2*u}:{a+4*mt+2*u+1}], v{[vA0, vA1][mt]} offset:{(k % NSLOT)*2048+u*1024}")
        for nt in range(2):
            for mt in range(2):
                acc = ACC + 16 * (mt + 2 * nt)
                c = "0" if k == 0 else f"v[{acc}:{acc+15}]"
                b = B + 8 * (k % NB) + 4 * nt
                p(f"v_mfma_f32_32x32x16_bf16 v[{acc}:{acc+15}], v[{a+4*mt}:{a+4*mt+3}], v[{b}:{b+3}], {c}")
        if k + NB < 28:
            ldW(k + NB)
            ldB(k + NB)
        if k == 14:
            p(f"s_mul_i32 s12, s7, {28*1024}")
            p("s_lshl_b32 s13, s3, 11")
            p("s_add_u32 s12, s12, s13")
            p(f"s_add_u32 s12, s12, {WS_HF}")
            for t in range(2):
                p(f"buffer_load_dwordx4 v[{HR+4*t}:{HR+4*t+3}], v{vL16}, s[52:55], s12 offen offset:{t*1024}")
            p(f"v_lshrrev_b32 v{t0}, 5, v1")
            p(f"v_lshlrev_b32 v{t0}, 3, v{t0}")
            p("s_lshl_b32 s12, s3, 6")
            for g in range(4):
                p(f"buffer_load_dwordx2 v[{B2+2*g}:{B2+2*g+1}], v{t0}, s[48:51], s12 offen offset:{16*g}")
    p.barrier()
    splitk_reduce(p, ACC, RD, vL16, t0, 0)
    for j in range(8):
        p(f"v_lshlrev_b32 v{t0}, 16, v{HR+j}")
        p(f"v_and_b32 v{t1}, 0xffff0000, v{HR+j}")
        p(f"v_lshlrev_b32 v{t2}, 16, v{B2+j}")
        p(f"v_and_b32 v{t3}, 0xffff0000, v{B2+j}")
        p(f"v_add_f32 v{t0}, v{t0}, v{t2}")
        p(f"v_add_f32 v{t1}, v{t1}, v{t3}")
        p(f"v_add_f32 v{RD+2*j}, v{RD+2*j}, v{t0}")
        p(f"v_add_f32 v{RD+2*j+1}, v{RD+2*j+1}, v{t1}")
        p(f"v_cvt_pk_bf16_f32 v{OB+j}, v{RD+2*j}, v{RD+2*j+1}")
    for q in range(2):
        p(f"v_permlane32_swap_b32 v{OB+4*q}, v{OB+4*q+2}")
        p(f"v_permlane32_swap_b32 v{OB+4*q+1}, v{OB+4*q+3}")
    p(f"v_and_b32 v{t0}, 31, v1")
    p(f"v_mul_u32_u24 v{t0}, 896, v{t0}")
    p(f"v_lshrrev_b32 v{t1}, 5, v1")
    p(f"v_lshl_add_u32 v{vOo}, v{t1}, 4, v{t0}")
    p(f"s_mul_i32 s12, s7, {32*896}")
    p("s_lshl_b32 s13, s3, 6")
    p("s_add_u32 s12, s12, s13")
    for q in range(2):
        p(f"buffer_store_dwordx4 v[{OB+4*q}:{OB+4*q+3}], v{vOo}, s[40:43], s12 offen offset:{32*q}")
    return name, 224, LDS, kernel_text(name, p.items, ra.hi)


def main(out):
    ks = [gen_k1(), gen_k15(), gen_k2(), gen_k3(), gen_k4()]
    hdr = open("cdna_kernels/" + NAME + ".s.ref").read().split("; Override launch")[0]
    txt = hdr
    for name, grid, lds, _ in ks:
        txt += f"; @launch kernel={name}_kernel grid=({grid},1,1) block=(256,1,1) lds={lds}\n"
    txt += '.amdgcn_target "amdgcn-amd-amdhsa--gfx950"\n.text\n'
    for _, _, _, (body, kd) in ks:
        txt += body + "\n"
    txt += '.section .rodata,"a"\n'
    for _, _, _, (body, kd) in ks:
        txt += ".p2align 6\n" + kd + "\n"
    open(out, "w").write(txt)


if __name__ == "__main__":
    main(sys.argv[1] if len(sys.argv) > 1 else "v1.s")
```

```python
import re

TRANS = ("v_exp_f32", "v_log_f32", "v_rcp_f32", "v_rsq_f32", "v_sqrt_f32", "v_sin_f32", "v_cos_f32")

_reg_re = re.compile(r"^(-?)(?:abs\()?([vsa])(?:(\d+)|\[(\d+):(\d+)\])\)?$")


def regs_of(tok):
    tok = tok.strip()
    if tok in ("vcc", "exec", "m0", "scc"):
        return [(tok, 0)]
    if tok in ("vcc_lo", "vcc_hi"):
        return [("vcc", 0)]
    if tok in ("exec_lo", "exec_hi"):
        return [("exec", 0)]
    m = _reg_re.match(tok)
    if not m:
        return []
    k = m.group(2)
    if m.group(3) is not None:
        return [(k, int(m.group(3)))]
    return [(k, i) for i in range(int(m.group(4)), int(m.group(5)) + 1)]


def split_ops(s):
    out, depth, cur = [], 0, ""
    for ch in s:
        if ch in "[(":
            depth += 1
        if ch in "])":
            depth -= 1
        if ch == "," and depth == 0:
            out.append(cur.strip())
            cur = ""
        else:
            cur += ch
    if cur.strip():
        out.append(cur.strip())
    return out


class Ins:
    __slots__ = ("text", "op", "dst", "src", "kind", "srcC", "srcAB", "tag", "passes", "data", "lds_dma", "extra")

    def __init__(self, text, tag=None):
        self.text = text
        self.tag = tag
        self.extra = None
        t = text.split(";")[0].strip()
        parts = t.split(None, 1)
        self.op = op = parts[0]
        rest = parts[1] if len(parts) > 1 else ""
        ops = split_ops(rest)
        mods = ""
        if ops:
            last = ops[-1].split()
            ops[-1] = last[0]
            mods = " ".join(last[1:])
        self.dst, self.src = [], []
        self.srcC, self.srcAB, self.data = [], [], []
        self.passes = 0
        self.lds_dma = False
        R = [regs_of(o) for o in ops]
        if op.endswith(":") or op.startswith("."):
            self.kind = "label"
        elif op.startswith("v_mfma"):
            self.kind = "mfma"
            self.dst = R[0]
            self.srcAB = R[1] + R[2]
            self.srcC = R[3]
            self.src = self.srcAB + self.srcC
            self.passes = 8 if "32x32" in op else 4
        elif op.startswith("v_"):
            self.kind = "valu"
            if op.startswith("v_cmp"):
                self.dst = R[0]
                self.src = sum(R[1:], [])
            elif op.startswith("v_permlane") and "swap" in op:
                self.dst = R[0] + R[1]
                self.src = R[0] + R[1]
            elif op in ("v_add_co_u32", "v_addc_co_u32", "v_sub_co_u32", "v_subb_co_u32"):
                self.dst = R[0] + R[1]
                self.src = sum(R[2:], [])
            else:
                self.dst = R[0]
                self.src = sum(R[1:], [])
                if op.startswith(("v_fmac", "v_dot2c", "v_pk_fmac")) or (op.startswith("v_mov_b32") and "dpp" in op):
                    self.src += R[0]
                if op.startswith("v_cndmask") and len(R) == 3:
                    self.src += [("vcc", 0)]
        elif op.startswith(("buffer_", "global_")):
            self.kind = "vmem"
            allmods = (" " + mods + " ")
            is_lds = " lds " in allmods or "_lds_" in op
            if op.startswith("buffer_"):
                if op in ("buffer_wbl2", "buffer_inv"):
                    pass
                elif is_lds:
                    self.lds_dma = True
                    self.src = sum(R, []) + [("m0", 0)]
                elif "load" in op:
                    self.dst = R[0]
                    self.src = sum(R[1:], [])
                    if "d16" in op:
                        self.src += R[0]
                elif "atomic" in op:
                    self.data = R[0]
                    self.src = sum(R, [])
                    if " sc0 " in allmods:
                        self.dst = R[0][: max(1, len(R[0]) // (2 if "cmpswap" in op else 1))]
                else:
                    self.data = R[0]
                    self.src = sum(R, [])
            else:
                if is_lds:
                    self.lds_dma = True
                    self.src = sum(R, []) + [("m0", 0)]
                elif "load" in op:
                    self.dst = R[0]
                    self.src = sum(R[1:], [])
                elif "atomic" in op:
                    if " sc0 " in allmods:
                        self.dst = R[0]
                        self.src = sum(R[1:], [])
                        self.data = R[2]
                    else:
                        self.src = sum(R, [])
                        self.data = R[1]
                else:
                    self.data = R[1]
                    self.src = sum(R, [])
        elif op.startswith("ds_"):
            self.kind = "ds"
            if "read" in op or "permute" in op or "swizzle" in op:
                self.dst = R[0]
                self.src = sum(R[1:], [])
            else:
                self.src = sum(R, [])
        elif op.startswith(("s_load", "s_buffer_load", "s_memtime", "s_memrealtime")):
            self.kind = "smem"
            self.dst = R[0]
            self.src = sum(R[1:], [])
        elif op in ("s_waitcnt", "s_nop", "s_barrier", "s_endpgm", "s_sleep", "s_setprio", "s_branch") or op.startswith("s_cbranch"):
            self.kind = "ctl"
        elif op.startswith("s_"):
            self.kind = "salu"
            if op.startswith("s_cmp"):
                self.src = sum(R, [])
            else:
                self.dst = R[0]
                self.src = sum(R[1:], [])
                if "saveexec" in op:
                    self.dst = self.dst + [("exec", 0)]
        else:
            raise ValueError("unknown instruction: " + text)


class Wait:
    def __init__(self, what, tag=None):
        self.what = what
        self.tag = tag


class Raw:
    def __init__(self, text, uses=(), defs=()):
        self.text = text
        self.uses = [r for t in uses for r in regs_of(t)]
        self.defs = [r for t in defs for r in regs_of(t)]


class Prog:
    def __init__(self):
        self.items = []

    def raw(self, text, uses=(), defs=()):
        self.items.append(Raw(text, uses, defs))

    def __call__(self, text, tag=None):
        for line in text.strip().split("\n"):
            line = line.strip()
            if line and not line.startswith(";"):
                self.items.append(Ins(line, tag))

    def add(self, items):
        self.items.extend(items)

    def wait_vm(self, tag):
        self.items.append(Wait("vmtag", tag))

    def wait_vm0(self):
        self.items.append(Wait("vm0"))

    def wait_lgkm0(self):
        self.items.append(Wait("lgkm0"))

    def barrier(self, lgkm=True):
        if lgkm:
            self.wait_lgkm0()
        self("s_barrier")

    def sub(self):
        return Prog()


def merge(main, fill, per=None, start=0):
    idx = [i for i, it in enumerate(main) if isinstance(it, Ins) and it.kind == "mfma"]
    idx = idx[start:]
    out = []
    n = len(idx)
    if n == 0:
        return list(main) + list(fill)
    pos = 0
    total = len(fill)
    slot = 0
    idxset = {i: k for k, i in enumerate(idx)}
    for i, it in enumerate(main):
        out.append(it)
        if i in idxset:
            k = idxset[i] + 1
            want = (total * k + n - 1) // n if per is None else min(total, per * k)
            while pos < want:
                out.append(fill[pos])
                pos += 1
    out.extend(fill[pos:])
    return out


def finalize(items, name="", check_uninit=False):
    out = []
    vm_issued = 0
    vm_done = 0
    lg_issued = 0
    lg_done = 0
    smem_pending = False
    pend_vm = {}
    pend_lg = {}
    pend_smem = set()
    tag_vm = {}
    hist = []
    pos = 0

    def emit(ins):
        nonlocal pos
        out.append(ins)
        if ins.kind == "label":
            return
        hist.append((ins, pos))
        if ins.op == "s_nop":
            pos += int(ins.text.split()[1], 0) + 1
        else:
            pos += 1
        if len(hist) > 40:
            del hist[0]

    def do_wait(vm=None, lg=None):
        nonlocal vm_done, lg_done, smem_pending
        parts = []
        if vm is not None:
            n = vm_issued - vm
            if vm > vm_done:
                if n <= 63:
                    parts.append(f"vmcnt({n})")
                vm_done = vm
        if lg is not None:
            if smem_pending:
                parts.append("lgkmcnt(0)")
                lg_done = lg_issued
                smem_pending = False
                pend_smem.clear()
            elif lg > lg_done:
                n = lg_issued - lg
                if n <= 15:
                    parts.append(f"lgkmcnt({n})")
                lg_done = lg
        if parts:
            emit(Ins("s_waitcnt " + " ".join(parts)))

    for it in items:
        if isinstance(it, Raw):
            nv = max([pend_vm[r] for r in it.uses + it.defs if r in pend_vm] + [0])
            nl = max([pend_lg[r] for r in it.uses + it.defs if r in pend_lg] + [0])
            if any(r in pend_smem for r in it.uses + it.defs) and smem_pending:
                nl = max(nl, lg_issued, 1)
            do_wait(vm=nv if nv > vm_done else None, lg=nl if (nl > lg_done or (nl and smem_pending)) else None)
            emit(Ins("s_nop 4"))
            for line in it.text.strip().split("\n"):
                line = line.strip()
                if line and not line.startswith(";"):
                    emit(Ins(line))
            emit(Ins("s_nop 4"))
            continue
        if isinstance(it, Wait):
            if it.what == "vmtag":
                assert it.tag in tag_vm, f"unknown vm tag {it.tag}"
                do_wait(vm=tag_vm[it.tag])
            elif it.what == "vm0":
                do_wait(vm=vm_issued)
            elif it.what == "lgkm0":
                if smem_pending or lg_issued > lg_done:
                    do_wait(lg=lg_issued)
            continue
        ins = it
        if ins.kind == "label" or (ins.kind == "ctl" and (ins.op.startswith("s_cbranch") or ins.op == "s_branch")):
            emit(ins)
            continue
        if ins.op == "s_waitcnt":
            m = re.search(r"vmcnt\((\d+)\)", ins.text)
            if m:
                vm_done = max(vm_done, vm_issued - int(m.group(1)))
            m = re.search(r"lgkmcnt\((\d+)\)", ins.text)
            if m:
                n = int(m.group(1))
                if n == 0:
                    lg_done = lg_issued
                    smem_pending = False
                    pend_smem.clear()
                elif not smem_pending:
                    lg_done = max(lg_done, lg_issued - n)
            emit(ins)
            continue
        need_vm, need_lg = 0, 0
        touch = list(ins.src) + list(ins.dst)
        srcset = set(ins.src)
        for r in touch:
            if r in pend_vm and pend_vm[r] > vm_done and not (ins.kind == "vmem" and r not in srcset):
                need_vm = max(need_vm, pend_vm[r])
            if r in pend_lg and pend_lg[r] > lg_done and not (ins.kind == "ds" and r not in srcset):
                need_lg = max(need_lg, pend_lg[r])
            if r in pend_smem and smem_pending:
                need_lg = max(need_lg, lg_issued, 1)
        if need_vm or need_lg:
            do_wait(vm=need_vm or None, lg=need_lg or None)
        need = 0
        srcs, dsts = set(ins.src), set(ins.dst)
        for (p, ppos) in hist:
            dist = pos - ppos - 1
            if p.op == "s_nop":
                continue
            req = 0
            pd = set(p.dst)
            if p.kind == "valu":
                isdot = p.op.startswith("v_dot")
                if ins.kind == "mfma" and pd & srcs:
                    req = max(req, 3 if isdot else 2)
                if ins.kind == "valu":
                    if p.op.startswith(TRANS) and not ins.op.startswith(TRANS) and pd & srcs:
                        req = max(req, 1)
                    if ins.op.startswith("v_permlane") and pd & srcs:
                        req = max(req, 2)
                    if "dpp" in ins.text and pd & srcs:
                        req = max(req, 2)
                    if ins.op.startswith(("v_readfirstlane", "v_readlane")) and pd & srcs:
                        req = max(req, 1)
                    sg = {r for r in pd if r[0] in ("s", "vcc")}
                    if sg & srcs:
                        req = max(req, 4 if ins.op.startswith(("v_readlane", "v_writelane")) else 2)
                    if isdot and pd & (srcs | dsts):
                        same = ins.op == p.op
                        if same:
                            ab = set(ins.src[:-1]) if ins.op.startswith("v_dot2c") else set(ins.src[:2])
                            if pd & ab:
                                req = max(req, 3)
                        else:
                            req = max(req, 3)
                if ins.kind in ("vmem", "ds") and isdot and pd & srcs:
                    req = max(req, 3)
                if ins.kind == "vmem":
                    sg = {r for r in pd if r[0] in ("s", "vcc")}
                    if sg & srcs:
                        req = max(req, 5)
                if ("exec", 0) in pd:
                    req = max(req, 5)
            elif p.kind == "mfma":
                big = p.passes == 8
                if ins.kind == "mfma":
                    c = set(ins.srcC)
                    if pd & c and not (list(p.dst) == list(ins.srcC) and p.passes == ins.passes):
                        req = max(req, 10 if big else 6)
                    if pd & set(ins.srcAB):
                        req = max(req, 12 if big else 8)
                    if pd & dsts and not (list(p.dst) == list(ins.srcC)):
                        req = max(req, 12 if big else 8)
                elif ins.kind in ("valu", "vmem", "ds"):
                    if pd & (srcs | dsts):
                        req = max(req, 12 if big else 8)
                    if set(p.srcC) & dsts:
                        req = max(req, 7 if big else 3)
            elif p.kind == "salu":
                if ("m0", 0) in pd and ins.kind == "vmem" and ins.lds_dma:
                    req = max(req, 1)
            elif p.kind == "vmem":
                if len(p.data) >= 3 and set(p.data) & dsts:
                    req = max(req, 2)
            if req > dist:
                need = max(need, req - dist)
        while need > 0:
            n = min(need, 16)
            emit(Ins(f"s_nop {n - 1}"))
            need -= n
        emit(ins)
        if ins.kind == "vmem":
            vm_issued += 1
            for r in ins.dst:
                pend_vm[r] = vm_issued
            if ins.tag is not None:
                tag_vm[ins.tag] = vm_issued
        elif ins.kind == "ds":
            lg_issued += 1
            for r in ins.dst:
                pend_lg[r] = lg_issued
        elif ins.kind == "smem":
            lg_issued += 1
            smem_pending = True
            for r in ins.dst:
                pend_smem.add(r)
    return [("" if i.kind == "label" else "    ") + i.text for i in out]


def vr(n, c=1):
    return f"v{n}" if c == 1 else f"v[{n}:{n + c - 1}]"


def ar(n, c=1):
    return f"a{n}" if c == 1 else f"a[{n}:{n + c - 1}]"


def sr(n, c=1):
    return f"s{n}" if c == 1 else f"s[{n}:{n + c - 1}]"


class RegAlloc:
    def __init__(self, start, limit):
        self.next = start
        self.limit = limit
        self.hi = start

    def __call__(self, n=1, align=None):
        if align is None:
            align = 1 if n == 1 else (2 if n == 2 else 4)
        self.next = (self.next + align - 1) // align * align
        r = self.next
        self.next += n
        assert self.next <= self.limit, f"out of registers: {self.next} > {self.limit}"
        self.hi = max(self.hi, self.next)
        return r

    def mark(self):
        return self.next

    def release(self, m):
        self.next = m
```

```python
import sys, math, struct
from dsl import *

NAME = "sequential_preLN__linear_kernel_hedgehog__mixer_channel_mlp__prompt"
S, D, H, DH, F = 2048, 448, 16, 28, 1792

WS_KVP = 0
WS_OF = 2 << 20
WS_HF = 4 << 20
WS_ST = 6 << 20
WS_FLAG = 7 << 20
WS_H1F = 8 << 20
WS_TS = 32 << 20
WS_SIZE = 256 << 20

LOG2E = 1.4426950408889634
DIAG = False
OPT = {}


def f32(x):
    return "0x%08x" % struct.unpack("<I", struct.pack("<f", x))[0]


SX, SWQKV, SWPHI, SWO, SBX, SW1, SB1, SW2, SB2, SOUT, SDBG, SWS = [16 + 2 * i for i in range(12)]
RX, RWQKV, RWPHI, RWS, RWO, RW1, RW2, RB1, RB2, ROUT, RDBG = 40, 44, 48, 52, 56, 60, 64, 68, 72, 76, 80
sW = 4
sH, sRB, sRT = 5, 6, 7
sCT, sRB64 = 8, 9
sFT, sRB3 = 10, 11
sA, sB, sC, sD = 12, 13, 14, 15
sI = 3
sXrow, sHcol, sXR, sRTf, sTf, sRT3, sE, sFq, sG = 16, 17, 18, 19, 20, 21, 22, 23, 24

L_R0, L_R1, L_R2, L_WPHI, L_MISC = 0, 57344, 86016, 151552, 155648
LDS_BYTES = 163840
W1_BASE = [0, 16384, 32768, 49152, 65536, L_R2 + 49152, L_R2]


def R(r):
    return f"s[{r}:{r+3}]"


def srd(p, d, src, nbytes):
    p(f"s_mov_b32 s{d}, s{src}")
    p(f"s_mov_b32 s{d+1}, s{src+1}")
    p(f"s_mov_b32 s{d+2}, {nbytes}")
    p(f"s_mov_b32 s{d+3}, 0x00020000")


NST = [0]
STNAMES = []


def stamp(p, label=""):
    if not DIAG:
        return
    i = NST[0]
    NST[0] += 1
    STNAMES.append(label)
    assert i < 32
    p("s_memrealtime s[100:101]")
    p(f"v_writelane_b32 v255, s100, {i}")


def stamp_flush(p):
    if not DIAG:
        return
    p.wait_vm0()
    stamp(p, "end")
    p(f"s_lshl_b32 s{sA}, s2, 2")
    p(f"s_add_u32 s{sA}, s{sA}, s{sW}")
    p(f"s_lshl_b32 s{sA}, s{sA}, 8")
    p(f"s_add_u32 s{sA}, s{sA}, {WS_TS}")
    p("v_lshlrev_b32 v2, 2, v1")
    p(f"buffer_store_dword v255, v2, {R(RWS)}, s{sA} offen")


def xhalf(p, op, a, t):
    p(f"v_mov_b32 v{t}, v{a}")
    p(f"v_permlane32_swap_b32 v{a}, v{t}")
    p(f"{op} v{a}, v{a}, v{t}")


def dma(p, voff, srdreg, soff, ldsaddr, tag=None):
    p(f"s_mov_b32 m0, {ldsaddr}")
    p(f"buffer_load_dwordx4 v{voff}, {R(srdreg)}, {soff} offen lds", tag=tag)


def pr(r, j=0):
    return f"v[{r+j}:{r+j+1}]"


def q4(r, k="v"):
    return f"{k}[{r}:{r+3}]"


def q16(r):
    return f"v[{r}:{r+15}]"


def mfma(p, d, a, b, c=None, ak="v", bk="v"):
    cc = "0" if c is None else q16(c)
    p(f"v_mfma_f32_32x32x16_bf16 {q16(d)}, {q4(a, ak)}, {q4(b, bk)}, {cc}")


def split_pair(p, dst, x, t):
    p(f"v_cvt_pk_bf16_f32 v{t}, v{x}, v{x}")
    p(f"v_and_b32 v{t}, 0xffff0000, v{t}")
    p(f"v_sub_f32 v{t}, v{x}, v{t}")
    p(f"v_cvt_pk_bf16_f32 v{dst}, v{x}, v{t}")


def split_dup(p, dhi, dlo, x, t):
    p(f"v_cvt_pk_bf16_f32 v{dhi}, v{x}, v{x}")
    p(f"v_and_b32 v{t}, 0xffff0000, v{dhi}")
    p(f"v_sub_f32 v{t}, v{x}, v{t}")
    p(f"v_cvt_pk_bf16_f32 v{dlo}, v{t}, v{t}")


def softmax_pm(p, P, E, OUT, vsc, T):
    mx, mn, t0, t1 = T, T + 1, T + 2, T + 4
    p(f"v_max3_f32 v{mx}, v{P}, v{P+1}, v{P+2}")
    p(f"v_min3_f32 v{mn}, v{P}, v{P+1}, v{P+2}")
    for j in range(3, 13, 2):
        p(f"v_max3_f32 v{mx}, v{mx}, v{P+j}, v{P+j+1}")
        p(f"v_min3_f32 v{mn}, v{mn}, v{P+j}, v{P+j+1}")
    p(f"v_max_f32 v{mx}, v{mx}, v{P+13}")
    p(f"v_max_f32 v{mn}, -v{mn}, -v{P+13}")
    p(f"v_permlane32_swap_b32 v{mx}, v{mn}")
    p(f"v_max_f32 v{mx}, v{mx}, v{mn}")
    p(f"v_mul_f32 v{t0}, v{mx}, v{vsc}")
    p(f"v_mov_b32 v{t1}, v{t0}")
    p(f"v_permlane32_swap_b32 v{t0}, v{t1}")
    for j in range(0, 14, 2):
        p(f"v_pk_fma_f32 {pr(E,j)}, {pr(P,j)}, {pr(vsc)}, {pr(t0)} op_sel_hi:[1,0,0] neg_lo:[0,0,1] neg_hi:[0,0,1]")
        p(f"v_pk_fma_f32 {pr(E+14,j)}, {pr(P,j)}, {pr(vsc)}, {pr(t1)} op_sel_hi:[1,0,0] neg_lo:[1,0,1] neg_hi:[1,0,1]")
    for j in range(28):
        p(f"v_exp_f32 v{E+j}, v{E+j}")
    for sgn, t in ((0, t0), (1, t1)):
        b = E + 14 * sgn
        p(f"v_pk_add_f32 {pr(t)}, {pr(b)}, {pr(b,2)}")
        for j in range(4, 14, 2):
            p(f"v_pk_add_f32 {pr(t)}, {pr(t)}, {pr(b,j)}")
    p(f"v_add_f32 v{mx}, v{t0}, v{t0+1}")
    p(f"v_add_f32 v{mn}, v{t1}, v{t1+1}")
    p(f"v_permlane32_swap_b32 v{mx}, v{mn}")
    p(f"v_add_f32 v{mx}, v{mx}, v{mn}")
    p(f"v_rcp_f32 v{t0}, v{mx}")
    p(f"v_mov_b32 v{t1}, v{t0}")
    p(f"v_permlane32_swap_b32 v{t0}, v{t1}")
    for sgn, t in ((0, t0), (1, t1)):
        b = E + 14 * sgn
        for j in range(0, 14, 2):
            p(f"v_pk_mul_f32 {pr(b,j)}, {pr(b,j)}, {pr(t)} op_sel_hi:[1,0]")
        for j in range(0, 14, 2):
            p(f"v_cvt_pk_bf16_f32 v{OUT+8*sgn+j//2}, v{b+j}, v{b+j+1}")
        p(f"v_mov_b32 v{OUT+8*sgn+7}, 0")


class G:
    pass


def publish(p, g, sync, store_tag):
    p.wait_vm(store_tag)
    p.barrier()
    p(f"buffer_store_dwordx2 {pr(g.vTag)}, v{g.vFl[sync]}, {R(RWS)}, 0 offen sc1")


def poll(p, g, sync, n):
    t = g.vPT
    p(f"v_min_u32 v{g.t3}, {n-1}, v1")
    p(f"v_lshlrev_b32 v{g.t3}, 3, v{g.t3}")
    p(f"s_lshl_b32 s{sA}, s2, 7")
    p(f"s_add_u32 s{sA}, s{sA}, {WS_FLAG + sync*32768}")
    p.raw(f"""
    s_cmp_lg_u32 s{sW}, 0
    s_cbranch_scc1 L_poll{sync}_done
    s_mov_b32 s{sB}, 0
L_poll{sync}:
    buffer_load_dwordx2 {pr(t)}, v{g.t3}, {R(RWS)}, s{sA} offen sc1
    s_waitcnt vmcnt(0)
    v_cmp_ne_u64 vcc, {pr(t)}, {pr(g.vTag)}
    s_nop 1
    s_cbranch_vccz L_poll{sync}_done
    s_add_u32 s{sB}, s{sB}, 1
    s_cmp_lt_u32 s{sB}, 0x20000
    s_cbranch_scc1 L_poll{sync}
L_poll{sync}_done:
""", uses=[f"v{g.t3}", pr(g.vTag)], defs=[pr(t)])


def gen():
    p = Prog()
    g = G()
    name = NAME
    p("s_cmp_ge_u32 s2, 256")
    p(f"s_cbranch_scc1 L_end")
    p("s_load_dwordx16 s[16:31], s[0:1], 0")
    p("s_load_dwordx8 s[32:39], s[0:1], 64")
    p("s_getpc_b64 s[96:97]")
    p("L_pc:")
    p("v_lshrrev_b32 v1, 6, v0")
    p(f"v_readfirstlane_b32 s{sW}, v1")
    p("v_and_b32 v1, 63, v0")
    ra = RegAlloc(2, 255)
    t0, t1, t2, t3 = ra(), ra(), ra(), ra()
    g.t3 = t3
    vL16 = ra()
    vDum = ra()
    g.vTag = ra(2, 2)
    g.vPT = ra(2, 2)
    g.vFl = [ra() for _ in range(4)]
    vR, vMC, vHF = ra(), ra(), ra()
    vOnes = ra()
    vW64 = ra()
    vW1 = ra()
    PHQ = ra(16, 4)
    XRES, HRES = PHQ, PHQ + 8
    base_mark = ra.mark()
    p(f"s_lshr_b32 s{sI}, s2, 3")
    p(f"s_and_b32 s{sA}, s2, 7")
    p(f"s_and_b32 s{sB}, s{sA}, 1")
    p(f"s_lshl_b32 s{sB}, s{sB}, 3")
    p(f"s_and_b32 s{sRB}, s{sI}, 7")
    p(f"s_add_u32 s{sRB}, s{sRB}, s{sB}")
    p(f"s_lshr_b32 s{sB}, s{sA}, 1")
    p(f"s_lshl_b32 s{sB}, s{sB}, 2")
    p(f"s_lshr_b32 s{sH}, s{sI}, 3")
    p(f"s_add_u32 s{sH}, s{sH}, s{sB}")
    p(f"s_lshl_b32 s{sRT}, s{sRB}, 2")
    p(f"s_add_u32 s{sRT}, s{sRT}, s{sW}")
    stamp(p, "start")
    p(f"s_and_b32 s{sB}, s{sI}, 7")
    p(f"s_lshl_b32 s{sB}, s{sB}, 2")
    p(f"s_add_u32 s{sB}, s{sB}, s{sW}")
    p(f"s_lshl_b32 s{sB}, s{sB}, 11")
    p(f"v_and_b32 v{t0}, 15, v1")
    p(f"v_lshl_add_u32 v{t0}, v{t0}, 7, s{sB}")
    p(f"v_min_u32 v{t0}, L_end-L_pc, v{t0}")
    p(f"global_load_dword v{vDum}, v{t0}, s[96:97]")

    vXe, vXo, vWkv, vWq = ra(), ra(), ra(), ra()
    vXr = [ra() for _ in range(4)]
    vAk, vAv, vAq, vAphi, vApk = ra(), ra(), ra(), ra(), ra()
    vS, vQ, vCk, vCv, vCq = ra(), ra(), ra(), ra(), ra()
    X = ra(16, 4)
    WF = ra(32, 4)
    AK, AV, AQ = ra(16, 4), ra(16, 4), ra(16, 4)
    p(f"v_lshrrev_b32 v{t0}, 3, v1")
    p(f"v_mul_u32_u24 v{t3}, 896, v{t0}")
    p(f"v_and_b32 v{t1}, 7, v1")
    p(f"v_lshrrev_b32 v{t2}, 4, v1")
    p(f"v_xor_b32 v{t1}, v{t1}, v{t2}")
    p(f"v_lshl_add_u32 v{vXe}, v{t1}, 4, v{t3}")
    p(f"v_xor_b32 v{t1}, 4, v{t1}")
    p(f"v_lshl_add_u32 v{vXo}, v{t1}, 4, v{t3}")
    p(f"v_add_u32 v{vXo}, {8*896}, v{vXo}")
    p(f"v_mul_u32_u24 v{t0}, 2688, v{t0}")
    p(f"v_lshrrev_b32 v{t1}, 2, v1")
    p(f"v_xor_b32 v{t1}, v{t1}, v{t2}")
    p(f"v_and_b32 v{t1}, 1, v{t1}")
    p(f"v_and_b32 v{t2}, 3, v1")
    p(f"v_lshlrev_b32 v{t2}, 4, v{t2}")
    p(f"v_lshl_add_u32 v{vW64}, v{t1}, 6, v{t3}")
    p(f"v_add_u32 v{vW64}, v{vW64}, v{t2}")
    p(f"v_mul_u32_u24 v{t1}, 896, v{t1}")
    p(f"v_add3_u32 v{vWkv}, v{t0}, v{t1}, v{t2}")
    p(f"v_add_u32 v{vWkv}, 896, v{vWkv}")
    p(f"v_lshlrev_b32 v{vL16}, 4, v1")
    srd(p, RX, SX, S * D * 2)
    srd(p, RWQKV, SWQKV, D * 3 * D * 2)
    p(f"s_mul_i32 s{sXrow}, s{sRT}, {32*896}")
    p(f"s_mul_i32 s{sHcol}, s{sH}, 56")
    p(f"s_lshl_b32 s{sXR}, s{sW}, 14")
    p(f"s_add_u32 s{sXR}, s{sXR}, {L_R2}")
    p(f"s_mul_i32 s{sC}, s{sW}, {16*2688}")
    p(f"s_add_u32 s{sC}, s{sC}, s{sHcol}")
    p(f"s_lshl_b32 s{sD}, s{sW}, 11")

    def dma_x(c):
        for j in range(4):
            p(f"s_add_u32 m0, s{sXR}, {(c & 3) * 4096 + j * 1024}")
            p(f"s_add_u32 s{sA}, s{sXrow}, {(j >> 1) * 16 * 896 + c * 128}")
            p(f"buffer_load_dwordx4 v{vXo if j & 1 else vXe}, {R(RX)}, s{sA} offen lds", tag=f"x{c}")

    def dma_wkv(c):
        for j in range(2):
            p(f"s_add_u32 m0, s{sD}, {L_R0 + c * 8192 + j * 1024}")
            p(f"s_add_u32 s{sA}, s{sC}, {(64 * c + 8 * j) * 2688}")
            p(f"buffer_load_dwordx4 v{vWkv}, {R(RWQKV)}, s{sA} offen lds", tag=f"wkv{c}")

    for c in range(7):
        if c < 4:
            dma_x(c)
        dma_wkv(c)
    stamp(p, "issued")
    srd(p, RWPHI, SWPHI, H * DH * DH * 2)
    srd(p, RWS, SWS, WS_SIZE)
    srd(p, RWO, SWO, D * D * 2)
    srd(p, RW1, SW1, D * F * 2)
    srd(p, RW2, SW2, F * D * 2)
    srd(p, RB1, SB1, F * 2)
    srd(p, RB2, SB2, D * 2)
    srd(p, ROUT, SOUT, S * D * 2)
    srd(p, RDBG, SDBG, 256)
    p("s_memrealtime s[98:99]")
    p(f"s_or_b32 s{sA}, s2, s{sW}")
    p(f"v_or_b32 v{t0}, s{sA}, v1")
    p(f"v_lshlrev_b32 v{t0}, 12, v{t0}")
    p(f"s_or_b32 s98, s98, 1")
    p(f"v_mov_b32 v{g.vPT}, s98")
    p(f"v_mov_b32 v{g.vPT+1}, s99")
    p(f"buffer_store_dwordx2 {pr(g.vPT)}, v{t0}, {R(RDBG)}, 0 offen sc1")
    p(f"s_and_b32 s{sA}, s2, 7")
    p(f"s_lshr_b32 s{sCT}, s{sI}, 2")
    p(f"s_and_b32 s{sRB64}, s{sI}, 3")
    p(f"s_lshl_b32 s{sB}, s{sA}, 2")
    p(f"s_add_u32 s{sRB64}, s{sRB64}, s{sB}")
    p(f"s_lshr_b32 s{sFT}, s{sI}, 1")
    p(f"s_and_b32 s{sRB3}, s{sI}, 1")
    p(f"s_lshl_b32 s{sB}, s{sA}, 1")
    p(f"s_add_u32 s{sRB3}, s{sRB3}, s{sB}")
    p(f"s_lshl_b32 s{sRT3}, s{sRB3}, 2")
    p(f"s_add_u32 s{sRT3}, s{sRT3}, s{sW}")
    p(f"s_lshr_b32 s{sB}, s{sW}, 1")
    p(f"s_lshl_b32 s{sRTf}, s{sRB64}, 1")
    p(f"s_add_u32 s{sRTf}, s{sRTf}, s{sB}")
    p(f"s_and_b32 s{sB}, s{sW}, 1")
    p(f"s_lshl_b32 s{sTf}, s{sCT}, 1")
    p(f"s_add_u32 s{sTf}, s{sTf}, s{sB}")
    p(f"s_lshl_b32 s{sB}, s{sW}, 2")
    p(f"v_add_u32 v{t0}, s{sB}, v1")
    p(f"v_mov_b32 v{t3}, 0xfffffff0")
    p(f"s_lshr_b32 s{sB}, s{sH}, 2")
    p(f"s_lshl_b32 s{sB}, s{sB}, 1")
    p(f"s_and_b32 s{sE}, s{sH}, 3")
    p(f"s_lshl_b32 s{sE}, s{sE}, 6")
    p(f"s_add_u32 s{sB}, s{sB}, s{sE}")
    p(f"s_lshl_b32 s{sB}, s{sB}, 7")
    p(f"s_lshl_b32 s{sE}, s{sRB}, 3")
    p(f"s_add_u32 s{sB}, s{sB}, s{sE}")
    p(f"s_add_u32 s{sB}, s{sB}, {WS_FLAG}")
    p(f"v_lshrrev_b32 v{t1}, 3, v{t0}")
    p(f"v_and_b32 v{t2}, 7, v{t0}")
    p(f"v_lshl_add_u32 v{t1}, v{t2}, 3, v{t1}")
    p(f"v_lshl_add_u32 v{t1}, v{t1}, 7, s{sB}")
    p(f"v_cmp_gt_u32 vcc, 4, v1")
    p(f"v_cndmask_b32 v{g.vFl[0]}, v{t3}, v{t1}, vcc")
    p(f"v_cmp_gt_u32 s[94:95], 14, v{t0}")
    p(f"s_and_b64 vcc, vcc, s[94:95]")
    p(f"v_and_b32 v{t1}, 1, v{t0}")
    p(f"v_lshrrev_b32 v{t2}, 1, v{t0}")
    p(f"v_lshl_add_u32 v{t1}, v{t2}, 2, v{t1}")
    p(f"v_lshlrev_b32 v{t1}, 10, v{t1}")
    for sync, srb, sslot in ((1, sRB, sH), (3, sRB3, sFT)):
        p(f"s_lshr_b32 s{sB}, s{srb}, 1")
        p(f"s_and_b32 s{sE}, s{srb}, 1")
        p(f"s_lshl_b32 s{sE}, s{sE}, 4")
        p(f"s_add_u32 s{sB}, s{sB}, s{sE}")
        p(f"s_lshl_b32 s{sB}, s{sB}, 7")
        p(f"s_lshl_b32 s{sE}, s{sslot}, 3")
        p(f"s_add_u32 s{sB}, s{sB}, s{sE}")
        p(f"s_add_u32 s{sB}, s{sB}, {WS_FLAG + sync*32768}")
        p(f"v_add_u32 v{t2}, s{sB}, v{t1}")
        p(f"v_cndmask_b32 v{g.vFl[sync]}, v{t3}, v{t2}, vcc")
    p(f"s_lshr_b32 s{sB}, s{sRB64}, 1")
    p(f"s_and_b32 s{sB}, s{sB}, 1")
    p(f"s_lshl_b32 s{sB}, s{sB}, 3")
    p(f"s_add_u32 s{sB}, s{sB}, s{sA}")
    p(f"s_lshl_b32 s{sB}, s{sB}, 7")
    p(f"s_and_b32 s{sE}, s{sRB64}, 1")
    p(f"s_mul_i32 s{sE}, s{sE}, 7")
    p(f"s_add_u32 s{sE}, s{sE}, s{sCT}")
    p(f"s_lshl_b32 s{sE}, s{sE}, 3")
    p(f"s_add_u32 s{sB}, s{sB}, s{sE}")
    p(f"s_add_u32 s{sB}, s{sB}, {WS_FLAG + 2*32768}")
    p(f"v_lshl_add_u32 v{t2}, v{t0}, 11, s{sB}")
    p(f"v_cndmask_b32 v{g.vFl[2]}, v{t3}, v{t2}, vcc")

    p(f"v_bfe_u32 v{vR}, v1, 2, 2")
    p(f"v_and_b32 v{vMC}, 3, v1")
    p(f"v_lshlrev_b32 v{vMC}, 3, v{vMC}")
    p(f"v_bfe_u32 v{vHF}, v1, 4, 1")
    p(f"v_lshl_add_u32 v{vMC}, v{vHF}, 5, v{vMC}")
    p(f"v_lshrrev_b32 v{vHF}, 5, v1")
    p(f"v_lshrrev_b32 v{t0}, 2, v1")
    p(f"v_mul_u32_u24 v{t0}, 2688, v{t0}")
    p(f"v_and_b32 v{t2}, 3, v1")
    p(f"v_lshl_add_u32 v{vWq}, v{t2}, 4, v{t0}")
    p(f"v_lshrrev_b32 v{t0}, 4, v1")
    p(f"v_xor_b32 v{t1}, v{vR}, v{t0}")
    p(f"v_mul_u32_u24 v{t0}, 3584, v{t0}")
    p(f"v_lshl_add_u32 v{t0}, v{t1}, 6, v{t0}")
    p(f"v_lshl_add_u32 v{vW1}, v{t2}, 4, v{t0}")
    p(f"v_lshl_add_u32 v{t3}, v{vHF}, 3, v{vR}")
    p(f"v_lshl_add_u32 v{vAk}, v{t3}, 7, v{vMC}")
    p(f"v_lshl_add_u32 v{vAq}, v{t3}, 6, v{vMC}")
    p(f"v_add_u32 v{vAq}, {L_R1}, v{vAq}")
    p(f"v_lshrrev_b32 v{t3}, 1, v{vR}")
    p(f"v_lshl_add_u32 v{vAk}, v{t3}, 6, v{vAk}")
    p(f"v_xor_b32 v{vAv}, 64, v{vAk}")
    p(f"v_lshl_add_u32 v{t3}, v{vHF}, 2, v{vR}")
    p(f"v_mul_u32_u24 v{vAphi}, 56, v{t3}")
    p(f"v_add_u32 v{vAphi}, v{vAphi}, v{vMC}")
    p(f"v_add_u32 v{vAphi}, {L_WPHI}, v{vAphi}")
    p(f"v_cmp_eq_u32 vcc, 56, v{vMC}")
    p(f"v_add_u32 v{vApk}, {2048 - 8}, v{vAphi}")
    p(f"v_cndmask_b32 v{vAphi}, v{vAphi}, v{vApk}, vcc")
    p(f"s_mul_i32 s{sFq}, s{sW}, 14336")
    p(f"v_mul_u32_u24 v{vApk}, 136, v{t3}")
    p(f"v_add3_u32 v{vApk}, v{vApk}, v{vMC}, s{sFq}")
    p(f"v_and_b32 v{t0}, 31, v1")
    p(f"v_bfe_u32 v{t1}, v1, 1, 3")
    p(f"v_xor_b32 v{t1}, v{t1}, v{vHF}")
    p(f"v_lshlrev_b32 v{t0}, 7, v{t0}")
    p(f"v_add_u32 v{t0}, s{sXR}, v{t0}")
    for s in range(4):
        p(f"v_xor_b32 v{t3}, {2*s}, v{t1}")
        p(f"v_lshl_add_u32 v{vXr[s]}, v{t3}, 4, v{t0}")
    p(f"v_mov_b32 v{vOnes}, 0x3f803f80")
    for r in (vS, vQ, vCk, vCv, vCq):
        p(f"v_mov_b32 v{r}, 0")
    XM, CMk, CMv = ra(4, 4), ra(4, 4), ra(4, 4)
    for r in (XM, CMk, CMv):
        p(f"v_mov_b32 v{r+2}, 0")
        p(f"v_mov_b32 v{r+3}, 0")

    def touch(srdreg, nbytes, first):
        if first:
            p(f"s_lshl_b32 s{sA}, s{sI}, 2")
            p(f"s_add_u32 s{sA}, s{sA}, s{sW}")
            p(f"s_lshl_b32 s{sA}, s{sA}, 13")
            p(f"v_lshl_add_u32 v{t0}, v1, 7, s{sA}")
        for k in range((nbytes + (1 << 20) - 1) >> 20):
            p(f"s_mov_b32 s{sB}, {k << 20}")
            p(f"buffer_load_dword v{vDum}, v{t0}, {R(srdreg)}, s{sB} offen")

    for c in range(7):
        p.wait_vm(f"x{c}")
        p.wait_vm(f"wkv{c}")
        p("s_barrier")
        if c in (0, 3, 6):
            stamp(p, f"chunk{c}")
        for s in range(4):
            ks = 4 * c + s
            wk, wv = WF + 8 * s, WF + 8 * s + 4
            p(f"ds_read_b128 {q4(X+4*s)}, v{vXr[s]} offset:{(c & 3) * 4096}")
            for u in range(2):
                p(f"ds_read_b64_tr_b16 {pr(wk,2*u)}, v{vAk} offset:{ks*2048+u*512}")
            for u in range(2):
                p(f"ds_read_b64_tr_b16 {pr(wv,2*u)}, v{vAv} offset:{ks*2048+u*512}")
        for s in range(4):
            xr = X + 4 * s
            wk, wv = WF + 8 * s, WF + 8 * s + 4
            first = (c == 0 and s == 0)
            mfma(p, AK, wk, xr, None if first else AK)
            xa = 4 * (4 * c + s)
            p(f"ds_read_b128 a[{xa}:{xa+3}], v{vXr[s]} offset:{(c & 3) * 4096}")
            for j in range(4):
                p(f"v_dot2c_f32_bf16 v{vS}, v{xr+j}, v{vOnes}")
                p(f"v_dot2c_f32_bf16 v{vCk}, v{wk+j}, v{vOnes}")
            mfma(p, AV, xr, wv, None if first else AV)
            for j in range(4):
                p(f"v_dot2c_f32_bf16 v{vQ}, v{xr+j}, v{xr+j}")
                p(f"v_dot2c_f32_bf16 v{vCv}, v{wv+j}, v{vOnes}")
        if c + 4 < 7:
            p.wait_lgkm0()
            dma_x(c + 4)
        if c == 2:
            p(f"s_and_b32 s{sA}, s{sW}, 1")
            p(f"s_lshl_b32 s{sA}, s{sA}, 10")
            p(f"s_lshr_b32 s{sB}, s{sW}, 1")
            p(f"s_lshl_b32 s{sB}, s{sB}, 2")
            p(f"s_add_u32 s{sA}, s{sA}, s{sB}")
            p(f"s_mul_i32 s{sB}, s{sH}, {DH*DH*2}")
            p(f"s_add_u32 s{sA}, s{sA}, s{sB}")
            p(f"s_lshl_b32 s{sB}, s{sW}, 10")
            p(f"s_add_u32 s{sB}, s{sB}, {L_WPHI}")
            dma(p, vL16, RWPHI, f"s{sA}", f"s{sB}", tag="wphi")
            p(f"v_mov_b32 v{t0}, 0")
            p(f"buffer_load_dwordx2 {pr(g.vTag)}, v{t0}, {R(RDBG)}, 0 offen sc1")
            p(f"s_mul_i32 s{sC}, s{sW}, {7*16*2688}")
            p(f"s_add_u32 s{sC}, s{sC}, s{sHcol}")
            p(f"s_mul_i32 s{sD}, s{sW}, {7*1024}")
            for j in range(7):
                p(f"s_add_u32 m0, s{sD}, {L_R1 + j*1024}")
                p(f"s_add_u32 s{sA}, s{sC}, {16*j*2688}")
                p(f"buffer_load_dwordx4 v{vWq}, {R(RWQKV)}, s{sA} offen lds", tag="wq")
        if c == 3 and OPT.get("touch", 1):
            touch(RWO, D * D * 2, True)
            touch(RW1, D * F * 2, False)
    stamp(p, "kvdone")
    vRS = ra(2, 2)
    vSC = ra(2, 2)
    vMisc, vMr = ra(), ra()
    E = ra(28, 4)
    T = ra(6, 2)
    PH = ra(8, 4)
    KB = ra(8, 4)
    VB = ra(8, 4)
    OUT = ra(16, 4)
    xhalf(p, "v_add_f32", vS, t0)
    xhalf(p, "v_add_f32", vQ, t1)
    p(f"v_mul_f32 v{vS}, {f32(-1.0/D)}, v{vS}")
    split_dup(p, XM, XM + 1, vS, t0)
    split_pair(p, CMk, vCk, t1)
    p(f"v_mov_b32 v{CMk+1}, v{CMk}")
    split_pair(p, CMv, vCv, t1)
    p(f"v_mov_b32 v{CMv+1}, v{CMv}")
    mfma(p, AK, CMk, XM, AK)
    mfma(p, AV, XM, CMv, AV)
    p(f"v_mul_f32 v{t0}, {f32(1.0/D)}, v{vQ}")
    p(f"v_fma_f32 v{t0}, -v{vS}, v{vS}, v{t0}")
    p(f"v_max_f32 v{t0}, 0, v{t0}")
    p(f"v_add_f32 v{t0}, {f32(1e-5)}, v{t0}")
    p(f"v_rsq_f32 v{vRS}, v{t0}")
    p(f"s_lshl_b32 s{sA}, s{sW}, 10")
    p(f"s_add_u32 s{sA}, s{sA}, {L_MISC}")
    p(f"v_and_b32 v{vMisc}, 31, v1")
    p(f"v_lshl_add_u32 v{vMisc}, v{vMisc}, 2, s{sA}")
    p(f"v_lshl_add_u32 v{vMr}, v{vHF}, 4, s{sA}")
    p(f"v_mul_f32 v{vSC}, {f32(LOG2E)}, v{vRS}")
    p(f"ds_write_b32 v{vMisc}, v{vRS}")
    p.wait_vm("wphi")
    p.barrier()
    for t in range(2):
        for u in range(2):
            p(f"ds_read_b64_tr_b16 {pr(PH,4*t+2*u)}, v{vAphi} offset:{(16*t+8*u)*56}")
    CS = WF
    for gg in range(4):
        p(f"ds_read_b128 {q4(CS+4*gg)}, v{vMr} offset:{32*gg}")
    for j in range(0, 16, 2):
        p(f"v_cvt_pk_bf16_f32 v{KB+j//2}, v{AK+j}, v{AK+j+1}")
    p(f"s_mov_b32 s{sA}, 0")
    p(f"s_mov_b32 s{sB}, -1")
    p(f"v_mov_b32 v{t0}, v{PH+7}")
    p(f"s_mov_b64 exec, s[{sA}:{sB}]")
    p(f"v_mov_b32 v{PH+6}, 0")
    p(f"v_mov_b32 v{PH+7}, 0")
    p("s_mov_b64 exec, -1")
    mfma(p, AK, PH, KB)
    mfma(p, AK, PH + 4, KB + 4, AK)
    p(f"s_mul_i32 s{sC}, s{sW}, {15*8*896}")
    p(f"s_lshl_b32 s{sA}, s{sCT}, 7")
    p(f"s_add_u32 s{sC}, s{sC}, s{sA}")
    p(f"s_mul_i32 s{sD}, s{sW}, {15*1024}")
    wo_items = Prog()
    for j in range(15):
        wo_items(f"s_add_u32 m0, s{sD}, {L_R2 + j*1024}")
        wo_items(f"s_add_u32 s{sA}, s{sC}, {j*8*896}")
        wo_items(f"buffer_load_dwordx4 v{vW64}, {R(RWO)}, s{sA} offen lds", tag="wo")
    p.add(wo_items.items)
    for j in range(0, 16, 2):
        p(f"v_pk_mul_f32 {pr(AV,j)}, {pr(AV,j)}, {pr(CS,j)}")
    for j in range(0, 16, 2):
        p(f"v_cvt_pk_bf16_f32 v{VB+j//2}, v{AV+j}, v{AV+j+1}")
    p(f"s_mov_b32 s{sA}, 0xf0000000")
    p(f"s_mov_b32 s{sB}, 0xf0000000")
    p(f"s_mov_b64 exec, s[{sA}:{sB}]")
    for j in range(8):
        p(f"v_mov_b32 v{VB+j}, v{vOnes}")
    p("s_mov_b64 exec, -1")
    softmax_pm(p, AK, E, OUT, vSC, T)
    p(f"v_and_b32 v{t0}, 31, v1")
    p(f"v_mul_u32_u24 v{t0}, 136, v{t0}")
    p(f"v_lshlrev_b32 v{t1}, 3, v{vHF}")
    p(f"v_add3_u32 v{t0}, v{t0}, v{t1}, s{sFq}")
    for sg in range(2):
        for gg in range(4):
            p(f"ds_write_b64 v{t0}, {pr(OUT, 8*sg+2*gg)} offset:{64*sg+16*gg}")
    PF = WF
    for sg in range(2):
        for t in range(2):
            for u in range(2):
                p(f"ds_read_b64_tr_b16 {pr(PF, 8*sg+4*t+2*u)}, v{vApk} offset:{(16*t+8*u)*136+64*sg}")
    KV = [AK, AV]
    for sg in range(2):
        mfma(p, KV[sg], PF + 8 * sg, VB)
    for sg in range(2):
        mfma(p, KV[sg], PF + 8 * sg + 4, VB + 4, KV[sg])
    p(f"v_add_u32 v{t0}, s{sFq}, v{vL16}")
    p(f"s_lshl_b32 s{sA}, s{sW}, 11")
    p(f"v_add_u32 v{t1}, s{sA}, v{vL16}")
    for sg in range(2):
        for gg in range(4):
            p(f"ds_write_b128 v{t0}, {q4(KV[sg]+4*gg)} offset:{5120 + (4*sg+gg)*1024}")
    p.wait_vm("wq")
    p.barrier()
    RD = WF
    for w2 in range(4):
        for gg in range(2):
            p(f"ds_read_b128 {q4(RD+8*w2+4*gg)}, v{t1} offset:{w2*14336 + 5120 + gg*1024}")
    for j in range(0, 8, 2):
        p(f"v_pk_add_f32 {pr(RD,j)}, {pr(RD,j)}, {pr(RD+8,j)}")
        p(f"v_pk_add_f32 {pr(RD+16,j)}, {pr(RD+16,j)}, {pr(RD+24,j)}")
    for j in range(0, 8, 2):
        p(f"v_pk_add_f32 {pr(E,j)}, {pr(RD,j)}, {pr(RD+16,j)}")
    p(f"s_lshl_b32 s{sA}, s{sH}, 4")
    p(f"s_add_u32 s{sA}, s{sA}, s{sRB}")
    p(f"s_lshl_b32 s{sA}, s{sA}, 2")
    p(f"s_add_u32 s{sA}, s{sA}, s{sW}")
    p(f"s_lshl_b32 s{sA}, s{sA}, 11")
    p(f"buffer_store_dwordx4 {q4(E)}, v{vL16}, {R(RWS)}, s{sA} offen sc1")
    p(f"buffer_store_dwordx4 {q4(E+4)}, v{vL16}, {R(RWS)}, s{sA} offen offset:1024 sc1", tag="stA")
    stamp(p, "kvstored")
    def q_reads(c):
        for s in range(4):
            ks = 4 * c + s
            wq = WF + 16 * (c & 1) + 4 * s
            for u in range(2):
                yield Ins(f"ds_read_b64_tr_b16 {pr(wq,2*u)}, v{vAq} offset:{ks*1024+u*256}")
    p.add(list(q_reads(0)))
    for c in range(7):
        nxt = list(q_reads(c + 1)) if c < 6 else []
        for s in range(4):
            wq = WF + 16 * (c & 1) + 4 * s
            mfma(p, AQ, wq, 4 * (4 * c + s), None if (c == 0 and s == 0) else AQ, bk="a")
            p.add(nxt[2 * s:2 * s + 2])
            for j in range(4):
                p(f"v_dot2c_f32_bf16 v{vCq}, v{wq+j}, v{vOnes}")
    split_pair(p, CMk, vCq, t1)
    p(f"v_mov_b32 v{CMk+1}, v{CMk}")
    mfma(p, AQ, CMk, XM, AQ)
    p(f"v_mov_b32 v{t0}, 0")
    p.raw(f"""
    s_mov_b32 s{sB}, 0
L_epoch:
    v_cmp_eq_u32 vcc, 0, v{g.vTag}
    s_nop 1
    s_cbranch_vccz L_epoch_done
    buffer_load_dwordx2 {pr(g.vTag)}, v{t0}, {R(RDBG)}, 0 offen sc1
    s_waitcnt vmcnt(0)
    s_add_u32 s{sB}, s{sB}, 1
    s_cmp_lt_u32 s{sB}, 0x20000
    s_cbranch_scc1 L_epoch
L_epoch_done:
""", uses=[pr(g.vTag), f"v{t0}"], defs=[pr(g.vTag)])
    publish(p, g, 0, "stA")
    stamp(p, "pubA")

    p(f"s_mul_i32 s{sG}, s{sW}, {16*3584}")
    p(f"s_lshl_b32 s{sA}, s{sFT}, 8")
    p(f"s_add_u32 s{sG}, s{sG}, s{sA}")
    p(f"s_lshl_b32 s{sE}, s{sW}, 12")

    def dma_w1(c):
        for j in range(4):
            p(f"s_add_u32 m0, s{sE}, {W1_BASE[c]+j*1024}")
            p(f"s_add_u32 s{sA}, s{sG}, {(64*c+4*j)*3584}")
            p(f"buffer_load_dwordx4 v{vW1}, {R(RW1)}, s{sA} offen lds", tag=f"w1_{c}")

    for c in range(3):
        dma_w1(c)
    for j in range(0, 16, 2):
        p(f"v_cvt_pk_bf16_f32 v{KB+j//2}, v{AQ+j}, v{AQ+j+1}")
    mfma(p, AK, PH, KB)
    mfma(p, AK, PH + 4, KB + 4, AK)
    softmax_pm(p, AK, E, PHQ, vSC, T)
    stamp(p, "qdone")
    poll(p, g, 0, 16)
    p("s_barrier")
    stamp(p, "syncA")

    ra.release(base_mark)
    vRc = ra(2, 2)
    PART = ra(128, 4)
    AF = ra(16, 4)
    ACC1 = ra(16, 4)
    OB = ra(8, 4)
    p(f"s_lshl_b32 s{sA}, s{sH}, 17")
    p(f"s_lshl_b32 s{sB}, s{sW}, 11")
    p(f"s_add_u32 s{sA}, s{sA}, s{sB}")
    for pp in range(16):
        if pp:
            p(f"s_add_u32 s{sA}, s{sA}, 8192")
        for gg in range(2):
            p(f"buffer_load_dwordx4 {q4(PART+8*pp+4*gg)}, v{vL16}, {R(RWS)}, s{sA} offen offset:{gg*1024} sc1")
    for pp in range(1, 16):
        for j in range(0, 8, 2):
            p(f"v_pk_add_f32 {pr(PART,j)}, {pr(PART,j)}, {pr(PART+8*pp,j)}")
    for j in range(4):
        p(f"v_cvt_pk_bf16_f32 v{OB+j}, v{PART+2*j}, v{PART+2*j+1}")
    p(f"s_lshl_b32 s{sA}, s{sW}, 10")
    p(f"s_add_u32 s{sA}, s{sA}, {L_MISC}")
    p(f"v_add_u32 v{t0}, s{sA}, v{vL16}")
    p(f"v_add_u32 v{t1}, {L_MISC}, v{vL16}")
    p(f"ds_write_b128 v{t0}, {q4(OB)}")
    stamp(p, "kvsum")
    p.barrier()
    for kk in range(4):
        p(f"ds_read_b128 {q4(AF+4*kk)}, v{t1} offset:{kk*1024}")
    for kk in range(4):
        mfma(p, ACC1, AF + 4 * kk, PHQ + 4 * kk, None if kk == 0 else ACC1)
    p(f"s_lshl_b32 s{sA}, s{sRT}, 4")
    p(f"s_add_u32 s{sA}, s{sA}, s{sH}")
    p(f"s_lshl_b32 s{sA}, s{sA}, 11")
    p(f"s_add_u32 s{sC}, s{sA}, {WS_OF}")
    p(f"v_mov_b32 v{t0}, v{ACC1+12}")
    p(f"v_mov_b32 v{t1}, v{ACC1+12}")
    p(f"v_permlane32_swap_b32 v{t0}, v{t1}")
    p(f"v_add_f32 v{t1}, {f32(1e-6)}, v{t1}")
    p(f"v_rcp_f32 v{vRc}, v{t1}")
    for j in range(0, 16, 2):
        p(f"v_pk_mul_f32 {pr(ACC1,j)}, {pr(ACC1,j)}, {pr(vRc)} op_sel_hi:[1,0]")
    for j in range(0, 16, 2):
        p(f"v_cvt_pk_bf16_f32 v{OB+j//2}, v{ACC1+j}, v{ACC1+j+1}")
    p(f"s_mov_b32 s{sA}, 0")
    p(f"s_mov_b32 s{sB}, -1")
    p(f"s_mov_b64 exec, s[{sA}:{sB}]")
    p(f"v_mov_b32 v{OB+6}, 0")
    p(f"v_mov_b32 v{OB+7}, 0")
    p("s_mov_b64 exec, -1")
    for t in range(2):
        p(f"buffer_store_dwordx4 {q4(OB+4*t)}, v{vL16}, {R(RWS)}, s{sC} offen offset:{t*1024} sc1", tag="stB")
    stamp(p, "ostored")
    ra.release(base_mark)
    vA0, vA1, vXo2 = ra(), ra(), ra()
    B = ra(64, 4)
    WOF = ra(64, 4)
    ACC = ra(64, 4)
    OB2 = ra(8, 4)
    for c in (3, 4):
        dma_w1(c)
    p(f"v_and_b32 v{t0}, 31, v1")
    p(f"v_mul_u32_u24 v{t0}, 896, v{t0}")
    p(f"v_lshl_add_u32 v{vXo2}, v{vHF}, 3, v{t0}")
    p(f"s_mul_i32 s{sA}, s{sRTf}, {32*896}")
    p(f"s_lshl_b32 s{sB}, s{sTf}, 6")
    p(f"s_add_u32 s{sA}, s{sA}, s{sB}")
    for gg in range(4):
        p(f"buffer_load_dwordx2 {pr(XRES,2*gg)}, v{vXo2}, {R(RX)}, s{sA} offen offset:{16*gg}")
    if OPT.get("touch", 1):
        touch(RW2, F * D * 2, True)
    p(f"v_lshl_add_u32 v{t3}, v{vHF}, 2, v{vR}")
    p(f"v_lshl_add_u32 v{vA0}, v{t3}, 7, v{vMC}")
    p(f"v_lshrrev_b32 v{t3}, 1, v{vR}")
    p(f"v_lshl_add_u32 v{vA0}, v{t3}, 6, v{vA0}")
    p(f"v_xor_b32 v{vA1}, 64, v{vA0}")
    p(f"s_mul_i32 s{sA}, s{sW}, {112*128}")
    p(f"s_add_u32 s{sA}, s{sA}, {L_R2}")
    p(f"v_add_u32 v{t0}, s{sA}, v{vA0}")
    p(f"v_add_u32 v{t1}, s{sA}, v{vA1}")
    for k in range(8):
        row0 = 28 * (k >> 1) + 16 * (k & 1)
        for mt in range(2):
            for u in range(2):
                p(f"ds_read_b64_tr_b16 {pr(WOF, 8*k+4*mt+2*u)}, v{[t0, t1][mt]} offset:{(row0+8*u)*128}")
    publish(p, g, 1, "stB")
    stamp(p, "pubB")
    p(f"s_cmp_ge_u32 s{sI}, 28")
    p("s_cbranch_scc1 L_fin")
    p(f"s_lshl_b32 s{sC}, s{sRB64}, 16")
    p(f"s_lshl_b32 s{sA}, s{sW}, 13")
    p(f"s_add_u32 s{sC}, s{sC}, s{sA}")
    p(f"s_add_u32 s{sC}, s{sC}, {WS_OF}")
    dma_w1(5)
    poll(p, g, 1, 16)
    p("s_barrier")
    stamp(p, "syncB")

    for k in range(8):
        for nt in range(2):
            if (k & 3) == 0 or True:
                p(f"s_add_u32 s{sA}, s{sC}, {nt*32768 + (k>>2)*4096}")
            p(f"buffer_load_dwordx4 {q4(B+8*k+4*nt)}, v{vL16}, {R(RWS)}, s{sA} offen offset:{(k&3)*1024} sc1")
    for k in range(8):
        for nt in range(2):
            for mt in range(2):
                acc = ACC + 16 * (mt + 2 * nt)
                mfma(p, acc, WOF + 8 * k + 4 * mt, B + 8 * k + 4 * nt, None if k == 0 else acc)
    stamp(p, "p2mfma")

    def splitk_reduce(ACC, RD, red_base):
        for tl in range(4):
            p(f"s_sub_u32 s{sA}, s{sW}, {tl+1}")
            p(f"s_and_b32 s{sA}, s{sA}, 3")
            p(f"s_lshl_b32 s{sA}, s{sA}, 12")
            p(f"s_add_u32 s{sA}, s{sA}, {red_base + tl*16384}")
            p(f"v_add_u32 v{t0}, s{sA}, v{vL16}")
            for gg in range(4):
                p(f"ds_write_b128 v{t0}, {q4(ACC+16*tl+4*gg)} offset:{gg*1024}")
        p(f"s_lshl_b32 s{sA}, s{sW}, 14")
        p(f"s_add_u32 s{sA}, s{sA}, {red_base}")
        p(f"v_add_u32 v{t0}, s{sA}, v{vL16}")
        p.barrier()
        for w2 in range(4):
            for gg in range(4):
                p(f"ds_read_b128 {q4(RD+16*w2+4*gg)}, v{t0} offset:{w2*4096+gg*1024}")
        for j in range(0, 16, 2):
            p(f"v_pk_add_f32 {pr(RD,j)}, {pr(RD,j)}, {pr(RD+16,j)}")
        for j in range(0, 16, 2):
            p(f"v_pk_add_f32 {pr(RD+32,j)}, {pr(RD+32,j)}, {pr(RD+48,j)}")
        for j in range(0, 16, 2):
            p(f"v_pk_add_f32 {pr(RD,j)}, {pr(RD,j)}, {pr(RD+32,j)}")

    def splitk_reduce48(ACC, RD, red_base):
        p(f"s_lshl_b32 s{sA}, s{sW}, 13")
        p(f"s_add_u32 s{sA}, s{sA}, {red_base}")
        p(f"v_add_u32 v{t0}, s{sA}, v{vL16}")
        p(f"s_xor_b32 s{sA}, s{sW}, 2")
        p(f"s_lshl_b32 s{sA}, s{sA}, 13")
        p(f"s_add_u32 s{sA}, s{sA}, {red_base}")
        p(f"v_add_u32 v{t1}, s{sA}, v{vL16}")
        raise NotImplementedError

    RD = B
    if True:
        for tl in range(4):
            p(f"s_sub_u32 s{sA}, s{sW}, {tl+1}")
            p(f"s_and_b32 s{sA}, s{sA}, 3")
            p(f"s_cmp_eq_u32 s{sA}, 3")
            p(f"s_cbranch_scc1 L_p2own{tl}")
            p(f"s_lshl_b32 s{sA}, s{sA}, 12")
            p(f"s_add_u32 s{sA}, s{sA}, {L_R2 + tl*12288}")
            p.raw("\n".join([f"v_add_u32 v{t0}, s{sA}, v{vL16}", "s_nop 7"] +
                            [f"ds_write_b128 v{t0}, {q4(ACC+16*tl+4*gg)} offset:{gg*1024}" for gg in range(4)] +
                            [f"s_branch L_p2next{tl}", f"L_p2own{tl}:", "s_nop 7", "s_nop 3"] +
                            [f"v_mov_b32 v{RD+48+j}, v{ACC+16*tl+j}" for j in range(16)] +
                            [f"L_p2next{tl}:"]), uses=[f"v[{RD+48}:{RD+63}]"], defs=[f"v[{RD+48}:{RD+63}]"])
        p(f"s_mul_i32 s{sA}, s{sW}, 12288")
        p(f"s_add_u32 s{sA}, s{sA}, {L_R2}")
        p(f"v_add_u32 v{t0}, s{sA}, v{vL16}")
        p("s_waitcnt lgkmcnt(0)")
        p("s_barrier")
        for w2 in range(3):
            for gg in range(4):
                p(f"ds_read_b128 {q4(RD+16*w2+4*gg)}, v{t0} offset:{w2*4096+gg*1024}")
        for j in range(0, 16, 2):
            p(f"v_pk_add_f32 {pr(RD+48,j)}, {pr(RD+48,j)}, {pr(RD,j)}")
        for j in range(0, 16, 2):
            p(f"v_pk_add_f32 {pr(RD+16,j)}, {pr(RD+16,j)}, {pr(RD+32,j)}")
        for j in range(0, 16, 2):
            p(f"v_pk_add_f32 {pr(RD,j)}, {pr(RD+48,j)}, {pr(RD+16,j)}")
    vSt = ra(2, 2)
    p(f"v_mov_b32 v{vSt}, 0")
    p(f"v_mov_b32 v{vSt+1}, 0")
    for j in range(8):
        p(f"v_lshlrev_b32 v{t0}, 16, v{XRES+j}")
        p(f"v_and_b32 v{t1}, 0xffff0000, v{XRES+j}")
        p(f"v_add_f32 v{RD+2*j}, v{RD+2*j}, v{t0}")
        p(f"v_add_f32 v{RD+2*j+1}, v{RD+2*j+1}, v{t1}")
        p(f"v_cvt_pk_bf16_f32 v{HRES+j}, v{RD+2*j}, v{RD+2*j+1}")
    p(f"s_mul_i32 s{sA}, s{sRTf}, {28*1024}")
    p(f"s_lshl_b32 s{sB}, s{sTf}, 11")
    p(f"s_add_u32 s{sA}, s{sA}, s{sB}")
    p(f"s_add_u32 s{sA}, s{sA}, {WS_HF}")
    for t in range(2):
        p(f"buffer_store_dwordx4 {q4(HRES+4*t)}, v{vL16}, {R(RWS)}, s{sA} offen offset:{t*1024} sc1")
    for j in range(8):
        p(f"v_dot2c_f32_bf16 v{vSt}, v{HRES+j}, v{vOnes}")
        p(f"v_dot2c_f32_bf16 v{vSt+1}, v{HRES+j}, v{HRES+j}")
    p(f"s_mul_i32 s{sA}, s{sRTf}, {14*512}")
    p(f"s_lshl_b32 s{sB}, s{sTf}, 9")
    p(f"s_add_u32 s{sA}, s{sA}, s{sB}")
    p(f"s_add_u32 s{sA}, s{sA}, {WS_ST}")
    p(f"v_lshlrev_b32 v{t2}, 3, v1")
    p(f"buffer_store_dwordx2 {pr(vSt)}, v{t2}, {R(RWS)}, s{sA} offen sc1", tag="stC")
    stamp(p, "hstored")
    publish(p, g, 2, "stC")
    stamp(p, "pubC")
    dma_w1(6)

    ra.release(base_mark)
    vA = [[ra() for _ in range(4)] for _ in range(2)]
    vC, vB1 = ra(), ra()
    vK = ra(6, 2)
    YM = ra(4, 4)
    CM = ra(16, 4)
    ACC3 = ra(64, 4)
    AFR = ra(32, 4)
    STR = ra(28, 4)
    G1 = ra(16, 4)
    OB3 = ra(16, 4)
    p(f"v_and_b32 v{t0}, 31, v1")
    p(f"v_lshlrev_b32 v{t0}, 1, v{t0}")
    p(f"s_lshl_b32 s{sA}, s{sFT}, 8")
    for T in range(4):
        p(f"buffer_load_ushort v{CM+4*T+2}, v{t0}, {R(RB1)}, s{sA} offen offset:{64*T}")
    p(f"v_lshl_add_u32 v{t3}, v{vHF}, 2, v{vR}")
    p(f"v_lshl_add_u32 v{t3}, v{t3}, 8, v{vMC}")
    for T in range(4):
        p(f"v_xor_b32 v{t2}, {T}, v{vR}")
        p(f"v_lshl_add_u32 v{vA[0][T]}, v{t2}, 6, v{t3}")
        p(f"v_add_u32 v{vA[1][T]}, {L_R2}, v{vA[0][T]}")

    def trd(dst, T, ks, u):
        off = W1_BASE[ks >> 2] + (16 * (ks & 3) + 8 * u) * 256
        if off >= L_R2:
            return Ins(f"ds_read_b64_tr_b16 {pr(dst)}, v{vA[1][T]} offset:{off - L_R2}")
        if off >= 65536:
            return Ins(f"ds_read_b64_tr_b16 {pr(dst)}, v{vA[1][T]} offset:{off - L_R2}") if False else None
        return Ins(f"ds_read_b64_tr_b16 {pr(dst)}, v{vA[0][T]} offset:{off}")

    vA2 = [ra() for _ in range(4)]
    for T in range(4):
        p(f"v_add_u32 v{vA2[T]}, 65536, v{vA[0][T]}")

    def trd2(dst, T, ks, u):
        off = W1_BASE[ks >> 2] + (16 * (ks & 3) + 8 * u) * 256
        if 65536 <= off < L_R2:
            return Ins(f"ds_read_b64_tr_b16 {pr(dst)}, v{vA2[T]} offset:{off - 65536}")
        return trd(dst, T, ks, u)

    p.wait_vm("w1_6")
    p("s_barrier")
    for T in range(4):
        p(f"v_mov_b32 v{CM+4*T}, 0")
    for ks in range(28):
        a = AFR + 16 * (ks & 1)
        for T in range(4):
            for u in range(2):
                p.add([trd2(a + 4 * T + 2 * u, T, ks, u)])
        if ks > 0:
            a = AFR + 16 * ((ks - 1) & 1)
            for T in range(4):
                for j in range(4):
                    p(f"v_dot2c_f32_bf16 v{CM+4*T}, v{a+4*T+j}, v{vOnes}")
    a = AFR + 16
    for T in range(4):
        for j in range(4):
            p(f"v_dot2c_f32_bf16 v{CM+4*T}, v{a+4*T+j}, v{vOnes}")
    for T in range(4):
        p(f"v_mov_b32 v{t2}, v{CM+4*T}")
        split_pair(p, CM + 4 * T, t2, t1)
        p(f"v_mov_b32 v{CM+4*T+1}, v{CM+4*T}")
        p(f"v_mov_b32 v{CM+4*T+3}, v{CM+4*T+2}")
        p(f"v_lshl_or_b32 v{CM+4*T+2}, v{CM+4*T+2}, 16, v{CM+4*T+2}")
    stamp(p, "cs1")
    poll(p, g, 2, 14)
    p("s_barrier")
    stamp(p, "syncC")
    p(f"s_mul_i32 s{sA}, s{sRT3}, {14*512}")
    p(f"s_add_u32 s{sA}, s{sA}, {WS_ST}")
    p(f"v_lshlrev_b32 v{t2}, 3, v1")
    p(f"s_mul_i32 s{sC}, s{sRT3}, {28*1024}")
    p(f"s_add_u32 s{sC}, s{sC}, {WS_HF}")
    for ks in range(28):
        if (ks & 3) == 0:
            p(f"s_add_u32 s{sB}, s{sC}, {ks*1024}")
        p(f"buffer_load_dwordx4 a[{4*ks}:{4*ks+3}], v{vL16}, {R(RWS)}, s{sB} offen offset:{(ks&3)*1024} sc1")
    p(f"s_add_u32 s{sB}, s{sA}, 4096")
    for T in range(14):
        p(f"buffer_load_dwordx2 {pr(STR,2*T)}, v{t2}, {R(RWS)}, s{sA if T < 8 else sB} offen offset:{(T&7)*512} sc1")

    def pass_items(tiles):
        n = len(tiles)
        depth = 32 // (4 * n)
        items = []

        def reads(ks):
            a = AFR + 4 * n * (ks % depth)
            return [trd2(a + 4 * i + 2 * u, T, ks, u) for i, T in enumerate(tiles) for u in range(2)]
        pre = depth - 1
        for ks in range(pre):
            items += reads(ks)
        for ks in range(28):
            nxt = reads(ks + pre) if ks + pre < 28 else []
            a = AFR + 4 * n * (ks % depth)
            for i, T in enumerate(tiles):
                acc = ACC3 + 16 * T
                cc = "0" if ks == 0 else q16(acc)
                items.append(Ins(f"v_mfma_f32_32x32x16_bf16 {q16(acc)}, {q4(a+4*i)}, a[{4*ks}:{4*ks+3}], {cc}"))
                if i == n - 1:
                    items += nxt
        return items

    def corr(T):
        q = Prog()
        mfma(q, ACC3 + 16 * T, CM + 4 * T, YM, ACC3 + 16 * T)
        return q.items

    p(f"s_mul_i32 s{sC}, s{sRT3}, {112*1024}")
    p(f"s_lshl_b32 s{sA}, s{sFT}, 13")
    p(f"s_add_u32 s{sC}, s{sC}, s{sA}")
    p(f"s_add_u32 s{sC}, s{sC}, {WS_H1F}")
    p(f"s_add_u32 s{sD}, s{sC}, 4096")

    def gelu(T):
        q = Prog()
        acc = ACC3 + 16 * T
        ob = OB3 + 8 * (T & 1)
        for j in range(0, 16, 2):
            q(f"v_pk_mul_f32 {pr(G1,j)}, {pr(acc,j)}, {pr(acc,j)}")
        for j in range(0, 16, 2):
            q(f"v_pk_fma_f32 {pr(G1,j)}, {pr(G1,j)}, {pr(vK+2)}, {pr(vK)} op_sel_hi:[1,0,0]")
        for j in range(0, 16, 2):
            q(f"v_pk_mul_f32 {pr(G1,j)}, {pr(G1,j)}, {pr(acc,j)}")
        for j in range(16):
            q(f"v_exp_f32 v{G1+j}, v{G1+j}")
        for j in range(0, 16, 2):
            q(f"v_pk_fma_f32 {pr(G1,j)}, {pr(G1,j)}, {pr(vK+4)}, {pr(vK+4)} op_sel_hi:[1,0,0]")
        for j in range(16):
            q(f"v_rcp_f32 v{G1+j}, v{G1+j}")
        for j in range(0, 16, 2):
            q(f"v_pk_mul_f32 {pr(G1,j)}, {pr(G1,j)}, {pr(acc,j)}")
        for j in range(0, 16, 2):
            q(f"v_cvt_pk_bf16_f32 v{ob+j//2}, v{G1+j}, v{G1+j+1}")
        for t in range(2):
            q(f"buffer_store_dwordx4 {q4(ob+4*t)}, v{vL16}, {R(RWS)}, s{sC if T < 2 else sD} offen offset:{((2*T+t)&3)*1024} sc1", tag="stD")
        return q.items

    p.add(pass_items([0, 1]))
    stamp(p, "p3pass1")
    st = Prog()
    for T in range(1, 14):
        st(f"v_pk_add_f32 {pr(STR)}, {pr(STR)}, {pr(STR,2*T)}")
    xhalf(st, "v_add_f32", STR, t0)
    xhalf(st, "v_add_f32", STR + 1, t1)
    st(f"v_mul_f32 v{STR}, {f32(-1.0/D)}, v{STR}")
    split_dup(st, YM, YM + 1, STR, t0)
    st(f"v_mul_f32 v{t2}, {f32(1.0/D)}, v{STR+1}")
    st(f"v_fma_f32 v{t2}, -v{STR}, v{STR}, v{t2}")
    st(f"v_max_f32 v{t2}, 0, v{t2}")
    st(f"v_add_f32 v{t3}, {f32(1e-5)}, v{t2}")
    st(f"v_fmac_f32 v{t2}, {f32(1e-5)}, v{t3}")
    st(f"v_rsq_f32 v{t3}, v{t2}")
    st(f"v_mul_f32 v{vK+4}, v{t2}, v{t3}")
    K0 = math.sqrt(2.0 / math.pi)
    c1 = -2.0 * K0 * LOG2E
    c2 = c1 * 0.044715
    st(f"v_mul_f32 v{vK}, {f32(c1)}, v{t3}")
    st(f"v_mul_f32 v{t2}, v{t3}, v{t3}")
    st(f"v_mul_f32 v{t2}, v{t2}, v{t3}")
    st(f"v_mul_f32 v{vK+2}, {f32(c2)}, v{t2}")
    st(f"v_cvt_f32_u32 v{t0}, v{vHF}")
    st(f"v_fma_f32 v{t0}, -v{t0}, v{vK+4}, v{vK+4}")
    st(f"v_cvt_pk_bf16_f32 v{t1}, v{t0}, v{t0}")
    st(f"v_and_b32 v{t1}, 0xffff0000, v{t1}")
    st(f"v_sub_f32 v{t1}, v{t0}, v{t1}")
    st(f"v_cvt_pk_bf16_f32 v{YM+2}, v{t0}, v{t1}")
    st(f"v_and_b32 v{t2}, 0xffff0000, v{YM+2}")
    st(f"v_sub_f32 v{t1}, v{t1}, v{t2}")
    st(f"v_cvt_pk_bf16_f32 v{YM+3}, v{t1}, v{t1}")
    p2 = pass_items([2])
    p3 = pass_items([3])
    first = merge(p2[:len(p2) // 4], st.items)
    p.add(first)
    p.add(corr(0) + corr(1))
    p.add(merge(p2[len(p2) // 4:], gelu(0), start=1))
    p.add(corr(2))
    stamp(p, "p3pass2")
    p.add(merge(p3, gelu(1)))
    p.add(corr(3))
    stamp(p, "p3pass3")
    p.add(gelu(2))
    p.add(gelu(3))
    stamp(p, "h1stored")
    publish(p, g, 3, "stD")
    stamp(p, "pubD")

    ra.release(base_mark)
    NSLOT = 20
    vA0, vA1, vOo = ra(), ra(), ra()
    AF4 = ra(32, 4)
    ACC4 = ra(64, 4)
    RD4 = ra(64, 4)
    B2R = ra(8, 4)
    OB4 = ra(8, 4)
    p(f"s_mul_i32 s{sE}, s{sW}, {NSLOT*2048}")
    p(f"s_mul_i32 s{sG}, s{sW}, {448*896}")
    p(f"s_lshl_b32 s{sA}, s{sCT}, 7")
    p(f"s_add_u32 s{sG}, s{sG}, s{sA}")

    def ldW(k):
        for j in range(2):
            p(f"s_add_u32 m0, s{sE}, {(k % NSLOT)*2048+j*1024}")
            p(f"s_add_u32 s{sA}, s{sG}, {(16*k+8*j)*896}")
            p(f"buffer_load_dwordx4 v{vW64}, {R(RW2)}, s{sA} offen lds", tag=f"w2_{k}")

    NPRE = OPT.get("npre", 12)
    for k in range(NPRE):
        ldW(k)
    p(f"v_lshlrev_b32 v{t0}, 3, v{vHF}")
    p(f"s_lshl_b32 s{sA}, s{sTf}, 6")
    for gg in range(4):
        p(f"buffer_load_dwordx2 {pr(B2R,2*gg)}, v{t0}, {R(RB2)}, s{sA} offen offset:{16*gg}")
    p(f"v_lshl_add_u32 v{t3}, v{vHF}, 2, v{vR}")
    p(f"v_lshl_add_u32 v{vA0}, v{t3}, 7, v{vMC}")
    p(f"v_lshrrev_b32 v{t3}, 1, v{vR}")
    p(f"v_lshl_add_u32 v{vA0}, v{t3}, 6, v{vA0}")
    p(f"v_xor_b32 v{vA1}, 64, v{vA0}")
    p(f"v_add_u32 v{vA0}, s{sE}, v{vA0}")
    p(f"v_add_u32 v{vA1}, s{sE}, v{vA1}")
    p(f"s_mul_i32 s{sC}, s{sRB64}, {2*112*1024}")
    p(f"s_mul_i32 s{sA}, s{sW}, {28*1024}")
    p(f"s_add_u32 s{sC}, s{sC}, s{sA}")
    p(f"s_add_u32 s{sC}, s{sC}, {WS_H1F}")
    p(f"s_add_u32 s{sD}, s{sC}, {112*1024}")
    p(f"v_and_b32 v{t0}, 31, v1")
    p(f"v_mul_u32_u24 v{t0}, 896, v{t0}")
    p(f"v_lshl_add_u32 v{vOo}, v{vHF}, 4, v{t0}")
    poll(p, g, 3, 14)
    p("s_barrier")
    stamp(p, "syncD")

    def ldB(k):
        for nt in range(2):
            p(f"s_add_u32 s{sA}, s{[sC, sD][nt]}, {k*1024}")
            p(f"buffer_load_dwordx4 a[{8*k+4*nt}:{8*k+4*nt+3}], v{vL16}, {R(RWS)}, s{sA} offen sc1")

    def rdA(k):
        a = AF4 + 8 * (k & 3)
        p.wait_vm(f"w2_{k}")
        for mt in range(2):
            for u in range(2):
                p(f"ds_read_b64_tr_b16 {pr(a,4*mt+2*u)}, v{[vA0, vA1][mt]} offset:{(k % NSLOT)*2048+u*1024}")

    NB0 = 20
    for k in range(NB0):
        ldB(k)
        if k >= NPRE - 4 and k + 4 < NSLOT and k + 4 >= NPRE:
            ldW(k + 4)
    nextW = max(NPRE, NSLOT)
    nextB = NB0
    rdA(0)
    rdA(1)
    for k in range(28):
        if k + 2 < 28:
            rdA(k + 2)
        a = AF4 + 8 * (k & 3)
        for nt in range(2):
            for mt in range(2):
                acc = ACC4 + 16 * (mt + 2 * nt)
                mfma(p, acc, a + 4 * mt, 8 * k + 4 * nt, None if k == 0 else acc, bk="a")
        if nextW < 28 and nextW - NSLOT <= k:
            ldW(nextW)
            nextW += 1
        if nextB < 28:
            ldB(nextB)
            nextB += 1
        if k in (7, 14, 21):
            stamp(p, f"p4k{k}")
    stamp(p, "p4mfma")
    p.barrier()
    splitk_reduce(ACC4, RD4, 0)
    for j in range(8):
        p(f"v_lshlrev_b32 v{t0}, 16, v{HRES+j}")
        p(f"v_and_b32 v{t1}, 0xffff0000, v{HRES+j}")
        p(f"v_lshlrev_b32 v{t2}, 16, v{B2R+j}")
        p(f"v_and_b32 v{t3}, 0xffff0000, v{B2R+j}")
        p(f"v_add_f32 v{t0}, v{t0}, v{t2}")
        p(f"v_add_f32 v{t1}, v{t1}, v{t3}")
        p(f"v_add_f32 v{RD4+2*j}, v{RD4+2*j}, v{t0}")
        p(f"v_add_f32 v{RD4+2*j+1}, v{RD4+2*j+1}, v{t1}")
        p(f"v_cvt_pk_bf16_f32 v{OB4+j}, v{RD4+2*j}, v{RD4+2*j+1}")
    for q in range(2):
        p(f"v_permlane32_swap_b32 v{OB4+4*q}, v{OB4+4*q+2}")
        p(f"v_permlane32_swap_b32 v{OB4+4*q+1}, v{OB4+4*q+3}")
    p(f"s_mul_i32 s{sA}, s{sRTf}, {32*896}")
    p(f"s_lshl_b32 s{sB}, s{sTf}, 6")
    p(f"s_add_u32 s{sA}, s{sA}, s{sB}")
    for q in range(2):
        p(f"buffer_store_dwordx4 {q4(OB4+4*q)}, v{vOo}, {R(ROUT)}, s{sA} offen offset:{32*q}")
    p("L_fin:")
    p("s_waitcnt vmcnt(0)")
    stamp_flush(p)
    body = finalize(p.items, name)
    txt = [f".globl {name}_kernel", ".p2align 8", f".type {name}_kernel,@function", f"{name}_kernel:"]
    txt += body
    txt += ["L_end:", "    s_endpgm"]
    kd = f""".amdhsa_kernel {name}_kernel
  .amdhsa_next_free_vgpr 512
  .amdhsa_next_free_sgpr 102
  .amdhsa_accum_offset 256
  .amdhsa_group_segment_fixed_size 0
  .amdhsa_kernarg_size 96
  .amdhsa_user_sgpr_count 2
  .amdhsa_user_sgpr_kernarg_segment_ptr 1
  .amdhsa_system_sgpr_workgroup_id_x 1
.end_amdhsa_kernel"""
    return "\n".join(txt), kd


def main(out):
    body, kd = gen()
    hdr = open("cdna_kernels/" + NAME + ".s.ref").read().split("; Override launch")[0]
    txt = hdr
    txt += f"; @launch grid=(256,1,1) block=(256,1,1) lds={LDS_BYTES}\n"
    if DIAG:
        txt += "; stamps: " + ",".join(STNAMES) + "\n"
    txt += '.amdgcn_target "amdgcn-amd-amdhsa--gfx950"\n.text\n'
    txt += body + "\n"
    txt += '.section .rodata,"a"\n.p2align 6\n' + kd + "\n"
    open(out, "w").write(txt)


if __name__ == "__main__":
    for a in sys.argv[2:]:
        if a == "diag":
            DIAG = True
        elif "=" in a:
            k, v = a.split("=")
            OPT[k] = int(v)
    main(sys.argv[1])
```

```python
import re

TRANS = ("v_exp_f32", "v_log_f32", "v_rcp_f32", "v_rsq_f32", "v_sqrt_f32", "v_sin_f32", "v_cos_f32")

_reg_re = re.compile(r"^(-?)(?:abs\()?([vsa])(?:(\d+)|\[(\d+):(\d+)\])\)?$")


def regs_of(tok):
    tok = tok.strip()
    if tok in ("vcc", "exec", "m0", "scc"):
        return [(tok, 0)]
    if tok in ("vcc_lo", "vcc_hi"):
        return [("vcc", 0)]
    if tok in ("exec_lo", "exec_hi"):
        return [("exec", 0)]
    m = _reg_re.match(tok)
    if not m:
        return []
    k = m.group(2)
    if m.group(3) is not None:
        return [(k, int(m.group(3)))]
    return [(k, i) for i in range(int(m.group(4)), int(m.group(5)) + 1)]


def split_ops(s):
    out, depth, cur = [], 0, ""
    for ch in s:
        if ch in "[(":
            depth += 1
        if ch in "])":
            depth -= 1
        if ch == "," and depth == 0:
            out.append(cur.strip())
            cur = ""
        else:
            cur += ch
    if cur.strip():
        out.append(cur.strip())
    return out


class Ins:
    __slots__ = ("text", "op", "dst", "src", "kind", "srcC", "srcAB", "tag", "passes", "data", "lds_dma", "extra")

    def __init__(self, text, tag=None):
        self.text = text
        self.tag = tag
        self.extra = None
        t = text.split(";")[0].strip()
        parts = t.split(None, 1)
        self.op = op = parts[0]
        rest = parts[1] if len(parts) > 1 else ""
        ops = split_ops(rest)
        mods = ""
        if ops:
            last = ops[-1].split()
            ops[-1] = last[0]
            mods = " ".join(last[1:])
        self.dst, self.src = [], []
        self.srcC, self.srcAB, self.data = [], [], []
        self.passes = 0
        self.lds_dma = False
        R = [regs_of(o) for o in ops]
        if op.endswith(":") or op.startswith("."):
            self.kind = "label"
        elif op.startswith("v_mfma"):
            self.kind = "mfma"
            self.dst = R[0]
            self.srcAB = R[1] + R[2]
            self.srcC = R[3]
            self.src = self.srcAB + self.srcC
            self.passes = 8 if "32x32" in op else 4
        elif op.startswith("v_"):
            self.kind = "valu"
            if op.startswith("v_cmp"):
                self.dst = R[0]
                self.src = sum(R[1:], [])
            elif op.startswith("v_permlane") and "swap" in op:
                self.dst = R[0] + R[1]
                self.src = R[0] + R[1]
            elif op in ("v_add_co_u32", "v_addc_co_u32", "v_sub_co_u32", "v_subb_co_u32"):
                self.dst = R[0] + R[1]
                self.src = sum(R[2:], [])
            else:
                self.dst = R[0]
                self.src = sum(R[1:], [])
                if op.startswith(("v_fmac", "v_dot2c", "v_pk_fmac")) or (op.startswith("v_mov_b32") and "dpp" in op):
                    self.src += R[0]
                if op.startswith("v_cndmask") and len(R) == 3:
                    self.src += [("vcc", 0)]
        elif op.startswith(("buffer_", "global_")):
            self.kind = "vmem"
            allmods = (" " + mods + " ")
            is_lds = " lds " in allmods or "_lds_" in op
            if op.startswith("buffer_"):
                if op in ("buffer_wbl2", "buffer_inv"):
                    pass
                elif is_lds:
                    self.lds_dma = True
                    self.src = sum(R, []) + [("m0", 0)]
                elif "load" in op:
                    self.dst = R[0]
                    self.src = sum(R[1:], [])
                    if "d16" in op:
                        self.src += R[0]
                elif "atomic" in op:
                    self.data = R[0]
                    self.src = sum(R, [])
                    if " sc0 " in allmods:
                        self.dst = R[0][: max(1, len(R[0]) // (2 if "cmpswap" in op else 1))]
                else:
                    self.data = R[0]
                    self.src = sum(R, [])
            else:
                if is_lds:
                    self.lds_dma = True
                    self.src = sum(R, []) + [("m0", 0)]
                elif "load" in op:
                    self.dst = R[0]
                    self.src = sum(R[1:], [])
                elif "atomic" in op:
                    if " sc0 " in allmods:
                        self.dst = R[0]
                        self.src = sum(R[1:], [])
                        self.data = R[2]
                    else:
                        self.src = sum(R, [])
                        self.data = R[1]
                else:
                    self.data = R[1]
                    self.src = sum(R, [])
        elif op.startswith("ds_"):
            self.kind = "ds"
            if "read" in op or "permute" in op or "swizzle" in op:
                self.dst = R[0]
                self.src = sum(R[1:], [])
            else:
                self.src = sum(R, [])
        elif op.startswith(("s_load", "s_buffer_load", "s_memtime", "s_memrealtime")):
            self.kind = "smem"
            self.dst = R[0]
            self.src = sum(R[1:], [])
        elif op in ("s_waitcnt", "s_nop", "s_barrier", "s_endpgm", "s_sleep", "s_setprio", "s_branch") or op.startswith("s_cbranch"):
            self.kind = "ctl"
        elif op.startswith("s_"):
            self.kind = "salu"
            if op.startswith("s_cmp"):
                self.src = sum(R, [])
            else:
                self.dst = R[0]
                self.src = sum(R[1:], [])
                if "saveexec" in op:
                    self.dst = self.dst + [("exec", 0)]
        else:
            raise ValueError("unknown instruction: " + text)


class Wait:
    def __init__(self, what, tag=None):
        self.what = what
        self.tag = tag


class Raw:
    def __init__(self, text, uses=(), defs=()):
        self.text = text
        self.uses = [r for t in uses for r in regs_of(t)]
        self.defs = [r for t in defs for r in regs_of(t)]


class Prog:
    def __init__(self):
        self.items = []

    def raw(self, text, uses=(), defs=()):
        self.items.append(Raw(text, uses, defs))

    def __call__(self, text, tag=None):
        for line in text.strip().split("\n"):
            line = line.strip()
            if line and not line.startswith(";"):
                self.items.append(Ins(line, tag))

    def add(self, items):
        self.items.extend(items)

    def wait_vm(self, tag):
        self.items.append(Wait("vmtag", tag))

    def wait_vm0(self):
        self.items.append(Wait("vm0"))

    def wait_lgkm0(self):
        self.items.append(Wait("lgkm0"))

    def barrier(self, lgkm=True):
        if lgkm:
            self.wait_lgkm0()
        self("s_barrier")

    def sub(self):
        return Prog()


def merge(main, fill, per=None, start=0):
    idx = [i for i, it in enumerate(main) if isinstance(it, Ins) and it.kind == "mfma"]
    idx = idx[start:]
    out = []
    n = len(idx)
    if n == 0:
        return list(main) + list(fill)
    pos = 0
    total = len(fill)
    slot = 0
    idxset = {i: k for k, i in enumerate(idx)}
    for i, it in enumerate(main):
        out.append(it)
        if i in idxset:
            k = idxset[i] + 1
            want = (total * k + n - 1) // n if per is None else min(total, per * k)
            while pos < want:
                out.append(fill[pos])
                pos += 1
    out.extend(fill[pos:])
    return out


def finalize(items, name="", check_uninit=False):
    out = []
    vm_issued = 0
    vm_done = 0
    lg_issued = 0
    lg_done = 0
    smem_pending = False
    pend_vm = {}
    pend_lg = {}
    pend_smem = set()
    tag_vm = {}
    hist = []
    pos = 0

    def emit(ins):
        nonlocal pos
        out.append(ins)
        if ins.kind == "label":
            return
        hist.append((ins, pos))
        if ins.op == "s_nop":
            pos += int(ins.text.split()[1], 0) + 1
        else:
            pos += 1
        if len(hist) > 40:
            del hist[0]

    def do_wait(vm=None, lg=None):
        nonlocal vm_done, lg_done, smem_pending
        parts = []
        if vm is not None:
            n = vm_issued - vm
            if vm > vm_done:
                parts.append(f"vmcnt({min(n, 63)})")
                vm_done = vm_issued - min(n, 63)
        if lg is not None:
            if smem_pending:
                parts.append("lgkmcnt(0)")
                lg_done = lg_issued
                smem_pending = False
                pend_smem.clear()
            elif lg > lg_done:
                n = lg_issued - lg
                parts.append(f"lgkmcnt({min(n, 15)})")
                lg_done = lg_issued - min(n, 15)
        if parts:
            if out and out[-1].op == "s_waitcnt" and getattr(out[-1], "extra", None) == "auto":
                cur = dict(re.findall(r"(vmcnt|lgkmcnt)\((\d+)\)", out[-1].text))
                for k_, v_ in re.findall(r"(vmcnt|lgkmcnt)\((\d+)\)", " ".join(parts)):
                    cur[k_] = str(min(int(v_), int(cur.get(k_, 99))))
                out[-1].text = "s_waitcnt " + " ".join(f"{k_}({cur[k_]})" for k_ in ("vmcnt", "lgkmcnt") if k_ in cur)
            else:
                w_ = Ins("s_waitcnt " + " ".join(parts))
                w_.extra = "auto"
                emit(w_)

    for it in items:
        if isinstance(it, Raw):
            nv = max([pend_vm[r] for r in it.uses + it.defs if r in pend_vm] + [0])
            nl = max([pend_lg[r] for r in it.uses + it.defs if r in pend_lg] + [0])
            if any(r in pend_smem for r in it.uses + it.defs) and smem_pending:
                nl = max(nl, lg_issued, 1)
            do_wait(vm=nv if nv > vm_done else None, lg=nl if (nl > lg_done or (nl and smem_pending)) else None)
            emit(Ins("s_nop 4"))
            for line in it.text.strip().split("\n"):
                line = line.strip()
                if line and not line.startswith(";"):
                    emit(Ins(line))
            emit(Ins("s_nop 4"))
            continue
        if isinstance(it, Wait):
            if it.what == "vmtag":
                assert it.tag in tag_vm, f"unknown vm tag {it.tag}"
                do_wait(vm=tag_vm[it.tag])
            elif it.what == "vm0":
                do_wait(vm=vm_issued)
            elif it.what == "lgkm0":
                if smem_pending or lg_issued > lg_done:
                    do_wait(lg=lg_issued)
            continue
        ins = it
        if ins.kind == "label" or (ins.kind == "ctl" and (ins.op.startswith("s_cbranch") or ins.op == "s_branch")):
            emit(ins)
            continue
        if ins.op == "s_waitcnt":
            m = re.search(r"vmcnt\((\d+)\)", ins.text)
            if m:
                vm_done = max(vm_done, vm_issued - int(m.group(1)))
            m = re.search(r"lgkmcnt\((\d+)\)", ins.text)
            if m:
                n = int(m.group(1))
                if n == 0:
                    lg_done = lg_issued
                    smem_pending = False
                    pend_smem.clear()
                elif not smem_pending:
                    lg_done = max(lg_done, lg_issued - n)
            emit(ins)
            continue
        need_vm, need_lg = 0, 0
        touch = list(ins.src) + list(ins.dst)
        srcset = set(ins.src)
        for r in touch:
            if r in pend_vm and pend_vm[r] > vm_done and not (ins.kind == "vmem" and r not in srcset):
                need_vm = max(need_vm, pend_vm[r])
            if r in pend_lg and pend_lg[r] > lg_done and not (ins.kind == "ds" and r not in srcset):
                need_lg = max(need_lg, pend_lg[r])
            if r in pend_smem and smem_pending:
                need_lg = max(need_lg, lg_issued, 1)
        if need_vm or need_lg:
            do_wait(vm=need_vm or None, lg=need_lg or None)
        need = 0
        srcs, dsts = set(ins.src), set(ins.dst)
        for (p, ppos) in hist:
            dist = pos - ppos - 1
            if p.op == "s_nop":
                continue
            req = 0
            pd = set(p.dst)
            if p.kind == "valu":
                isdot = p.op.startswith("v_dot")
                if ins.kind == "mfma" and pd & srcs:
                    req = max(req, 3 if isdot else 2)
                if ins.kind == "valu":
                    if p.op.startswith(TRANS) and not ins.op.startswith(TRANS) and pd & srcs:
                        req = max(req, 1)
                    if ins.op.startswith("v_permlane") and pd & srcs:
                        req = max(req, 2)
                    if "dpp" in ins.text and pd & srcs:
                        req = max(req, 2)
                    if ins.op.startswith(("v_readfirstlane", "v_readlane")) and pd & srcs:
                        req = max(req, 1)
                    sg = {r for r in pd if r[0] in ("s", "vcc")}
                    if sg & srcs:
                        req = max(req, 4 if ins.op.startswith(("v_readlane", "v_writelane")) else 2)
                    if isdot and pd & (srcs | dsts):
                        same = ins.op == p.op
                        if same:
                            ab = set(ins.src[:-1]) if ins.op.startswith("v_dot2c") else set(ins.src[:2])
                            if pd & ab:
                                req = max(req, 3)
                        else:
                            req = max(req, 3)
                if ins.kind in ("vmem", "ds") and isdot and pd & srcs:
                    req = max(req, 3)
                if ins.kind == "vmem":
                    sg = {r for r in pd if r[0] in ("s", "vcc")}
                    if sg & srcs:
                        req = max(req, 5)
                if ("exec", 0) in pd:
                    req = max(req, 5)
            elif p.kind == "mfma":
                big = p.passes == 8
                if ins.kind == "mfma":
                    c = set(ins.srcC)
                    if pd & c and not (list(p.dst) == list(ins.srcC) and p.passes == ins.passes):
                        req = max(req, 10 if big else 6)
                    if pd & set(ins.srcAB):
                        req = max(req, 12 if big else 8)
                    if pd & dsts and not (list(p.dst) == list(ins.srcC)):
                        req = max(req, 12 if big else 8)
                elif ins.kind in ("valu", "vmem", "ds"):
                    if pd & (srcs | dsts):
                        req = max(req, 12 if big else 8)
                    if set(p.srcC) & dsts:
                        req = max(req, 7 if big else 3)
            elif p.kind == "salu":
                if ("m0", 0) in pd and ins.kind == "vmem" and ins.lds_dma:
                    req = max(req, 1)
            elif p.kind == "vmem":
                if len(p.data) >= 3 and set(p.data) & dsts:
                    req = max(req, 2)
            if req > dist:
                need = max(need, req - dist)
        while need > 0:
            n = min(need, 16)
            emit(Ins(f"s_nop {n - 1}"))
            need -= n
        emit(ins)
        if ins.kind == "vmem":
            vm_issued += 1
            for r in ins.dst:
                pend_vm[r] = vm_issued
            if ins.tag is not None:
                tag_vm[ins.tag] = vm_issued
        elif ins.kind == "ds":
            lg_issued += 1
            for r in ins.dst:
                pend_lg[r] = lg_issued
        elif ins.kind == "smem":
            lg_issued += 1
            smem_pending = True
            for r in ins.dst:
                pend_smem.add(r)
    return [("" if i.kind == "label" else "    ") + i.text for i in out]


def vr(n, c=1):
    return f"v{n}" if c == 1 else f"v[{n}:{n + c - 1}]"


def ar(n, c=1):
    return f"a{n}" if c == 1 else f"a[{n}:{n + c - 1}]"


def sr(n, c=1):
    return f"s{n}" if c == 1 else f"s[{n}:{n + c - 1}]"


class RegAlloc:
    def __init__(self, start, limit):
        self.next = start
        self.limit = limit
        self.hi = start

    def __call__(self, n=1, align=None):
        if align is None:
            align = 1 if n == 1 else (2 if n == 2 else 4)
        self.next = (self.next + align - 1) // align * align
        r = self.next
        self.next += n
        assert self.next <= self.limit, f"out of registers: {self.next} > {self.limit}"
        self.hi = max(self.hi, self.next)
        return r

    def mark(self):
        return self.next

    def release(self, m):
        self.next = m


def est_cost(it):
    if not isinstance(it, Ins):
        return 0
    if it.kind == "label":
        return 0
    if it.kind == "mfma":
        return 32 if it.passes == 8 else 16
    if it.op.startswith(TRANS) or it.op.startswith("v_permlane"):
        return 8
    if it.op == "s_nop":
        return 4 * (int(it.text.split()[1], 0) + 1)
    if it.kind == "vmem":
        return 20
    return 4


def sprinkle(fg, groups, spacing, start=0, hide=24):
    out = []
    t = 0
    credit = 0
    nxt = start
    gi = 0
    for it in fg:
        if isinstance(it, list):
            out.extend(it)
            t += sum(est_cost(x) for x in it)
            continue
        out.append(it)
        c = est_cost(it)
        if isinstance(it, Ins) and it.kind == "mfma":
            t += c
            credit = hide if it.passes == 8 else 8
        else:
            use = min(credit, c)
            credit -= use
            t += c - use
        while gi < len(groups) and t >= nxt:
            out.extend(groups[gi])
            gc = sum(est_cost(x) for x in groups[gi])
            use = min(credit, gc)
            credit -= use
            t += gc - use
            gi += 1
            nxt = max(nxt + spacing, t + spacing // 2) if spacing else nxt
    for g in groups[gi:]:
        out.extend(g)
    return out


def flat(items):
    out = []
    for it in items:
        if isinstance(it, list):
            out.extend(it)
        else:
            out.append(it)
    return out
```

```python
import sys, math, struct
from dsl import *

NAME = "sequential_preLN__linear_kernel_hedgehog__mixer_channel_mlp__prompt"
S, D, H, DH, F = 2048, 448, 16, 28, 1792

WS_KVP = 0
WS_FLAG = 1 << 20
WS_ST = (1 << 20) + (512 << 10)
WS_OF = 2 << 20
WS_HF = 4 << 20
WS_H1F = 6 << 20
WS_TS = 32 << 20
WS_SIZE = 256 << 20

LOG2E = 1.4426950408889634
DIAG = False
OPT = {}


def f32(x):
    return "0x%08x" % struct.unpack("<I", struct.pack("<f", x))[0]


SX, SWQKV, SWPHI, SWO, SBX, SW1, SB1, SW2, SB2, SOUT, SDBG, SWS = [16 + 2 * i for i in range(12)]
RX, RWQKV, RWPHI, RWS, RWO, RW1, RW2, RB1, RB2, ROUT, RDBG = 40, 44, 48, 52, 56, 60, 64, 68, 72, 76, 80
sW = 4
sH, sRB, sRT = 5, 6, 7
sCT, sRB64 = 8, 9
sFT, sRB3 = 10, 11
sA, sB, sC, sD = 12, 13, 14, 15
sI = 3
sXrow, sHcol, sXR, sRTf, sTf, sRT3, sE = 16, 17, 18, 19, 20, 21, 22
sW1src, sW2src, sWOsrc, sW1k, sW2k = 23, 24, 25, 26, 27
sCx, sCw, sRot, sWkv, sW2Kl = 84, 85, 86, 17, 88
sPo = 28
TBL = [84, 85, 86, 87, 88, 89, 90, 91, 93, 94, 95, 96, 97, 98]
sW1b = [35, 36, 37, 38]
sR3 = 39
sW2src2, sWo2, sC2, sD2, sH1a, sH1b = 29, 30, 31, 32, 33, 34
sBG = 92

L_WKV, L_WQ, L_XR, L_WPHI, L_MISC = 0, 57344, 86016, 151552, 155648
L_PK, L_VF, L_WO = 32768, 155648, 86016
L_I = [0, 57344]
L_EX2 = 147456
L_CSX = 147456
LDS_BYTES = 163840


def R(r):
    return f"s[{r}:{r+3}]"


def srd(p, d, src, nbytes):
    p(f"s_mov_b32 s{d}, s{src}")
    p(f"s_mov_b32 s{d+1}, s{src+1}")
    p(f"s_mov_b32 s{d+2}, {nbytes}")
    p(f"s_mov_b32 s{d+3}, 0x00020000")


NST = [0]
STNAMES = []


def stamp(p, label=""):
    if not DIAG:
        return
    i = NST[0]
    NST[0] += 1
    STNAMES.append(label)
    assert i < 64
    p("s_memtime s[100:101]" if OPT.get("cyc") else "s_memrealtime s[100:101]")
    p(f"v_writelane_b32 v255, s100, {i}")


def stamp_flush(p):
    if not DIAG:
        return
    stamp(p, "end")
    p(f"s_lshl_b32 s{sA}, s2, 2")
    p(f"s_add_u32 s{sA}, s{sA}, s{sW}")
    p(f"s_lshl_b32 s{sA}, s{sA}, 8")
    p(f"s_add_u32 s{sA}, s{sA}, {WS_TS}")
    p("v_lshlrev_b32 v2, 2, v1")
    p(f"buffer_store_dword v255, v2, {R(RWS)}, s{sA} offen")


def xhalf(p, op, a, t):
    p(f"v_mov_b32 v{t}, v{a}")
    p(f"v_permlane32_swap_b32 v{a}, v{t}")
    p(f"{op} v{a}, v{a}, v{t}")


def pr(r, j=0, k="v"):
    return f"{k}[{r+j}:{r+j+1}]"


def q4(r, k="v"):
    return f"{k}[{r}:{r+3}]"


def q16(r):
    return f"v[{r}:{r+15}]"


def mfma(p, d, a, b, c=None, ak="v", bk="v"):
    cc = "0" if c is None else q16(c)
    p(f"v_mfma_f32_32x32x16_bf16 {q16(d)}, {q4(a, ak)}, {q4(b, bk)}, {cc}")


def dma_group(voff, srdreg, sbase, soff, slds, ldsoff, tag):
    return [Ins(f"s_add_u32 m0, s{slds}, {ldsoff}"),
            Ins(f"s_add_u32 s{sBG}, s{sbase}, {soff}"),
            Ins(f"buffer_load_dwordx4 v{voff}, {R(srdreg)}, s{sBG} offen lds", tag)]


def dma_run(voffs, srdreg, sbase, soff0, sstep, slds, lds0, a, b, tag):
    gs = []
    for j in range(a, b):
        grp = []
        if (j & 3) == 0 or j == a:
            grp.append(Ins(f"s_add_u32 m0, s{slds}, {lds0 + (j & ~3)*1024}"))
            grp.append(Ins(f"s_add_u32 s{sBG}, s{sbase}, {soff0 + (j & ~3)*sstep}"))
        grp.append(Ins(f"buffer_load_dwordx4 v{voffs[j & 3]}, {R(srdreg)}, s{sBG} offen offset:{(j & 3)*1024} lds", tag))
        gs.append(grp)
    return gs


def weave(mf, fill, budget=24):
    out, pos = [], 0
    n = len(mf)
    cost = lambda f: sum(est_cost(x) for x in f) if isinstance(f, list) else est_cost(f)
    spent = 0
    for i, it in enumerate(mf):
        out.append(it)
        if isinstance(it, Ins) and it.kind == "mfma":
            spent = 0
        else:
            spent += cost(it)
        nxt_is_mfma = (i + 1 == n) or (isinstance(mf[i + 1], Ins) and mf[i + 1].kind == "mfma")
        if nxt_is_mfma:
            b = budget - spent
            took = False
            while pos < len(fill) and (cost(fill[pos]) <= b or (not took and spent == 0)):
                b -= cost(fill[pos])
                out.append(fill[pos])
                pos += 1
                took = True
    return out, fill[pos:]


def paced(mf, groups, every, first=0):
    out, k, n = [], 0, 0
    for i, it in enumerate(mf):
        out.append(it)
        last = (i + 1 == len(mf)) or (isinstance(mf[i + 1], Ins) and mf[i + 1].kind == "mfma")
        if last:
            if n >= first and (n - first) % every == 0 and k < len(groups):
                out.append(groups[k])
                k += 1
            n += 1
    return out, groups[k:]


def split_pair(p, dst, x, t):
    p(f"v_cvt_pk_bf16_f32 v{t}, v{x}, v{x}")
    p(f"v_and_b32 v{t}, 0xffff0000, v{t}")
    p(f"v_sub_f32 v{t}, v{x}, v{t}")
    p(f"v_cvt_pk_bf16_f32 v{dst}, v{x}, v{t}")


def split_dup(p, dhi, dlo, x, t):
    p(f"v_cvt_pk_bf16_f32 v{dhi}, v{x}, v{x}")
    p(f"v_and_b32 v{t}, 0xffff0000, v{dhi}")
    p(f"v_sub_f32 v{t}, v{x}, v{t}")
    p(f"v_cvt_pk_bf16_f32 v{dlo}, v{t}, v{t}")


def masked(lo, hi, lines):
    q = Prog()
    q(f"s_mov_b32 exec_lo, {lo}")
    q(f"s_mov_b32 exec_hi, {hi}")
    for l in lines:
        q(l)
    q("s_mov_b64 exec, -1")
    return q.items


def softmax_pm(p, P, E, OUT, vsc, T):
    mx, mn, t0, t1 = T, T + 1, T + 2, T + 4
    p(f"v_max3_f32 v{mx}, v{P}, v{P+1}, v{P+2}")
    p(f"v_min3_f32 v{mn}, v{P}, v{P+1}, v{P+2}")
    for j in range(3, 13, 2):
        p(f"v_max3_f32 v{mx}, v{mx}, v{P+j}, v{P+j+1}")
        p(f"v_min3_f32 v{mn}, v{mn}, v{P+j}, v{P+j+1}")
    p(f"v_max_f32 v{mx}, v{mx}, v{P+13}")
    p(f"v_max_f32 v{mn}, -v{mn}, -v{P+13}")
    p(f"v_mov_b32 v{OUT+7}, 0")
    p(f"v_mov_b32 v{OUT+15}, 0")
    p(f"v_permlane32_swap_b32 v{mx}, v{mn}")
    p(f"v_max_f32 v{mx}, v{mx}, v{mn}")
    p(f"v_mul_f32 v{t0}, v{mx}, v{vsc}")
    p(f"v_mul_f32 v{t1}, v{mx}, v{vsc}")
    for j in range(0, 4, 2):
        p(f"v_pk_mul_f32 {pr(P,j)}, {pr(P,j)}, {pr(vsc)} op_sel_hi:[1,0]")
    p(f"v_permlane32_swap_b32 v{t0}, v{t1}")
    for j in range(0, 4, 2):
        p(f"v_pk_add_f32 {pr(E,j)}, {pr(P,j)}, {pr(t0)} op_sel_hi:[1,0] neg_lo:[0,1] neg_hi:[0,1]")
        p(f"v_pk_add_f32 {pr(E+14,j)}, {pr(P,j)}, {pr(t1)} op_sel_hi:[1,0] neg_lo:[1,1] neg_hi:[1,1]")
    for j in range(4, 14, 2):
        p(f"v_pk_fma_f32 {pr(E,j)}, {pr(P,j)}, {pr(vsc)}, {pr(t0)} op_sel_hi:[1,0,0] neg_lo:[0,0,1] neg_hi:[0,0,1]")
        p(f"v_pk_fma_f32 {pr(E+14,j)}, {pr(P,j)}, {pr(vsc)}, {pr(t1)} op_sel_hi:[1,0,0] neg_lo:[1,0,1] neg_hi:[1,0,1]")
    for j in range(28):
        p(f"v_exp_f32 v{E+j}, v{E+j}")
    p(f"v_pk_add_f32 {pr(t0)}, {pr(E)}, {pr(E,2)}")
    p(f"v_pk_add_f32 {pr(t1)}, {pr(E+14)}, {pr(E+14,2)}")
    for j in range(4, 14, 2):
        p(f"v_pk_add_f32 {pr(t0)}, {pr(t0)}, {pr(E,j)}")
        p(f"v_pk_add_f32 {pr(t1)}, {pr(t1)}, {pr(E+14,j)}")
    p(f"v_add_f32 v{mx}, v{t0}, v{t0+1}")
    p(f"v_add_f32 v{mn}, v{t1}, v{t1+1}")
    p(f"v_permlane32_swap_b32 v{mx}, v{mn}")
    p(f"v_add_f32 v{mx}, v{mx}, v{mn}")
    p(f"v_rcp_f32 v{t0}, v{mx}")
    p(f"v_rcp_f32 v{t1}, v{mx}")
    p(f"v_permlane32_swap_b32 v{t0}, v{t1}")
    for sgn, t in ((0, t0), (1, t1)):
        b = E + 14 * sgn
        for j in range(0, 14, 2):
            p(f"v_pk_mul_f32 {pr(b,j)}, {pr(b,j)}, {pr(t)} op_sel_hi:[1,0]")
        for j in range(0, 14, 2):
            p(f"v_cvt_pk_bf16_f32 v{OUT+8*sgn+j//2}, v{b+j}, v{b+j+1}")


class G:
    pass


def publish(p, g, sync, store_tag):
    p.wait_vm(store_tag)
    p.barrier()
    flag(p, g, sync)


def flag(p, g, sync):
    p(f"buffer_store_dwordx2 {pr(g.vTag)}, v{g.vFl[min(sync, 3)]}, {R(RWS)}, 0 offen offset:{sync*128} sc1")


def poll_issue(p, g, sync, n):
    if sync in (0, 2):
        p(f"v_min_u32 v{g.vPo}, {n-1}, v1")
        p(f"v_lshlrev_b32 v{g.vPo}, 3, v{g.vPo}")
    p(f"buffer_load_dwordx2 {pr(g.vPT)}, v{g.vPo}, {R(RWS)}, s{sPo} offen offset:{sync*128} sc1")


def poll_check(p, g, sync):
    t = g.vPT
    p.raw(f"""
    v_cmp_ne_u64 vcc, {pr(t)}, {pr(g.vTag)}
    s_mov_b32 s{sB}, 0
    s_cbranch_vccz L_poll{sync}_done
L_poll{sync}:
    buffer_load_dwordx2 {pr(t)}, v{g.vPo}, {R(RWS)}, s{sPo} offen offset:{sync*128} sc1
    s_waitcnt vmcnt(0)
    v_cmp_ne_u64 vcc, {pr(t)}, {pr(g.vTag)}
    s_add_u32 s{sB}, s{sB}, 1
    s_cbranch_vccz L_poll{sync}_done
    s_cmp_lt_u32 s{sB}, 0x10000
    s_cbranch_scc1 L_poll{sync}
L_poll{sync}_done:
""", uses=[f"v{g.vPo}", pr(g.vTag), pr(t)], defs=[pr(t)])


def poll(p, g, sync, n):
    poll_issue(p, g, sync, n)
    poll_check(p, g, sync)


def gen():
    p = Prog()
    g = G()
    name = NAME
    p("s_cmp_ge_u32 s2, 256")
    p(f"s_cbranch_scc1 L_end")
    p("s_load_dwordx16 s[16:31], s[0:1], 0")
    p("s_load_dwordx8 s[32:39], s[0:1], 64")
    p("s_getpc_b64 s[96:97]")
    p("L_pc:")
    p("v_lshrrev_b32 v1, 6, v0")
    p(f"s_lshr_b32 s{sI}, s2, 3")
    p(f"v_readfirstlane_b32 s{sW}, v1")
    p("v_and_b32 v1, 63, v0")
    ra = RegAlloc(2, 255)
    t0, t1, t2, t3 = ra(), ra(), ra(), ra()
    g.t3 = t3
    vL16 = ra()
    vDum = ra()
    g.vTag = ra(2, 2)
    g.vPT = ra(2, 2)
    g.vFl = [ra() for _ in range(4)]
    vR, vMC, vHF = ra(), ra(), ra()
    vOnes = ra()
    vW64 = [ra() for _ in range(4)]
    vW1 = [ra() for _ in range(4)]
    vEp = ra()
    vTch = ra()
    g.vPo = ra()
    vSelL, vSelH = ra(), ra()
    PHQ = ra(16, 4)
    XRES, HRES = PHQ, PHQ + 8
    p1_mark = ra.mark()
    vCs = ra(2, 2)
    vAw, vAi0 = ra(), ra()
    vB4 = [[ra(), ra()] for _ in range(3)]
    base_mark = ra.mark()
    assert base_mark - p1_mark <= 11
    ra.release(p1_mark)
    p(f"s_and_b32 s{sB}, s{sI}, 7")
    p(f"s_lshl_b32 s{sB}, s{sB}, 2")
    p(f"s_add_u32 s{sB}, s{sB}, s{sW}")
    p(f"s_lshl_b32 s{sB}, s{sB}, 11")
    p(f"v_and_b32 v{t0}, 15, v1")
    p(f"v_lshl_add_u32 v{t0}, v{t0}, 7, s{sB}")
    p(f"v_min_u32 v{t0}, L_end-L_pc, v{t0}")
    p(f"global_load_dword v{vDum}, v{t0}, s[96:97]")
    p(f"s_and_b32 s{sB}, s2, 3")
    p(f"s_lshl_b32 s{sB}, s{sB}, 2")
    p(f"s_and_b32 s{sRB}, s{sI}, 3")
    p(f"s_lshr_b32 s{sH}, s{sI}, 2")
    p(f"s_lshl_b32 s{sRot}, s{sRB}, 1")
    p(f"s_add_u32 s{sRot}, s{sRot}, s{sH}")
    p(f"s_sub_u32 s{sC}, s{sRot}, 7")
    p(f"s_cmp_ge_u32 s{sRot}, 7")
    p(f"s_cselect_b32 s{sRot}, s{sC}, s{sRot}")
    if not OPT.get("rot", 1):
        p(f"s_mov_b32 s{sRot}, 0")
    p(f"s_add_u32 s{sRB}, s{sRB}, s{sB}")
    p(f"s_and_b32 s{sB}, s2, 4")
    p(f"s_lshl_b32 s{sB}, s{sB}, 1")
    p(f"s_add_u32 s{sH}, s{sH}, s{sB}")
    p(f"s_lshl_b32 s{sRT}, s{sRB}, 2")
    p(f"s_add_u32 s{sRT}, s{sRT}, s{sW}")
    stamp(p, "start")

    vX = [ra() for _ in range(4)]
    vWkv = [ra(), ra()]
    vWq = ra()
    vXr = [ra() for _ in range(4)]
    vAphi, vApk, vBv, vPkw = [ra() for _ in range(4)]
    vAk, vAv, vAq = [[ra() for _ in range(4)] for _ in range(3)]
    vS, vQ, vCq = ra(), ra(), ra()
    vCk = ra(2, 2)
    vCv = vCk + 1
    vRS = ra(2, 2)
    vSC = ra(2, 2)
    vMisc, vMr = ra(), ra()
    T = ra(6, 2)
    X = [ra(16, 4), ra(16, 4)]
    WF = [ra(32, 4), ra(32, 4)]
    AK, AV = ra(16, 4), ra(16, 4)
    AQ = WF[1] + 16
    XM, CMk, CMv = ra(4, 4), ra(4, 4), ra(4, 4)
    sXbeg, sXend, sWbeg, sXRb, sDq = 89, 90, 91, 88, 93
    p(f"v_lshrrev_b32 v{t0}, 3, v1")
    p(f"v_mul_u32_u24 v{t3}, 896, v{t0}")
    p(f"v_and_b32 v{t1}, 7, v1")
    p(f"v_lshrrev_b32 v{t2}, 4, v1")
    p(f"v_xor_b32 v{t1}, v{t1}, v{t2}")
    p(f"v_lshl_add_u32 v{vX[0]}, v{t1}, 4, v{t3}")
    p(f"v_xor_b32 v{t1}, 4, v{t1}")
    p(f"v_lshl_add_u32 v{vX[1]}, v{t1}, 4, v{t3}")
    p(f"v_add_u32 v{vX[1]}, {8*896-1024}, v{vX[1]}")
    p(f"v_add_u32 v{vX[2]}, {16*896-2048}, v{vX[0]}")
    p(f"v_add_u32 v{vX[3]}, {16*896-2048}, v{vX[1]}")
    p(f"v_mul_u32_u24 v{t0}, 2688, v{t0}")
    p(f"v_lshrrev_b32 v{t1}, 2, v1")
    p(f"v_xor_b32 v{t1}, v{t1}, v{t2}")
    p(f"v_and_b32 v{t1}, 1, v{t1}")
    p(f"v_and_b32 v{t2}, 3, v1")
    p(f"v_lshlrev_b32 v{t2}, 4, v{t2}")
    p(f"v_lshl_add_u32 v{vW1[0]}, v{t1}, 6, v{t2}")
    p(f"v_mul_u32_u24 v{t1}, 896, v{t1}")
    p(f"v_add3_u32 v{vWkv[0]}, v{t0}, v{t1}, v{t2}")
    p(f"v_add_u32 v{vWkv[0]}, 896, v{vWkv[0]}")
    p(f"v_add_u32 v{vWkv[1]}, {8*2688-1024}, v{vWkv[0]}")
    p(f"s_mul_i32 s{sXbeg}, s{sRT}, {32*896}")
    p(f"s_add_u32 s{sXend}, s{sXbeg}, 896")
    p(f"s_lshl_b32 s{sA}, s{sRot}, 7")
    p(f"s_add_u32 s{sCx}, s{sXbeg}, s{sA}")
    p(f"s_mul_i32 s{sC}, s{sH}, 56")
    p(f"s_cmp_eq_u32 s{sH}, 15")
    p(f"s_cselect_b32 s{sD}, 8, 0")
    p(f"s_sub_u32 s{sC}, s{sC}, s{sD}")
    p(f"s_mul_i32 s{sWbeg}, s{sW}, {16*2688}")
    p(f"s_add_u32 s{sWbeg}, s{sWbeg}, s{sC}")
    p(f"s_mul_i32 s{sA}, s{sRot}, {64*2688}")
    p(f"s_add_u32 s{sCw}, s{sWbeg}, s{sA}")
    p(f"s_lshl_b32 s{sXRb}, s{sW}, 14")
    p(f"s_add_u32 s{sXRb}, s{sXRb}, {L_XR}")
    p(f"s_mov_b32 s{RX+2}, {S*D*2}")
    p(f"s_mov_b32 s{RX+3}, 0x00020000")
    p(f"s_mov_b32 s{RWQKV+2}, {D*3*D*2}")
    p(f"s_mov_b32 s{RWQKV+3}, 0x00020000")
    p(f"s_mov_b64 s[{RX}:{RX+1}], s[{SX}:{SX+1}]")
    p(f"s_mov_b64 s[{RWQKV}:{RWQKV+1}], s[{SWQKV}:{SWQKV+1}]")
    p(f"s_lshl_b32 s{sWkv}, s{sW}, 11")

    def adv():
        q = Prog()
        q(f"s_add_u32 s{sCw}, s{sCw}, {64*2688}")
        q(f"s_add_u32 s{sCx}, s{sCx}, 128")
        q(f"s_cmp_eq_u32 s{sCx}, s{sXend}")
        q(f"s_cselect_b32 s{sCx}, s{sXbeg}, s{sCx}")
        q(f"s_cselect_b32 s{sCw}, s{sWbeg}, s{sCw}")
        return q.items

    def pos_groups(pos):
        gs = []
        for j in range(2):
            gs.append(([Ins(f"s_add_u32 m0, s{sWkv}, {L_WKV + pos*8192}")] if j == 0 else []) +
                      [Ins(f"buffer_load_dwordx4 v{vWkv[j]}, {R(RWQKV)}, s{sCw} offen offset:{j*1024} lds", f"p{pos}")])
        for j in range(4):
            gs.append(([Ins(f"s_add_u32 m0, s{sXRb}, {(pos & 3)*4096}")] if j == 0 else []) +
                      [Ins(f"buffer_load_dwordx4 v{vX[j]}, {R(RX)}, s{sCx} offen offset:{j*1024} lds", f"p{pos}")])
        gs.append(adv())
        return gs

    def wq_groups():
        return [[Ins(f"s_add_u32 m0, s{sXrow}, {L_WQ + pos*4096}")] + adv()[:0] +
                [Ins(f"buffer_load_dwordx4 v{vWq}, {R(RWQKV)}, s{sCw} offen lds", "wq")] + adv() for pos in range(7)]

    p.add(flat(pos_groups(0)))
    stamp(p, "iss0")
    q = Prog()
    q(f"v_bfe_u32 v{vR}, v1, 2, 2")
    q(f"v_and_b32 v{vMC}, 3, v1")
    q(f"v_lshlrev_b32 v{vMC}, 3, v{vMC}")
    q(f"v_bfe_u32 v{vHF}, v1, 4, 1")
    q(f"v_lshl_add_u32 v{vMC}, v{vHF}, 5, v{vMC}")
    q(f"v_lshrrev_b32 v{vHF}, 5, v1")
    q(f"v_lshl_add_u32 v{t3}, v{vHF}, 3, v{vR}")
    q(f"v_add_u32 v{t0}, s{sD}, v{vMC}")
    q(f"v_and_b32 v{t0}, 63, v{t0}")
    q(f"v_lshl_add_u32 v{vAk[0]}, v{t3}, 7, v{t0}")
    q(f"v_lshl_add_u32 v{vAq[0]}, v{t3}, 6, v{t0}")
    q(f"v_lshrrev_b32 v{t3}, 1, v{vR}")
    q(f"v_lshl_add_u32 v{vAk[0]}, v{t3}, 6, v{vAk[0]}")
    q(f"v_add_u32 v{vAk[0]}, s{sWkv}, v{vAk[0]}")
    q(f"v_xor_b32 v{vAv[0]}, 64, v{vAk[0]}")
    for s in range(1, 4):
        q(f"v_xor_b32 v{vAk[s]}, {s*2048}, v{vAk[0]}")
        q(f"v_xor_b32 v{vAv[s]}, {s*2048}, v{vAv[0]}")
    q(f"v_and_b32 v{t0}, 31, v1")
    q(f"v_bfe_u32 v{t1}, v1, 1, 3")
    q(f"v_xor_b32 v{t1}, v{t1}, v{vHF}")
    q(f"s_lshl_b32 s{sA}, s{sW}, 1")
    q(f"v_xor_b32 v{t1}, s{sA}, v{t1}")
    q(f"v_lshlrev_b32 v{t0}, 7, v{t0}")
    q(f"v_add_u32 v{t0}, s{sXRb}, v{t0}")
    for s in range(4):
        q(f"v_xor_b32 v{t3}, {2*s}, v{t1}")
        q(f"v_lshl_add_u32 v{vXr[s]}, v{t3}, 4, v{t0}")
    q(f"v_mov_b32 v{vOnes}, 0x3f803f80")
    for r in (vS, vQ, vCk, vCv, vCq):
        q(f"v_mov_b32 v{r}, 0")
    q(f"v_lshlrev_b32 v{vL16}, 4, v1")
    srd(q, RDBG, SDBG, 256)
    q("s_memrealtime s[98:99]")
    q(f"s_or_b32 s{sA}, s2, s{sW}")
    q(f"v_or_b32 v{vEp}, s{sA}, v1")
    q(f"v_lshlrev_b32 v{vEp}, 12, v{vEp}")
    srd(q, RWPHI, SWPHI, H * DH * DH * 2)
    srd(q, RWS, SWS, WS_SIZE)
    q(f"s_or_b32 s98, s98, 1")
    q(f"v_mov_b32 v{g.vPT}, s98")
    q(f"v_mov_b32 v{g.vPT+1}, s99")
    q(f"buffer_store_dwordx2 {pr(g.vPT)}, v{vEp}, {R(RDBG)}, 0 offen sc1")
    q(f"s_lshl_b32 s{sXrow}, s{sW}, 10")
    q(f"v_lshrrev_b32 v{t0}, 2, v1")
    q(f"v_and_b32 v{t2}, 3, v1")
    q(f"v_lshlrev_b32 v{t2}, 4, v{t2}")
    q(f"v_mul_u32_u24 v{t1}, 2688, v{t0}")
    q(f"v_add_u32 v{vWq}, v{t1}, v{t2}")
    q(f"v_lshrrev_b32 v{t0}, 3, v1")
    q(f"v_mul_u32_u24 v{t1}, 896, v{t0}")
    q(f"v_add_u32 v{vW64[0]}, v{t1}, v{vW1[0]}")
    q(f"v_lshl_add_u32 v{vW1[0]}, v{t1}, 2, v{vW1[0]}")
    ess = q.items

    d = Prog()
    srd(d, RWO, SWO, D * D * 2)
    srd(d, RW1, SW1, D * F * 2)
    srd(d, RW2, SW2, F * D * 2)
    srd(d, RB1, SB1, F * 2)
    srd(d, RB2, SB2, D * 2)
    srd(d, ROUT, SOUT, S * D * 2)
    for r in (XM, CMk, CMv):
        d(f"v_mov_b32 v{r+2}, 0")
        d(f"v_mov_b32 v{r+3}, 0")
    for j in range(1, 4):
        d(f"v_add_u32 v{vW64[j]}, {j*(8*896-1024)}, v{vW64[0]}")
        d(f"v_add_u32 v{vW1[j]}, {j*(8*3584-1024)}, v{vW1[0]}")
    d(f"v_add_u32 v{vAq[0]}, s{sXrow}, v{vAq[0]}")
    d(f"v_add_u32 v{vAq[0]}, {L_WQ}, v{vAq[0]}")
    for s in range(1, 4):
        d(f"v_xor_b32 v{vAq[s]}, {s*1024}, v{vAq[0]}")
    d(f"s_and_b32 s{sA}, s2, 7")
    d(f"s_lshr_b32 s{sCT}, s{sI}, 2")
    d(f"s_and_b32 s{sRB64}, s{sI}, 3")
    d(f"s_lshl_b32 s{sB}, s{sA}, 2")
    d(f"s_add_u32 s{sRB64}, s{sRB64}, s{sB}")
    d(f"s_lshr_b32 s{sFT}, s{sI}, 1")
    d(f"s_and_b32 s{sRB3}, s{sI}, 1")
    d(f"s_lshl_b32 s{sB}, s{sA}, 1")
    d(f"s_add_u32 s{sRB3}, s{sRB3}, s{sB}")
    d(f"s_lshl_b32 s{sRT3}, s{sRB3}, 2")
    d(f"s_add_u32 s{sRT3}, s{sRT3}, s{sW}")
    d(f"s_lshr_b32 s{sB}, s{sW}, 1")
    d(f"s_lshl_b32 s{sRTf}, s{sRB64}, 1")
    d(f"s_add_u32 s{sRTf}, s{sRTf}, s{sB}")
    d(f"s_and_b32 s{sB}, s{sW}, 1")
    d(f"s_lshl_b32 s{sTf}, s{sCT}, 1")
    d(f"s_add_u32 s{sTf}, s{sTf}, s{sB}")
    d(f"v_lshl_add_u32 v{t3}, v{vHF}, 2, v{vR}")
    d(f"v_mul_u32_u24 v{vAphi}, 56, v{t3}")
    d(f"v_add_u32 v{vAphi}, v{vAphi}, v{vMC}")
    d(f"v_add_u32 v{vAphi}, {L_WPHI}, v{vAphi}")
    d(f"v_cmp_eq_u32 vcc, 56, v{vMC}")
    d(f"v_add_u32 v{t0}, {2048 - 8}, v{vAphi}")
    d(f"v_bfe_u32 v{t1}, v1, 4, 1")
    d(f"v_cndmask_b32 v{vAphi}, v{vAphi}, v{t0}, vcc")
    d(f"v_lshl_add_u32 v{t0}, v{t1}, 2, v{vR}")
    d(f"v_lshl_add_u32 v{t0}, v{vHF}, 4, v{t0}")
    d(f"v_mul_u32_u24 v{t0}, 136, v{t0}")
    d(f"v_and_b32 v{t2}, 3, v1")
    d(f"v_lshl_add_u32 v{t0}, v{t2}, 3, v{t0}")
    d(f"s_lshl_b32 s{sB}, s{sW}, 5")
    d(f"s_add_u32 s{sB}, s{sB}, {L_PK}")
    d(f"v_add_u32 v{vApk}, s{sB}, v{t0}")
    d(f"v_and_b32 v{t0}, 15, v1")
    d(f"v_lshlrev_b32 v{t0}, 4, v{t0}")
    d(f"v_lshl_add_u32 v{t0}, v{t1}, 9, v{t0}")
    d(f"v_lshl_add_u32 v{vBv}, v{vHF}, 10, v{t0}")
    d(f"v_add_u32 v{vBv}, {L_VF}, v{vBv}")
    d(f"v_and_b32 v{t0}, 31, v1")
    d(f"s_add_u32 s{sB}, s{sWkv}, {L_VF}")
    d(f"v_lshl_add_u32 v{vMisc}, v{t0}, 2, s{sB}")
    d(f"v_lshl_add_u32 v{vMr}, v{vHF}, 4, s{sB}")
    d(f"v_mul_u32_u24 v{t0}, 136, v{t0}")
    d(f"v_lshl_add_u32 v{t0}, v{vHF}, 3, v{t0}")
    d(f"s_mul_i32 s{sB}, s{sW}, {32*136}")
    d(f"s_add_u32 s{sB}, s{sB}, {L_PK}")
    d(f"v_add_u32 v{vPkw}, s{sB}, v{t0}")
    d(f"s_lshl_b32 s{sB}, s{sCT}, 7")
    d(f"s_mul_i32 s{sWOsrc}, s{sW}, {15*8*896}")
    d(f"s_add_u32 s{sWOsrc}, s{sWOsrc}, s{sB}")
    d(f"s_mul_i32 s{sW2src}, s{sW}, {16*896}")
    d(f"s_add_u32 s{sW2src}, s{sW2src}, s{sB}")
    d(f"s_lshr_b32 s{sWo2}, s{sW}, 1")
    d(f"s_lshl_b32 s{sWo2}, s{sWo2}, 3")
    d(f"s_and_b32 s{sW2src2}, s{sW}, 1")
    d(f"s_add_u32 s{sWo2}, s{sWo2}, s{sW2src2}")
    d(f"s_mul_i32 s{sW2src2}, s{sWo2}, {16*896}")
    d(f"s_add_u32 s{sW2src2}, s{sW2src2}, s{sB}")
    d(f"s_lshl_b32 s{sWo2}, s{sWo2}, 10")
    d(f"s_lshl_b32 s{sB}, s{sFT}, 8")
    d.items.append([Ins(f"s_sub_u32 s{sE}, s{sFT}, 7"), Ins(f"s_cmp_ge_u32 s{sFT}, 7"), Ins(f"s_cselect_b32 s{sR3}, s{sE}, s{sFT}"),
                    Ins(f"s_sub_u32 s{sE}, s{sR3}, 7"), Ins(f"s_cmp_ge_u32 s{sR3}, 7"), Ins(f"s_cselect_b32 s{sR3}, s{sE}, s{sR3}")])
    if not OPT.get("rot3", 1):
        d(f"s_mov_b32 s{sR3}, 0")
    d(f"s_and_b32 s{sW1src}, s{sW}, 1")
    d(f"s_mul_i32 s{sW1src}, s{sW1src}, {32*3584}")
    d(f"s_add_u32 s{sW1src}, s{sW1src}, s{sB}")
    d(f"s_mul_i32 s{sW2k}, s{sW}, {16*3584}")
    d(f"s_add_u32 s{sW2k}, s{sW2k}, s{sB}")
    for blk in range(4):
        r_ = sW1b[blk]
        if blk < 3:
            d(f"s_lshr_b32 s{r_}, s{sW}, 1")
            d(f"s_add_u32 s{r_}, s{r_}, s{sR3}")
            d(f"s_add_u32 s{r_}, s{r_}, {2*blk}")
        else:
            d(f"s_add_u32 s{r_}, s{sR3}, 6")
        d.items.append([Ins(f"s_sub_u32 s{sE}, s{r_}, 7"), Ins(f"s_cmp_ge_u32 s{r_}, 7"), Ins(f"s_cselect_b32 s{r_}, s{sE}, s{r_}")])
        d(f"s_mul_i32 s{r_}, s{r_}, {64*3584}")
        d(f"s_add_u32 s{r_}, s{r_}, s{sW1src if blk < 3 else sW2k}")
    d(f"s_lshl_b32 s{sW1k}, s{sW}, 12")
    d(f"s_mul_i32 s{sXR}, s{sW}, {15*1024}")
    d(f"s_and_b32 s{sC}, s{sW}, 1")
    d(f"s_lshl_b32 s{sC}, s{sC}, 10")
    d(f"s_lshr_b32 s{sB}, s{sW}, 1")
    d(f"s_lshl_b32 s{sB}, s{sB}, 2")
    d(f"s_add_u32 s{sC}, s{sC}, s{sB}")
    d(f"s_mul_i32 s{sB}, s{sH}, {DH*DH*2}")
    d(f"s_add_u32 s{sC}, s{sC}, s{sB}")
    fl = Prog()
    fl(f"s_and_b32 s{sA}, s2, 7")
    fl(f"s_lshl_b32 s{sPo}, s2, 10")
    fl(f"s_add_u32 s{sPo}, s{sPo}, {WS_FLAG}")
    fl(f"s_lshl_b32 s{sB}, s{sW}, 2")
    fl(f"v_add_u32 v{t0}, s{sB}, v1")
    fl(f"v_mov_b32 v{t3}, 0xffff0000")
    fl(f"s_lshr_b32 s{sB}, s{sH}, 3")
    fl(f"s_lshl_b32 s{sB}, s{sB}, 2")
    fl(f"s_and_b32 s{sE}, s{sH}, 7")
    fl(f"s_lshl_b32 s{sE}, s{sE}, 5")
    fl(f"s_add_u32 s{sB}, s{sB}, s{sE}")
    fl(f"s_lshl_b32 s{sB}, s{sB}, 10")
    fl(f"s_lshl_b32 s{sE}, s{sRB}, 3")
    fl(f"s_add_u32 s{sB}, s{sB}, s{sE}")
    fl(f"s_add_u32 s{sB}, s{sB}, {WS_FLAG}")
    fl(f"v_lshrrev_b32 v{t1}, 2, v{t0}")
    fl(f"v_and_b32 v{t2}, 3, v{t0}")
    fl(f"v_cmp_gt_u32 vcc, 4, v1")
    fl(f"v_lshl_add_u32 v{t1}, v{t2}, 3, v{t1}")
    fl(f"v_lshl_add_u32 v{t1}, v{t1}, 10, s{sB}")
    fl(f"v_cndmask_b32 v{g.vFl[0]}, v{t3}, v{t1}, vcc")
    fl(f"v_cmp_gt_u32 s[94:95], 14, v{t0}")
    fl(f"v_and_b32 v{t1}, 1, v{t0}")
    fl(f"v_lshrrev_b32 v{t2}, 1, v{t0}")
    fl(f"s_and_b64 vcc, vcc, s[94:95]")
    fl(f"v_lshl_add_u32 v{t1}, v{t2}, 2, v{t1}")
    fl(f"v_lshlrev_b32 v{t1}, 13, v{t1}")
    for sync, srb, sslot in ((1, sRB, sH), (3, sRB3, sFT)):
        fl(f"s_lshr_b32 s{sB}, s{srb}, 1")
        fl(f"s_and_b32 s{sE}, s{srb}, 1")
        fl(f"s_lshl_b32 s{sE}, s{sE}, 4")
        fl(f"s_add_u32 s{sB}, s{sB}, s{sE}")
        fl(f"s_lshl_b32 s{sB}, s{sB}, 10")
        fl(f"s_lshl_b32 s{sE}, s{sslot}, 3")
        fl(f"s_add_u32 s{sB}, s{sB}, s{sE}")
        fl(f"s_add_u32 s{sB}, s{sB}, {WS_FLAG}")
        fl(f"v_add_u32 v{t2}, s{sB}, v{t1}")
        fl(f"v_cndmask_b32 v{g.vFl[sync]}, v{t3}, v{t2}, vcc")
    fl(f"s_lshr_b32 s{sB}, s{sRB64}, 1")
    fl(f"s_and_b32 s{sB}, s{sB}, 1")
    fl(f"s_lshl_b32 s{sB}, s{sB}, 3")
    fl(f"s_add_u32 s{sB}, s{sB}, s{sA}")
    fl(f"s_lshl_b32 s{sB}, s{sB}, 10")
    fl(f"s_and_b32 s{sE}, s{sRB64}, 1")
    fl(f"s_mul_i32 s{sE}, s{sE}, 7")
    fl(f"s_add_u32 s{sE}, s{sE}, s{sCT}")
    fl(f"s_lshl_b32 s{sE}, s{sE}, 3")
    fl(f"s_add_u32 s{sB}, s{sB}, s{sE}")
    fl(f"s_add_u32 s{sB}, s{sB}, {WS_FLAG}")
    fl(f"v_lshl_add_u32 v{t2}, v{t0}, 14, s{sB}")
    fl(f"v_cndmask_b32 v{g.vFl[2]}, v{t3}, v{t2}, vcc")
    LA = OPT.get("la", 3)
    p.add(sprinkle(ess + d.items, sum([pos_groups(k) for k in range(1, LA)], []), OPT.get("sp0", 56)))
    stamp(p, "iss2")

    def w_reads(pos, s):
        b = pos & 1
        ks = 4 * pos + s
        wk, wv = WF[b] + 8 * s, WF[b] + 8 * s + 4
        return [Ins(f"ds_read_b64_tr_b16 {pr(wk,2*u)}, v{vAk[s]} offset:{pos*8192+u*512}") for u in range(2)] + \
               [Ins(f"ds_read_b64_tr_b16 {pr(wv,2*u)}, v{vAv[s]} offset:{pos*8192+u*512}") for u in range(2)]

    def x_read(pos, s, acc=False):
        if acc:
            xa = 4 * (4 * pos + s)
            return Ins(f"ds_read_b128 a[{xa}:{xa+3}], v{vXr[s]} offset:{(pos & 3) * 4096}")
        return Ins(f"ds_read_b128 {q4(X[pos & 1]+4*s)}, v{vXr[s]} offset:{(pos & 3) * 4096}")

    def dots(pos):
        b = pos & 1
        out = [Ins(l) for j in range(16) for l in (f"v_dot2c_f32_bf16 v{vS}, v{X[b]+j}, v{vOnes}", f"v_dot2c_f32_bf16 v{vQ}, v{X[b]+j}, v{X[b]+j}")]
        out += [Ins(f"v_dot2c_f32_bf16 v{vCk + (j >> 2)}, v{WF[b]+j}, v{vOnes}") for j in range(8)]
        return out

    def touch(srdreg, k):
        return [Ins(f"s_mov_b32 s{sBG}, {k << 20}"), Ins(f"buffer_load_dword v{vDum}, v{vTch}, {R(srdreg)}, s{sBG} offen")]

    def wo_groups(a, b):
        return dma_run(vW64, RWO, sWOsrc, 0, 8 * 896, sXR, L_WO, a, b, "wo")

    def w1r(a, b):
        gs = []
        for im in range(2):
            for blk in range(4):
                k0, n = 14 * im + 4 * blk, (4 if blk < 3 else 2)
                lo, hi = max(a, k0), min(b, k0 + n)
                if lo < hi:
                    if blk < 3:
                        gs += dma_run(vW1, RW1, sW1b[blk], 128 * im, 8 * 3584, sW1k, L_I[im] + blk * 16384, lo - k0, hi - k0, "w1")
                    else:
                        gs += dma_run(vW1, RW1, sW1b[3], 128 * im, 8 * 3584, sWkv, L_I[im] + 49152, lo - k0, hi - k0, "w1")
        return gs
    wa, wa2, wb, wc, wd = 0, OPT.get("wa2", 2), OPT.get("wb", 9), OPT.get("wc", 14), OPT.get("wd", 18)
    assert wa <= 8 and wa2 <= 14 and 14 <= wc and wd <= 18

    ep = Prog()
    ep(f"v_mov_b32 v{vTch}, 0")
    ep(f"buffer_load_dwordx2 {pr(g.vTag)}, v{vTch}, {R(RDBG)}, 0 offen sc1")
    ep(f"s_lshl_b32 s{sBG}, s{sI}, 2")
    ep(f"s_add_u32 s{sBG}, s{sBG}, s{sW}")
    ep(f"s_lshl_b32 s{sBG}, s{sBG}, 7")
    ep(f"v_lshl_add_u32 v{vTch}, v1, 14, s{sBG}")
    tch = OPT.get("touch", 1)
    TCH = [touch(RWO, 0), touch(RW1, 0), touch(RW1, 1), touch(RW2, 0), touch(RW2, 1),
           [Ins(f"v_lshlrev_b32 v{vTch}, 7, v1"), Ins(f"buffer_load_dword v{vDum}, v{vTch}, {R(RB1)}, 0 offen"),
            Ins(f"buffer_load_dword v{vDum}, v{vTch}, {R(RB2)}, 0 offen")]] if tch else [[]] * 6
    tsel = OPT.get("tsel", 0b100111)
    TW2 = TCH[3:5]
    TCH = [t_ for i_, t_ in enumerate(TCH) if tsel >> i_ & 1]
    nt4, nt5 = OPT.get("nt4", 1), OPT.get("nt5", 3)
    wphi_g = [Ins(f"s_add_u32 m0, s{sXrow}, {L_WPHI}"), Ins("s_nop 0"), Ins(f"buffer_load_dwordx4 v{vL16}, {R(RWPHI)}, s{sC} offen lds", "wphi")]
    nwq3 = OPT.get("nwq3", 2)
    late = {3: [wphi_g, ep.items] + wq_groups()[:nwq3], 4: wq_groups()[nwq3:] + TCH[:nt4], 5: TCH[nt4:nt5]}

    p.wait_vm("p0")
    p("s_barrier")
    stamp(p, "pos0")
    for s in range(4):
        p.add([x_read(0, s)] + w_reads(0, s))
    PH = X[1]
    KB = X[1] + 8
    VB = X[0]
    OUT = WF[1]
    CS = WF[1] + 16
    E = WF[0]
    for pos in range(7):
        b = pos & 1
        if pos < 6:
            p.wait_vm(f"p{pos+1}")
            p.barrier(lgkm=(pos > 0))
        else:
            p.wait_vm("wphi")
            p.barrier()
        if pos in (2, 4, 6):
            stamp(p, f"it{pos}")
        m = Prog()
        for s in range(4):
            xr = X[b] + 4 * s
            wk, wv = WF[b] + 8 * s, WF[b] + 8 * s + 4
            first = (pos == 0 and s == 0)
            mfma(m, AK, wk, xr, None if first else AK)
            mfma(m, AV, xr, wv, None if first else AV)
        if pos < 6:
            rd = [x_read(pos + 1, s) for s in range(4)]
            wr_ = [x for s in range(4) for x in w_reads(pos + 1, s)]
            nlate = OPT.get("nlate", 6)
            acc_w = [Ins(f"v_accvgpr_write_b32 a{16*pos+j}, v{X[b]+j}") for j in range(16)]
            bg = pos_groups(pos + LA) if pos + LA < 7 else []
            bg += late.get(pos, [])
            early = rd[:2] + wr_[:2] + rd[2:] + wr_[2:16 - nlate]
            o = []
            per = (len(early) + 7) // 8
            nbm = OPT.get("nbm", 4)
            bm, bd = bg[:nbm], bg[nbm:]
            for i_, mm in enumerate(m.items):
                o.append(mm)
                o += early[per * i_:per * (i_ + 1)]
                if i_ % 2 == 1 and bm:
                    o.append(bm.pop(0))
                else:
                    o += acc_w[:4]
                    acc_w = acc_w[4:]
            p.add(o + acc_w)
            dd = (dots(0) if pos == 0 else []) + dots(pos + 1)
            lategroups = []
            lw = wr_[16 - nlate:]
            while lw or bm or bd:
                if lw:
                    lategroups.append(lw[:2])
                    lw = lw[2:]
                if bm:
                    lategroups.append(bm.pop(0))
                elif bd:
                    lategroups.append(bd.pop(0))
            p.add(sprinkle(dd, lategroups, OPT.get("spd", 28), hide=0))
            if pos == 5:
                p(f"s_lshl_b32 s{sA}, s{sW}, 9")
                p(f"s_add_u32 s{sA}, s{sA}, {L_CSX}")
                p(f"v_lshl_add_u32 v{t2}, v1, 3, s{sA}")
                p(f"ds_write_b64 v{t2}, {pr(vCk)}")
                p(f"v_lshlrev_b32 v{t2}, 3, v1")
                p(f"v_add_u32 v{t2}, {L_CSX}, v{t2}")
        else:
            st = Prog()
            CP = OUT
            for w2 in range(4):
                st(f"ds_read_b64 {pr(CP,2*w2)}, v{t2} offset:{w2*512}")
            for t in range(2):
                for u in range(2):
                    st(f"ds_read_b64_tr_b16 {pr(PH,4*t+2*u)}, v{vAphi} offset:{(16*t+8*u)*56}")
            xhalf(st, "v_add_f32", vS, t0)
            xhalf(st, "v_add_f32", vQ, t1)
            st(f"v_mul_f32 v{vS}, {f32(-1.0/D)}, v{vS}")
            st(f"v_mul_f32 v{t3}, {f32(1.0/D)}, v{vQ}")
            st(f"v_fma_f32 v{t3}, -v{vS}, v{vS}, v{t3}")
            st(f"v_max_f32 v{t3}, 0, v{t3}")
            st(f"v_add_f32 v{t3}, {f32(1e-5)}, v{t3}")
            st(f"v_rsq_f32 v{vRS}, v{t3}")
            split_dup(st, XM, XM + 1, vS, t0)
            st(f"ds_write_b32 v{vMisc}, v{vRS}")
            for gg in range(4):
                st(f"ds_read_b128 {q4(CS+4*gg)}, v{vMr} offset:{32*gg}")
            for o_ in range(2):
                st(f"v_add_f32 v{CP+o_}, v{CP+o_}, v{CP+2+o_}")
                st(f"v_add_f32 v{CP+4+o_}, v{CP+4+o_}, v{CP+6+o_}")
                st(f"v_add_f32 v{CP+o_}, v{CP+o_}, v{CP+4+o_}")
            split_pair(st, CMk, CP, t1)
            st(f"v_mov_b32 v{CMk+1}, v{CMk}")
            split_pair(st, CMv, CP + 1, t1)
            st(f"v_mov_b32 v{CMv+1}, v{CMv}")
            st(f"v_mul_f32 v{vSC}, {f32(LOG2E)}, v{vRS}")
            st.items.append(masked(0, -1, [f"v_mov_b32 v{PH+6}, 0", f"v_mov_b32 v{PH+7}, 0"]))
            o, rest = weave(m.items, st.items, 26)
            p.add(o + rest)
    mfma(p, AK, CMk, XM, AK)
    for j in range(6):
        p(f"v_accvgpr_write_b32 a{96+j}, v{X[0]+j}")
    mfma(p, AV, XM, CMv, AV)
    for j in range(6, 16):
        p(f"v_accvgpr_write_b32 a{96+j}, v{X[0]+j}")
    stamp(p, "kvmfma")
    e = Prog()
    e(f"s_add_u32 s{sA}, s{sWkv}, {L_VF}")
    e(f"v_add_u32 v{t2}, s{sA}, v{vL16}")
    for j in range(0, 16, 2):
        e(f"v_cvt_pk_bf16_f32 v{KB+j//2}, v{AK+j}, v{AK+j+1}")
    mfma(e, AK, PH, KB)
    mfma(e, AK, PH + 4, KB + 4, AK)
    for j in range(16):
        e(f"v_mul_f32 v{AV+j}, v{AV+j}, v{CS+j}")
    for j in range(0, 16, 2):
        e(f"v_cvt_pk_bf16_f32 v{VB+j//2}, v{AV+j}, v{AV+j+1}")
    e.items.append(masked("0xf0000000", "0xf0000000", [f"v_mov_b32 v{VB+j}, v{vOnes}" for j in range(8)]))
    for t in range(2):
        e(f"ds_write_b128 v{t2}, {q4(VB+4*t)} offset:{t*1024}")
    softmax_pm(e, AK, E, OUT, vSC, T)
    for sg in range(2):
        for gg in range(4):
            e(f"ds_write_b64 v{vPkw}, {pr(OUT, 8*sg+2*gg)} offset:{64*sg+16*gg}")
    p.add(sprinkle(e.items, TCH[nt5:], OPT.get("sp2", 150), start=0))
    p.wait_vm("wq")
    p.barrier()
    stamp(p, "pkbar")
    AFk, BFv = WF[0], WF[1]
    for ws in range(4):
        for u in range(2):
            p(f"ds_read_b64_tr_b16 {pr(AFk, 4*ws+2*u)}, v{vApk} offset:{(32*ws+8*u)*136}")
        for nt in range(2):
            p(f"ds_read_b128 {q4(BFv+8*ws+4*nt)}, v{vBv} offset:{ws*2048 + nt*256}")
    p(f"s_lshl_b32 s{sA}, s{sH}, 4")
    p(f"s_add_u32 s{sA}, s{sA}, s{sRB}")
    p(f"s_lshl_b32 s{sA}, s{sA}, 2")
    p(f"s_add_u32 s{sA}, s{sA}, s{sW}")
    p(f"s_lshl_b32 s{sA}, s{sA}, 10")
    DK = AV
    for ws in range(4):
        for nt in range(2):
            c = "0" if ws == 0 else q4(DK + 4 * nt)
            p(f"v_mfma_f32_16x16x32_bf16 {q4(DK+4*nt)}, {q4(AFk+4*ws)}, {q4(BFv+8*ws+4*nt)}, {c}")
    qorder = [(pos, 0) for pos in range(7)] + [(pos, s) for pos in range(7) for s in range(1, 4)]
    CQ = [AK, AK + 4, AK + 8, AK + 12, X[0], X[0] + 4, X[0] + 8]

    def q_reg(n):
        return CQ[n] if n < 7 else WF[0] + 4 * (n & 7)

    def q_reads(n):
        pos, s = qorder[n]
        return [Ins(f"ds_read_b64_tr_b16 {pr(q_reg(n),2*u)}, v{vAq[s]} offset:{pos*4096+u*256}") for u in range(2)]
    for n in range(4):
        p.add(q_reads(n))
    PKD = AV + 8
    for j in range(4):
        p(f"v_cvt_pk_bf16_f32 v{PKD+j}, v{DK+2*j}, v{DK+2*j+1}")
    p.add(q_reads(4))
    p(f"v_permlane32_swap_b32 v{PKD}, v{PKD+2}")
    p(f"v_permlane32_swap_b32 v{PKD+1}, v{PKD+3}")
    p(f"buffer_store_dwordx4 {q4(PKD)}, v{vL16}, {R(RWS)}, s{sA} offen sc1", tag="stA")
    stamp(p, "kvstored")
    m = Prog()
    for n in range(28):
        pos, s = qorder[n]
        mfma(m, AQ, q_reg(n), 16 * pos + 4 * s, None if n == 0 else AQ, bk="a")
        if n + 5 < 28:
            m.add(q_reads(n + 5))
    NQ1 = OPT.get("nq1", 18)
    m0_, mA, mB = m.items[:21], m.items[21:3 * NQ1], m.items[3 * NQ1:]
    nfa = [i for i, it in enumerate(fl.items) if f"v{g.vFl[0]}," in it.text][0] + 1
    cq = Prog()
    cq(f"s_lshl_b32 s{sC}, s{sW}, 8")
    cq(f"s_add_u32 s{sC}, s{sC}, {L_CSX + 2048}")
    cq(f"v_lshl_add_u32 v{vMisc}, v1, 2, s{sC}")
    cq(f"v_lshlrev_b32 v{vMr}, 2, v1")
    cq(f"v_add_u32 v{vMr}, {L_CSX + 2048}, v{vMr}")
    o, rest = weave(m0_, cq.items + fl.items[:nfa], 24)
    p.add(o + rest)
    for pos in range(7):
        for j in range(4):
            p(f"v_dot2c_f32_bf16 v{vCq}, v{CQ[pos]+j}, v{vOnes}")
    p(f"ds_write_b32 v{vMisc}, v{vCq}")
    wog = wo_groups(0, 15)
    o, wog = paced(mA, wog, 2)
    p.add(o)
    p.raw(f"""
    v_cmp_eq_u32 vcc, 0, v{g.vTag}
    s_mov_b32 s{sB}, 0
    s_cbranch_vccz L_epoch_done
    v_mov_b32 v{t0}, 0
L_epoch:
    buffer_load_dwordx2 {pr(g.vTag)}, v{t0}, {R(RDBG)}, 0 offen sc1
    s_waitcnt vmcnt(0)
    v_cmp_eq_u32 vcc, 0, v{g.vTag}
    s_add_u32 s{sB}, s{sB}, 1
    s_cbranch_vccz L_epoch_done
    s_cmp_lt_u32 s{sB}, 0x10000
    s_cbranch_scc1 L_epoch
L_epoch_done:
""", uses=[pr(g.vTag)], defs=[pr(g.vTag), f"v{t0}"])
    p.wait_vm("stA")
    p("s_barrier")
    flag(p, g, 0)
    stamp(p, "pubA")
    fb = Prog()
    CP = CMv
    for w2 in range(4):
        fb(f"ds_read_b32 v{CP+w2}, v{vMr} offset:{w2*256}")
    fb(f"v_mov_b32 v{vSelL}, 0x00003f80")
    fb(f"v_mov_b32 v{vSelH}, 0x3f800000")
    SUM = XM
    fb(f"v_add_f32 v{CP}, v{CP}, v{CP+1}")
    fb(f"v_add_f32 v{CP+2}, v{CP+2}, v{CP+3}")
    fb(f"v_add_f32 v{CP}, v{CP}, v{CP+2}")
    split_pair(fb, CMk, CP, t1)
    fb(f"v_mov_b32 v{CMk+1}, v{CMk}")
    fb(f"s_lshl_b32 s{sC}, s{sH}, 16")
    fb(f"s_add_u32 s{sC}, s{sC}, s{sXrow}")
    o, wog = paced(mB, wog, 2)
    o, rest = weave(o, fb.items, 26)
    p.add(o + rest)
    mfma(p, AQ, CMk, XM, AQ)
    for j in range(0, 16, 2):
        p(f"v_cvt_pk_bf16_f32 v{KB+j//2}, v{AQ+j}, v{AQ+j+1}")
    mfma(p, AK, PH, KB)
    mfma(p, AK, PH + 4, KB + 4, AK)
    stamp(p, "qmfma")
    sm = Prog()
    for j in range(8):
        sm(f"v_mov_b32 v{SUM+j}, 0")
    softmax_pm(sm, AK, E, PHQ, vSC, T)
    nsm = len(sm.items) * OPT.get("pia", 50) // 100
    p.add(sprinkle(sm.items[:nsm], wog + w1r(0, wa2), 40, hide=0))
    poll_issue(p, g, 0, 16)
    p.add(sm.items[nsm:])
    stamp(p, "qdone")
    p.barrier()
    poll_check(p, g, 0)
    stamp(p, "syncA")

    f2 = Prog()
    f2(f"s_and_b32 s{sA}, s2, 7")
    f2(f"s_lshl_b32 s{sB}, s{sW}, 2")
    f2(f"v_add_u32 v{t0}, s{sB}, v1")
    f2(f"v_mov_b32 v{t3}, 0xffff0000")
    f2(f"v_cmp_gt_u32 vcc, 4, v1")
    fl2 = f2.items + fl.items[nfa:]
    PARTS = [WF[1] + 4 * j for j in range(8)] + [X[0] + 4 * j for j in range(4)] + [AV + 4 * j for j in range(4)]
    ld = []
    for pp in range(16):
        q = Prog()
        q(f"s_add_u32 s{sA}, s{sC}, {pp*4096}")
        q(f"buffer_load_dwordx4 {q4(PARTS[pp])}, v{vL16}, {R(RWS)}, s{sA} offen sc1")
        ld.append(q.items)
    for gr in ld:
        p.add(gr)
    p.add(sprinkle(fl2, w1r(wa2, wb), 30, hide=0))
    dq = Prog()
    for pp in range(16):
        for j in range(4):
            dq(f"v_dot2c_f32_bf16 v{SUM+2*j}, v{PARTS[pp]+j}, v{vSelL}")
            dq(f"v_dot2c_f32_bf16 v{SUM+2*j+1}, v{PARTS[pp]+j}, v{vSelH}")
    p.add(sprinkle(dq.items, w1r(wb, wc), 64))
    AF, ACC1, OB = WF[0], AQ, WF[0] + 16
    for j in range(4):
        p(f"v_cvt_pk_bf16_f32 v{OB+j}, v{SUM+2*j}, v{SUM+2*j+1}")
    p(f"v_and_b32 v{t0}, 15, v1")
    p(f"v_lshl_add_u32 v{t0}, v{vHF}, 4, v{t0}")
    p(f"v_bfe_u32 v{t1}, v1, 4, 1")
    p(f"v_lshl_add_u32 v{t0}, v{t1}, 5, v{t0}")
    p(f"s_add_u32 s{sA}, s{sXrow}, {L_MISC}")
    p(f"v_lshl_add_u32 v{t0}, v{t0}, 4, s{sA}")
    p(f"v_add_u32 v{t1}, {L_MISC}, v{vL16}")
    p(f"ds_write_b128 v{t0}, {q4(OB)}")
    stamp(p, "kvsum")
    p.barrier()
    for kk in range(4):
        p(f"ds_read_b128 {q4(AF+4*kk)}, v{t1} offset:{kk*1024}")
    p(f"s_lshl_b32 s{sA}, s{sRT}, 4")
    p(f"s_add_u32 s{sA}, s{sA}, s{sH}")
    p(f"s_lshl_b32 s{sA}, s{sA}, 11")
    p(f"s_add_u32 s{sC}, s{sA}, {WS_OF}")
    vA0, vA1, vXo2, vRc = vAk[0], vAv[0], vAq[0], vRS
    m = Prog()
    for kk in range(4):
        mfma(m, ACC1, AF + 4 * kk, PHQ + 4 * kk, None if kk == 0 else ACC1)
    q = Prog()
    q(f"v_lshl_add_u32 v{t3}, v{vHF}, 2, v{vR}")
    q(f"v_lshl_add_u32 v{vA0}, v{t3}, 7, v{vMC}")
    q(f"v_lshrrev_b32 v{t3}, 1, v{vR}")
    q(f"v_lshl_add_u32 v{vA0}, v{t3}, 6, v{vA0}")
    q(f"s_and_b32 s{sB}, s{sW}, 1")
    q(f"s_lshl_b32 s{sA}, s{sB}, 6")
    q(f"v_xor_b32 v{vA0}, s{sA}, v{vA0}")
    q(f"v_xor_b32 v{vA1}, 64, v{vA0}")
    q(f"s_mul_i32 s{sB}, s{sB}, {224*128}")
    q(f"s_add_u32 s{sB}, s{sB}, {L_WO}")
    q(f"v_add_u32 v{vA0}, s{sB}, v{vA0}")
    q(f"v_add_u32 v{vA1}, s{sB}, v{vA1}")
    q(f"v_and_b32 v{t0}, 31, v1")
    q(f"v_mul_u32_u24 v{t0}, 896, v{t0}")
    q(f"v_lshl_add_u32 v{vXo2}, v{vHF}, 3, v{t0}")
    q(f"s_mul_i32 s{sA}, s{sRTf}, {32*896}")
    q(f"s_lshl_b32 s{sB}, s{sTf}, 6")
    q(f"s_add_u32 s{sD}, s{sA}, s{sB}")
    WOF = 128
    wof = []
    for k in range(16):
        row0 = 28 * (k >> 1) + 16 * (k & 1)
        for mt in range(2):
            for u in range(2):
                wof.append(Ins(f"ds_read_b64_tr_b16 {pr(WOF, 8*k+4*mt+2*u, 'a')}, v{[vA0, vA1][mt]} offset:{(row0+8*u)*128}"))
    o, rest = weave(m.items, q.items + wof[:12], 26)
    p.add(o + rest)
    p(f"v_mov_b32 v{t0}, v{ACC1+12}")
    p(f"v_mov_b32 v{t1}, v{ACC1+12}")
    p(f"v_permlane32_swap_b32 v{t0}, v{t1}")
    p(f"v_add_f32 v{t1}, {f32(1e-6)}, v{t1}")
    p(f"v_rcp_f32 v{vRc}, v{t1}")
    for j in range(0, 16, 2):
        p(f"v_pk_mul_f32 {pr(ACC1,j)}, {pr(ACC1,j)}, {pr(vRc)} op_sel_hi:[1,0]")
    for j in range(0, 8, 2):
        p(f"v_cvt_pk_bf16_f32 v{OB+j//2}, v{ACC1+j}, v{ACC1+j+1}")
    p(f"buffer_store_dwordx4 {q4(OB)}, v{vL16}, {R(RWS)}, s{sC} offen sc1")
    for j in range(8, 16, 2):
        p(f"v_cvt_pk_bf16_f32 v{OB+j//2}, v{ACC1+j}, v{ACC1+j+1}")
    p.add(masked(0, -1, [f"v_mov_b32 v{OB+6}, 0", f"v_mov_b32 v{OB+7}, 0"]))
    p(f"buffer_store_dwordx4 {q4(OB+4)}, v{vL16}, {R(RWS)}, s{sC} offen offset:1024 sc1", tag="stB")
    stamp(p, "ostored")
    xr_ = [[Ins(f"buffer_load_dwordx2 {pr(XRES,2*gg)}, v{vXo2}, {R(RX)}, s{sD} offen offset:{16*gg}")] for gg in range(4)]
    p.add(sprinkle(wof[12:], xr_ + w1r(wc, wd), 32))
    publish(p, g, 1, "stB")
    stamp(p, "pubB")
    p(f"s_cmp_ge_u32 s{sI}, 28")
    p("s_cbranch_scc1 L_idle")
    p(f"s_lshl_b32 s{sC}, s{sRTf}, 15")
    p(f"s_and_b32 s{sA}, s{sW}, 1")
    p(f"s_lshl_b32 s{sA}, s{sA}, 14")
    p(f"s_add_u32 s{sC}, s{sC}, s{sA}")
    p(f"s_add_u32 s{sC}, s{sC}, {WS_OF}")
    p(f"v_lshl_add_u32 v{t3}, v{vHF}, 2, v{vR}")
    p(f"v_lshl_add_u32 v{vAw}, v{t3}, 7, v{vMC}")
    p(f"v_lshrrev_b32 v{t3}, 1, v{vR}")
    p(f"v_lshl_add_u32 v{vAi0}, v{t3}, 6, v{vAw}")
    p(f"s_and_b32 s{sA}, s{sW}, 1")
    p(f"s_lshl_b32 s{sA}, s{sA}, 6")
    p(f"v_xor_b32 v{vAw}, s{sA}, v{vAi0}")
    p(f"s_lshr_b32 s{sA}, s{sW}, 1")
    p(f"s_mul_i32 s{sA}, s{sA}, {224*128}")
    p(f"v_add_u32 v{vAw}, s{sA}, v{vAw}")
    p(f"v_mov_b32 v{vCs}, 0")
    p(f"v_mov_b32 v{vCs+1}, 0")

    def colsum(im, buf):
        q = Prog()
        for c4 in range(0, 14, 4):
            a = buf + 16 * ((c4 >> 2) & 1)
            for s in range(min(4, 14 - c4)):
                for u in range(2):
                    q(f"ds_read_b64_tr_b16 {pr(a,4*s+2*u)}, v{vAw} offset:{(16*(c4+s)+8*u)*128}")
            if c4 > 0:
                a = buf + 16 * (((c4 >> 2) - 1) & 1)
                for j in range(16):
                    q(f"v_dot2c_f32_bf16 v{vCs+im}, v{a+j}, v{vOnes}")
        for j in range(8):
            q(f"v_dot2c_f32_bf16 v{vCs+im}, v{buf+16+j}, v{vOnes}")
        return q.items
    def ksb(j):
        return 8 * j if j < 14 else (16 * (j - 14) + 4 if j < 21 else 16 * (j - 21) + 6)
    ROW = [14, 15, 16, 17] * 3 + [0, 1, 2, 3, 4, 5, 6, 18, 19] + [7, 8, 9, 10, 11, 12, 13]

    def tb(j):
        return TBL[j] if j < 14 else TBL[2 * ((j - 14) % 7)]

    def w2g(j0, j1):
        gs = []
        for j in range(j0, j1):
            vo = vW64[0:2] if j < 14 else vW64[2:4]
            gs.append([Ins(f"s_add_u32 m0, s{sWkv}, {ROW[j]*8192}"), Ins(f"s_mul_i32 s{sBG}, s{tb(j)}, 14")] +
                      ([Ins(f"s_add_u32 s{sBG}, s{sBG}, {2*16*896}")] if j >= 21 else []) +
                      [Ins(f"buffer_load_dwordx4 v{vo[0]}, {R(RW2)}, s{sBG} offen lds", f"w2_{j}")])
            gs.append([Ins(f"buffer_load_dwordx4 v{vo[1]}, {R(RW2)}, s{sBG} offen offset:1024 lds", f"w2_{j}")])
        return gs
    p(f"s_and_b32 s{sA}, s{sRB64}, 3")
    p(f"s_lshl_b32 s{sA}, s{sA}, 1")
    p(f"s_add_u32 s{sA}, s{sA}, s{sCT}")
    p(f"s_sub_u32 s{sB}, s{sA}, 7")
    p(f"s_cmp_ge_u32 s{sA}, 7")
    p(f"s_cselect_b32 s{sA}, s{sB}, s{sA}")
    if not OPT.get("rot4", 1):
        p(f"s_mov_b32 s{sA}, 0")
    p(f"s_lshl_b32 s{TBL[0]}, s{sA}, 14")
    for j in range(1, 14):
        p(f"s_add_u32 s{TBL[j]}, s{TBL[j-1]}, 8192")
        if j % 2 == 0:
            p(f"s_cmp_eq_u32 s{TBL[j]}, {14*8192}")
            p(f"s_cselect_b32 s{TBL[j]}, 0, s{TBL[j]}")
    p(f"s_add_u32 s{sA}, s{sW2src2}, {4*16*896}")
    p(f"v_add_u32 v{vW64[2]}, s{sA}, v{vW64[0]}")
    p(f"v_add_u32 v{vW64[3]}, s{sA}, v{vW64[1]}")
    p(f"v_add_u32 v{vW64[0]}, s{sW2src}, v{vW64[0]}")
    p(f"v_add_u32 v{vW64[1]}, s{sW2src}, v{vW64[1]}")

    def w2_read(j, dst, k):
        off = ROW[j] * 8192
        out = [Wait("vmtag", f"w2_{j}")]
        for jm in range(2):
            for u in range(2):
                out.append(Ins(f"ds_read_b64_tr_b16 {pr(dst[jm],2*u,k)}, v{vB4[off >> 16][jm]} offset:{(off & 0xffff)+u*1024}"))
        return out

    def w2_move(j0, j1):
        return [x for j in range(j0, j1) for x in w2_read(j, [8 * j, 8 * j + 4], "a")]
    p(f"s_and_b32 s{sB}, s{sW}, 1")
    p(f"s_lshl_b32 s{sB}, s{sB}, 6")
    p(f"v_xor_b32 v{t0}, s{sB}, v{vAi0}")
    p(f"v_xor_b32 v{t1}, 64, v{t0}")
    for b_ in range(3):
        p(f"s_add_u32 s{sA}, s{sWkv}, {b_*65536}")
        p(f"v_add_u32 v{vB4[b_][0]}, s{sA}, v{t0}")
        p(f"v_add_u32 v{vB4[b_][1]}, s{sA}, v{t1}")
    cs0 = colsum(0, WF[0])
    p.add(cs0[:len(cs0) // 2])
    poll_issue(p, g, 1, 16)
    p.add(cs0[len(cs0) // 2:])
    p(f"v_add_u32 v{vAw}, {L_I[1]}, v{vAw}")
    poll_check(p, g, 1)
    stamp(p, "syncB")
    bgP2 = w1r(wd, 28)

    ra.release(base_mark)
    B = ra(64, 4)
    ACC = ra(32, 4)
    RD = ra(16, 4)
    vSt = ra(2, 2)
    XF = ra(16, 4)
    for k in range(16):
        if (k & 3) == 0:
            p(f"s_add_u32 s{sA}, s{sC}, {k*1024}")
        p(f"buffer_load_dwordx4 {q4(B+4*k)}, v{vL16}, {R(RWS)}, s{sA} offen offset:{(k&3)*1024} sc1")
    for j in range(8):
        p(f"v_lshlrev_b32 v{XF+2*j}, 16, v{XRES+j}")
        p(f"v_and_b32 v{XF+2*j+1}, 0xffff0000, v{XRES+j}")
    q = Prog()
    q(f"v_mov_b32 v{vSt}, 0")
    q(f"v_mov_b32 v{vSt+1}, 0")
    q(f"buffer_store_dwordx2 {pr(vSt)}, v{vEp}, {R(RDBG)}, 0 offen sc1")
    q(f"s_lshl_b32 s{sA}, s{sW}, 12")
    q(f"s_add_u32 s{sA}, s{sA}, {L_EX2}")
    q(f"v_add_u32 v{t0}, s{sA}, v{vL16}")
    q(f"v_xor_b32 v{t1}, 4096, v{t0}")
    q(f"s_mul_i32 s{sA}, s{sRTf}, {28*1024}")
    q(f"s_lshl_b32 s{sB}, s{sTf}, 11")
    q(f"s_add_u32 s{sA}, s{sA}, s{sB}")
    q(f"s_add_u32 s{sA}, s{sA}, {WS_HF}")
    q(f"s_lshl_b32 s{sC}, s{sRTf}, 12")
    q(f"s_lshl_b32 s{sB}, s{sCT}, 9")
    q(f"s_add_u32 s{sC}, s{sC}, s{sB}")
    q(f"s_and_b32 s{sB}, s{sW}, 1")
    q(f"s_lshl_b32 s{sB}, s{sB}, 3")
    q(f"s_add_u32 s{sC}, s{sC}, s{sB}")
    q(f"s_add_u32 s{sC}, s{sC}, {WS_ST}")
    q(f"v_and_b32 v{t2}, 31, v1")
    q(f"v_lshlrev_b32 v{t2}, 4, v{t2}")
    q(f"v_lshl_add_u32 v{t2}, v{vHF}, 2, v{t2}")
    m = Prog()
    NDEF2 = OPT.get("ndef2", 5)
    for k in range(16):
        mfma(m, ACC + 16, WOF + 8 * k + 4, B + 4 * k, None if k == 0 else ACC + 16, ak="a")
        if k < 16 - NDEF2:
            mfma(m, ACC, WOF + 8 * k, B + 4 * k, XF if k == 0 else ACC, ak="a")
    o, rest = weave(m.items, q.items + [gr for gr in bgP2], 24)
    p.add(o + rest)
    stamp(p, "p2mfma")
    for i_, k in enumerate(range(16 - NDEF2, 16)):
        mfma(p, ACC, WOF + 8 * k, B + 4 * k, ACC, ak="a")
        if i_ >= NDEF2 - 4:
            gg = i_ - (NDEF2 - 4)
            p(f"ds_write_b128 v{t0}, {q4(ACC+16+4*gg)} offset:{gg*1024}")
    p.barrier()
    for gg in range(4):
        p(f"ds_read_b128 {q4(RD+4*gg)}, v{t1} offset:{gg*1024}")
    for t in range(2):
        for j in range(8 * t, 8 * t + 8, 2):
            p(f"v_pk_add_f32 {pr(RD,j)}, {pr(RD,j)}, {pr(ACC,j)}")
        for j in range(8 * t, 8 * t + 8, 2):
            p(f"v_cvt_pk_bf16_f32 v{HRES+j//2}, v{RD+j}, v{RD+j+1}")
        p(f"buffer_store_dwordx4 {q4(HRES+4*t)}, v{vL16}, {R(RWS)}, s{sA} offen offset:{t*1024} sc1")
    for j in range(8):
        p(f"v_dot2c_f32_bf16 v{vSt}, v{HRES+j}, v{vOnes}")
        p(f"v_dot2c_f32_bf16 v{vSt+1}, v{HRES+j}, v{HRES+j}")
    p(f"v_permlane32_swap_b32 v{vSt}, v{vSt+1}")
    p(f"v_add_f32 v{vSt}, v{vSt}, v{vSt+1}")
    p(f"buffer_store_dword v{vSt}, v{t2}, {R(RWS)}, s{sC} offen sc1", tag="stC")
    stamp(p, "hstored")

    ra.release(base_mark)
    vAi = [ra() for _ in range(4)]
    vSo = [ra(), ra()]
    vK = ra(6, 2)
    YM = ra(4, 4)
    CM = ra(16, 4)
    ACC3 = ra(64, 4)
    AFR = ra(32, 4)
    G1 = ra(16, 4)
    STR = G1
    OB3 = ra(16, 4)
    CSP = OB3
    B2R = ra(8, 4)
    HA = 144
    p.add(flat(w2g(0, 4)))
    p(f"v_and_b32 v{t0}, 31, v1")
    p(f"v_lshlrev_b32 v{t1}, 1, v{t0}")
    p(f"s_lshl_b32 s{sA}, s{sFT}, 8")
    p(f"v_mov_b32 v{vAi[0]}, v{vAi0}")
    p(f"v_xor_b32 v{vAi[1]}, 64, v{vAi0}")
    p(f"v_add_u32 v{vAi[2]}, {L_I[1]}, v{vAi[0]}")
    p(f"v_add_u32 v{vAi[3]}, {L_I[1]}, v{vAi[1]}")
    p(f"v_lshlrev_b32 v{t0}, 4, v{t0}")
    p(f"v_lshl_add_u32 v{vSo[0]}, v{vHF}, 9, v{t0}")
    p(f"v_lshl_add_u32 v{vSo[1]}, v{vHF}, 31, v{t0}")
    publish(p, g, 2, "stC")
    stamp(p, "pubC")
    for T in range(4):
        p(f"buffer_load_ushort v{CM+4*T+2}, v{t1}, {R(RB1)}, s{sA} offen offset:{64*T}")
    p(f"v_lshlrev_b32 v{t0}, 3, v{vHF}")
    p(f"s_lshl_b32 s{sA}, s{sTf}, 6")
    for gg in range(4):
        p(f"buffer_load_dwordx2 {pr(B2R,2*gg)}, v{t0}, {R(RB2)}, s{sA} offen offset:{16*gg}")
    p.add(w2_move(0, 4))
    cs1 = colsum(1, AFR)
    p.add(cs1[:32])
    p.add(sprinkle(cs1[32:56], w2g(4, 8), 12, hide=0))
    poll_issue(p, g, 2, 14)
    p.add(cs1[56:])
    p(f"s_lshl_b32 s{sA}, s{sW}, 9")
    p(f"s_add_u32 s{sA}, s{sA}, {L_MISC}")
    p(f"v_lshl_add_u32 v{t1}, v1, 3, s{sA}")
    p(f"ds_write_b64 v{t1}, {pr(vCs)}")
    for T in range(4):
        p(f"v_mov_b32 v{CM+4*T+3}, v{CM+4*T+2}")
        p(f"v_lshl_or_b32 v{CM+4*T+2}, v{CM+4*T+2}, 16, v{CM+4*T+2}")
    p(f"s_mul_i32 s{sC}, s{sRT3}, {28*1024}")
    p(f"s_add_u32 s{sC}, s{sC}, {WS_HF}")
    p(f"s_add_u32 s{sE}, s{sC}, {28*1024}")
    p(f"s_lshl_b32 s{sC2}, s{sR3}, 12")
    p(f"s_add_u32 s{sC2}, s{sC2}, s{sC}")
    p(f"s_lshl_b32 s{sD}, s{sRT3}, 12")
    p(f"s_add_u32 s{sD}, s{sD}, {WS_ST}")
    p(f"s_mul_i32 s{sH1a}, s{sRT3}, {112*1024}")
    p(f"s_lshl_b32 s{sA}, s{sFT}, 13")
    p(f"s_add_u32 s{sH1a}, s{sH1a}, s{sA}")
    p(f"s_add_u32 s{sH1a}, s{sH1a}, {WS_H1F}")
    p(f"s_add_u32 s{sH1b}, s{sH1a}, 4096")
    p(f"v_lshlrev_b32 v{t2}, 3, v1")
    p(f"v_add_u32 v{t2}, {L_MISC}, v{t2}")

    def trd(dst, T, ks, u):
        return Ins(f"ds_read_b64_tr_b16 {pr(dst)}, v{vAi[T]} offset:{(16*ks+8*u)*128}")

    def corr(T, first=False):
        q = Prog()
        mfma(q, ACC3 + 16 * T, CM + 4 * T, YM, None if first else ACC3 + 16 * T)
        return q.items

    def pass_parts(tiles, init):
        n = len(tiles)
        depth = 32 // (4 * n)
        pre = min(depth - 1, 3)

        def reads(ks):
            a = AFR + 4 * n * (ks % depth)
            return [trd(a + 4 * i + 2 * u, T, ks, u) for i, T in enumerate(tiles) for u in range(2)]
        head = [x for ks in range(pre) for x in reads(ks)]
        items = []
        for ks in range(28):
            nxt = reads(ks + pre) if ks + pre < 28 else []
            a = AFR + 4 * n * (ks % depth)
            for i, T in enumerate(tiles):
                acc = ACC3 + 16 * T
                cc = "0" if (ks == 0 and init) else q16(acc)
                items.append(Ins(f"v_mfma_f32_32x32x16_bf16 {q16(acc)}, {q4(a+4*i)}, a[{HA+4*ks}:{HA+4*ks+3}], {cc}"))
                items += nxt[2 * i:2 * i + 2]
        return head, items

    h1, b1_ = pass_parts([0, 1], True)
    p.add(h1)
    stamp(p, "cs1")
    p.barrier()
    poll_check(p, g, 2)
    stamp(p, "syncC")

    ldh = []
    for ks in range(28):
        q = Prog()
        q(f"buffer_load_dwordx4 a[{HA+4*ks}:{HA+4*ks+3}], v{vL16}, {R(RWS)}, s{sC2} offen offset:{(ks&3)*1024} sc1")
        if (ks & 3) == 3 and ks < 27:
            q(f"s_add_u32 s{sC2}, s{sC2}, 4096")
            q(f"s_cmp_eq_u32 s{sC2}, s{sE}")
            q(f"s_cselect_b32 s{sC2}, s{sC}, s{sC2}")
        ldh.append(q.items)
    NH0 = OPT.get("nh0", 14)
    p.add(flat(ldh[:4]))
    for n_ in range(4):
        p(f"buffer_load_dwordx4 {q4(STR+4*n_)}, v{vSo[n_ == 3]}, {R(RWS)}, s{sD} offen offset:{n_*1024} sc1")
    x = Prog()
    for w2 in range(4):
        x(f"ds_read_b64 {pr(CSP,2*w2)}, v{t2} offset:{w2*512}")
    x.add(w2_move(4, 8))
    for T in range(4):
        x(f"v_add_f32 v{CSP+8+T}, v{CSP+2*(T&1)+(T>>1)}, v{CSP+4+2*(T&1)+(T>>1)}")
    for T in range(4):
        split_pair(x, CM + 4 * T, CSP + 8 + T, t1)
        x(f"v_mov_b32 v{CM+4*T+1}, v{CM+4*T}")
    p.add(sprinkle(x.items, ldh[4:NH0], 20, hide=0))
    st = Prog()
    for o_ in range(2):
        for n_ in range(4):
            st(f"v_add_f32 v{STR+4*n_+o_}, v{STR+4*n_+o_}, v{STR+4*n_+2+o_}")
        st(f"v_add_f32 v{STR+o_}, v{STR+o_}, v{STR+4+o_}")
        st(f"v_add_f32 v{STR+8+o_}, v{STR+8+o_}, v{STR+12+o_}")
        st(f"v_add_f32 v{STR+o_}, v{STR+o_}, v{STR+8+o_}")
    xhalf(st, "v_add_f32", STR, t0)
    xhalf(st, "v_add_f32", STR + 1, t1)
    st(f"v_mul_f32 v{STR}, {f32(-1.0/D)}, v{STR}")
    split_dup(st, YM, YM + 1, STR, t0)
    st(f"v_mul_f32 v{t2}, {f32(1.0/D)}, v{STR+1}")
    st(f"v_fma_f32 v{t2}, -v{STR}, v{STR}, v{t2}")
    st(f"v_max_f32 v{t2}, 0, v{t2}")
    st(f"v_add_f32 v{t3}, {f32(1e-5)}, v{t2}")
    st(f"v_fmac_f32 v{t2}, {f32(1e-5)}, v{t3}")
    st(f"v_rsq_f32 v{t3}, v{t2}")
    st(f"v_cvt_f32_u32 v{t0}, v{vHF}")
    st(f"v_mul_f32 v{vK+4}, v{t2}, v{t3}")
    K0 = math.sqrt(2.0 / math.pi)
    c1 = -2.0 * K0 * LOG2E
    c2 = c1 * 0.044715
    st(f"v_fma_f32 v{t0}, -v{t0}, v{vK+4}, v{vK+4}")
    st(f"v_cvt_pk_bf16_f32 v{t1}, v{t0}, v{t0}")
    st(f"v_and_b32 v{t1}, 0xffff0000, v{t1}")
    st(f"v_sub_f32 v{t1}, v{t0}, v{t1}")
    st(f"v_cvt_pk_bf16_f32 v{YM+2}, v{t0}, v{t1}")
    st(f"v_and_b32 v{t2}, 0xffff0000, v{YM+2}")
    st(f"v_sub_f32 v{t1}, v{t1}, v{t2}")
    st(f"v_cvt_pk_bf16_f32 v{YM+3}, v{t1}, v{t1}")
    st(f"v_mul_f32 v{vK}, {f32(c1)}, v{t3}")
    st(f"v_mul_f32 v{t2}, v{t3}, v{t3}")
    st(f"v_mul_f32 v{t2}, v{t2}, v{t3}")
    st(f"v_mul_f32 v{vK+2}, {f32(c2)}, v{t2}")
    vH1 = vW1
    st(f"s_mul_i32 s{sA}, s{sRTf}, {112*1024}")
    st(f"s_add_u32 s{sA}, s{sA}, {WS_H1F}")
    st(f"s_xor_b32 s{sD2}, s{sRTf}, 1")
    st(f"s_mul_i32 s{sD2}, s{sD2}, {112*1024}")
    st(f"s_add_u32 s{sD2}, s{sD2}, {WS_H1F}")
    st(f"v_add_u32 v{vH1[0]}, s{sA}, v{vL16}")
    st(f"v_add_u32 v{vH1[1]}, s{sD2}, v{vL16}")
    st(f"s_add_u32 s{sA}, s{sWo2}, 4096")
    st(f"v_add_u32 v{vH1[2]}, s{sA}, v{vH1[0]}")
    st(f"v_add_u32 v{vH1[3]}, s{sA}, v{vH1[1]}")
    st(f"v_add_u32 v{vH1[0]}, s{sXrow}, v{vH1[0]}")
    st(f"v_add_u32 v{vH1[1]}, s{sXrow}, v{vH1[1]}")
    nl = 28 - NH0
    part1 = b1_[:6 * nl]
    o1 = []
    for i_ in range(nl):
        o1 += part1[6 * i_:6 * i_ + 3] + [ldh[NH0 + i_]] + part1[6 * i_ + 3:6 * i_ + 6]
    o, rest = weave(o1, st.items, 24)
    p.add(o)
    o, rest = weave(b1_[6 * nl:-12], rest + w2g(8, 12), 28)
    p.add(o + rest)
    p.add(corr(0) + corr(1))
    p.add(b1_[-12:])
    h2, b2_ = pass_parts([2], False)
    h3, b3_ = pass_parts([3], False)
    p.add(corr(2, True))
    p.add(h2)
    p.add(corr(3, True))
    p("s_barrier")
    stamp(p, "p3pass1")

    def gelu(T):
        q = Prog()
        acc = ACC3 + 16 * T
        ob = OB3 + 8 * (T & 1)
        for half in range(2):
            js = range(8 * half, 8 * half + 8)
            for j in js[::2]:
                q(f"v_pk_mul_f32 {pr(G1,j)}, {pr(acc,j)}, {pr(acc,j)}")
            for j in js[::2]:
                q(f"v_pk_fma_f32 {pr(G1,j)}, {pr(G1,j)}, {pr(vK+2)}, {pr(vK)} op_sel_hi:[1,0,0]")
            for j in js[::2]:
                q(f"v_pk_mul_f32 {pr(G1,j)}, {pr(G1,j)}, {pr(acc,j)}")
            for j in js:
                q(f"v_exp_f32 v{G1+j}, v{G1+j}")
            for j in js[::2]:
                q(f"v_pk_fma_f32 {pr(G1,j)}, {pr(G1,j)}, {pr(vK+4)}, {pr(vK+4)} op_sel_hi:[1,0,0]")
            for j in js:
                q(f"v_rcp_f32 v{G1+j}, v{G1+j}")
            for j in js[::2]:
                q(f"v_pk_mul_f32 {pr(G1,j)}, {pr(G1,j)}, {pr(acc,j)}")
            for j in js[::2]:
                q(f"v_cvt_pk_bf16_f32 v{ob+j//2}, v{G1+j}, v{G1+j+1}")
            q(f"buffer_store_dwordx4 {q4(ob+4*half)}, v{vL16}, {R(RWS)}, s{sH1a if T < 2 else sH1b} offen offset:{((2*T+half)&3)*1024} sc1", tag=f"stD{T}")
        return q.items

    def pub(sync, tag):
        q = Prog()
        q.wait_vm(tag)
        q("s_barrier")
        flag(q, g, sync)
        return q.items

    def bslot(j):
        return 64 + 8 * j if j < 24 else 64 + 8 * (j - 24)

    def ldB(j0, j1):
        gs = []
        for j in range(j0, j1):
            for jn in range(2):
                r = bslot(j) + 4 * jn
                gs.append([Ins(f"buffer_load_dwordx4 a[{r}:{r+3}], v{vH1[jn + (2 if j >= 14 else 0)]}, {R(RWS)}, s{tb(j)} offen offset:{2048 if j >= 21 else 0} sc1")])
        return gs

    def mf_split(items, n):
        idx = [i for i, it in enumerate(items) if isinstance(it, Ins) and it.kind == "mfma"]
        return items[:idx[n]], items[idx[n]:]

    wA = w2g(12, 21)
    ng01 = OPT.get("ng01", 4)
    p.add(sprinkle(gelu(0) + gelu(1), wA[:ng01], OPT.get("sg01", 100), start=OPT.get("st01", 20), hide=0))
    stamp(p, "g01")
    o, rest = paced(b2_ + h3, wA[ng01:], 2, OPT.get("f2", 0))
    pd1 = OPT.get("pd1", 24)
    if pd1 < 28:
        oa, ob_ = mf_split(o, pd1)
        p.add(oa + pub(3, "stD1") + ob_)
    else:
        p.add(o + pub(3, "stD1"))
    stamp(p, "p3pass2")
    p.add(sprinkle(gelu(2), rest, 64, hide=0))
    stamp(p, "g2")
    hb = Prog()
    HB = ACC3
    for j in range(8):
        hb(f"v_lshlrev_b32 v{t0}, 16, v{HRES+j}")
        hb(f"v_and_b32 v{t1}, 0xffff0000, v{HRES+j}")
        hb(f"v_lshlrev_b32 v{t2}, 16, v{B2R+j}")
        hb(f"v_and_b32 v{HB+2*j+1}, 0xffff0000, v{B2R+j}")
        hb(f"v_add_f32 v{HB+2*j}, v{t0}, v{t2}")
        hb(f"v_add_f32 v{HB+2*j+1}, v{t1}, v{HB+2*j+1}")
    pi1, pc1, pd2 = OPT.get("pi1", 2), OPT.get("pc1", 20), OPT.get("pd2", 24)
    s0, s1 = mf_split(b3_, pi1)
    s1, s2 = mf_split(s1, pc1 - pi1)
    p.add(s0)
    poll_issue(p, g, 3, 14)
    o, rest = weave(s1, hb.items, 24)
    p.add(o + rest)
    poll_check(p, g, 3)
    stamp(p, "syncD1")
    lb1 = ldB(0, 10)
    o, rest1 = paced(s2, lb1, OPT.get("e3", 1))
    oa, ob_ = mf_split(o, pd2 - pc1)
    p.add(oa + pub(4, "stD2") + ob_)
    p("s_barrier")
    stamp(p, "p3pass3")
    bgq = rest1 + ldB(10, 14)
    ng3 = OPT.get("ng3", 8)
    p.add(sprinkle(gelu(3), bgq[:ng3], 60, hide=0))
    bgq = bgq[ng3:]
    stamp(p, "h1stored")

    AF4 = AFR
    ACC4 = ACC3
    AKEEP = [CM, CM + 4, CM + 8, CM + 12, B2R, B2R + 4, YM]
    vOo = vAi[0]
    RD4 = [AFR, AFR + 16, G1]
    OB4 = OB3

    def a_regs(j):
        if j < 8:
            return "a", 8 * j, 8 * j + 4
        a = AF4 + 8 * (j & 3)
        return "v", (AKEEP[j - 21] if j >= 21 else a), a + 4

    pd3, pi2, pc2, pi3, pc3 = OPT.get("pd3", 5), OPT.get("pi2", 2), OPT.get("pc2", 7), OPT.get("pi3", 12), OPT.get("pc3", 17)
    bgq = bgq + w2g(21, 28)
    for j in range(28):
        if j == pd3:
            p.add(pub(5, "stD3"))
        if j == pi2:
            poll_issue(p, g, 4, 14)
        if j == pc2:
            poll_check(p, g, 4)
            stamp(p, "syncD2")
            bgq = ldB(14, 21) + bgq
        if j == pi3:
            poll_issue(p, g, 5, 14)
        if j == pc3:
            poll_check(p, g, 5)
            stamp(p, "syncD3")
            assert not bgq, len(bgq)
            bgq = ldB(21, 28)
        if j == 21:
            p("s_barrier")
        kind, a0, a1 = a_regs(j)
        rd = []
        if 8 <= j + 3 < 28:
            _, r0, r1 = a_regs(j + 3)
            rd = w2_read(j + 3, [r0, r1], "v")
        k = 0
        for jn in range(2):
            for jm in range(2):
                if j >= 21 and jm == 0 and jn == 0:
                    continue
                acc = ACC4 + 16 * (jm + 2 * jn)
                cin = acc if (j > 0 or (jm == 0 and jn == 0)) else None
                mfma(p, acc, [a0, a1][jm], bslot(j) + 4 * jn, cin, ak=kind, bk="a")
                take = OPT.get("p4take", 3) if j < pc3 else 4
                if k < take and bgq:
                    p.add(bgq.pop(0))
                if jm == 1 and jn == 1:
                    p.add(rd)
                k += 1
        if j in (13, 20):
            stamp(p, f"p4j{j}")
    assert not bgq
    stamp(p, "p4mfma")
    wr = Prog()
    for j in range(1, 4):
        wr(f"s_xor_b32 s{sA}, s{sW}, {j}")
        wr(f"s_mul_i32 s{sA}, s{sA}, 12288")
        wr(f"v_add_u32 v{[t0, t1, t2][j-1]}, s{sA}, v{vL16}")
    wr(f"s_mul_i32 s{sA}, s{sW}, 12288")
    wr(f"v_add_u32 v{t3}, s{sA}, v{vL16}")
    for j in range(1, 4):
        for gg in range(4):
            wr(f"ds_write_b128 v{[t0, t1, t2][j-1]}, {q4(ACC4+16*j+4*gg)} offset:{(j-1)*4096+gg*1024}")
    m = Prog()
    for j in range(21, 28):
        mfma(m, ACC4, AKEEP[j - 21], bslot(j), ACC4, bk="a")
    wi = wr.items
    p.add(m.items[:1] + wi[:6] + m.items[1:2] + wi[6:11])
    for i_ in range(5):
        p.add(m.items[2 + i_:3 + i_] + wi[11 + i_:12 + i_])
    p.add(wi[16:])
    p(f"v_and_b32 v{t0}, 31, v1")
    p(f"v_mul_u32_u24 v{t0}, 896, v{t0}")
    p(f"v_lshl_add_u32 v{vOo}, v{vHF}, 4, v{t0}")
    p(f"s_mul_i32 s{sA}, s{sRTf}, {32*896}")
    p(f"s_lshl_b32 s{sB}, s{sTf}, 6")
    p(f"s_add_u32 s{sA}, s{sA}, s{sB}")
    p.barrier()
    stamp(p, "p4ex")
    for half in range(2):
        for gg in range(2 * half, 2 * half + 2):
            for j in range(3):
                p(f"ds_read_b128 {q4(RD4[j]+4*gg)}, v{t3} offset:{j*4096+gg*1024}")
    for half in range(2):
        js = range(8 * half, 8 * half + 8, 2)
        for j in js:
            p(f"v_pk_add_f32 {pr(ACC4,j)}, {pr(ACC4,j)}, {pr(RD4[0],j)}")
            p(f"v_pk_add_f32 {pr(RD4[1],j)}, {pr(RD4[1],j)}, {pr(RD4[2],j)}")
        for j in js:
            p(f"v_pk_add_f32 {pr(ACC4,j)}, {pr(ACC4,j)}, {pr(RD4[1],j)}")
        for j in js:
            p(f"v_cvt_pk_bf16_f32 v{OB4+j//2}, v{ACC4+j}, v{ACC4+j+1}")
        p(f"v_permlane32_swap_b32 v{OB4+4*half}, v{OB4+4*half+2}")
        p(f"v_permlane32_swap_b32 v{OB4+4*half+1}, v{OB4+4*half+3}")
        p(f"buffer_store_dwordx4 {q4(OB4+4*half)}, v{vOo}, {R(ROUT)}, s{sA} offen offset:{32*half}")
    p("s_branch L_fin")
    p("L_idle:")
    p(f"s_sub_u32 s{sA}, s{sI}, 28")
    p(f"s_lshl_b32 s{sA}, s{sA}, 2")
    p(f"s_add_u32 s{sA}, s{sA}, s{sW}")
    p(f"s_lshl_b32 s{sA}, s{sA}, 13")
    p(f"v_lshl_add_u32 v{vTch}, v1, 7, s{sA}")
    if OPT.get("idle", 1):
        for k in range(13):
            p(f"s_mov_b32 s{sA}, {k << 17}")
            p(f"buffer_load_dword v{vDum}, v{vTch}, {R(RW2)}, s{sA} offen")
    p("L_fin:")
    p("s_waitcnt vmcnt(0)")
    stamp_flush(p)
    body = finalize(flat(p.items), name)
    txt = [f".globl {name}_kernel", ".p2align 8", f".type {name}_kernel,@function", f"{name}_kernel:"]
    txt += body
    txt += ["L_end:", "    s_endpgm"]
    kd = f""".amdhsa_kernel {name}_kernel
  .amdhsa_next_free_vgpr 512
  .amdhsa_next_free_sgpr 102
  .amdhsa_accum_offset 256
  .amdhsa_group_segment_fixed_size 0
  .amdhsa_kernarg_size 96
  .amdhsa_user_sgpr_count 2
  .amdhsa_user_sgpr_kernarg_segment_ptr 1
  .amdhsa_system_sgpr_workgroup_id_x 1
.end_amdhsa_kernel"""
    return "\n".join(txt), kd


def main(out):
    body, kd = gen()
    hdr = open("cdna_kernels/" + NAME + ".s.ref").read().split("; Override launch")[0]
    txt = hdr
    txt += f"; @launch grid=(256,1,1) block=(256,1,1) lds={LDS_BYTES}\n"
    if DIAG:
        txt += "; stamps: " + ",".join(STNAMES) + "\n"
    txt += '.amdgcn_target "amdgcn-amd-amdhsa--gfx950"\n.text\n'
    txt += body + "\n"
    txt += '.section .rodata,"a"\n.p2align 6\n' + kd + "\n"
    open(out, "w").write(txt)


if __name__ == "__main__":
    for a in sys.argv[2:]:
        if a == "diag":
            DIAG = True
        elif "=" in a:
            k, v = a.split("=")
            OPT[k] = int(v)
    main(sys.argv[1])
```

```python
import re

TRANS = ("v_exp_f32", "v_log_f32", "v_rcp_f32", "v_rsq_f32", "v_sqrt_f32", "v_sin_f32", "v_cos_f32")

_reg_re = re.compile(r"^(-?)(?:abs\()?([vsa])(?:(\d+)|\[(\d+):(\d+)\])\)?$")


def regs_of(tok):
    tok = tok.strip()
    if tok in ("vcc", "exec", "m0", "scc"):
        return [(tok, 0)]
    if tok in ("vcc_lo", "vcc_hi"):
        return [("vcc", 0)]
    if tok in ("exec_lo", "exec_hi"):
        return [("exec", 0)]
    m = _reg_re.match(tok)
    if not m:
        return []
    k = m.group(2)
    if m.group(3) is not None:
        return [(k, int(m.group(3)))]
    return [(k, i) for i in range(int(m.group(4)), int(m.group(5)) + 1)]


def split_ops(s):
    out, depth, cur = [], 0, ""
    for ch in s:
        if ch in "[(":
            depth += 1
        if ch in "])":
            depth -= 1
        if ch == "," and depth == 0:
            out.append(cur.strip())
            cur = ""
        else:
            cur += ch
    if cur.strip():
        out.append(cur.strip())
    return out


class Ins:
    __slots__ = ("text", "op", "dst", "src", "kind", "srcC", "srcAB", "tag", "passes", "data", "lds_dma", "extra")

    def __init__(self, text, tag=None):
        self.text = text
        self.tag = tag
        self.extra = None
        t = text.split(";")[0].strip()
        parts = t.split(None, 1)
        self.op = op = parts[0]
        rest = parts[1] if len(parts) > 1 else ""
        ops = split_ops(rest)
        mods = ""
        if ops:
            last = ops[-1].split()
            ops[-1] = last[0]
            mods = " ".join(last[1:])
        self.dst, self.src = [], []
        self.srcC, self.srcAB, self.data = [], [], []
        self.passes = 0
        self.lds_dma = False
        R = [regs_of(o) for o in ops]
        if op.endswith(":") or op.startswith("."):
            self.kind = "label"
        elif op.startswith("v_mfma"):
            self.kind = "mfma"
            self.dst = R[0]
            self.srcAB = R[1] + R[2]
            self.srcC = R[3]
            self.src = self.srcAB + self.srcC
            self.passes = 8 if "32x32" in op else 4
        elif op.startswith("v_"):
            self.kind = "valu"
            if op.startswith("v_cmp"):
                self.dst = R[0]
                self.src = sum(R[1:], [])
            elif op.startswith("v_permlane") and "swap" in op:
                self.dst = R[0] + R[1]
                self.src = R[0] + R[1]
            elif op in ("v_add_co_u32", "v_addc_co_u32", "v_sub_co_u32", "v_subb_co_u32"):
                self.dst = R[0] + R[1]
                self.src = sum(R[2:], [])
            else:
                self.dst = R[0]
                self.src = sum(R[1:], [])
                if op.startswith(("v_fmac", "v_dot2c", "v_pk_fmac")) or (op.startswith("v_mov_b32") and "dpp" in op):
                    self.src += R[0]
                if op.startswith("v_cndmask") and len(R) == 3:
                    self.src += [("vcc", 0)]
        elif op.startswith(("buffer_", "global_")):
            self.kind = "vmem"
            allmods = (" " + mods + " ")
            is_lds = " lds " in allmods or "_lds_" in op
            if op.startswith("buffer_"):
                if op in ("buffer_wbl2", "buffer_inv"):
                    pass
                elif is_lds:
                    self.lds_dma = True
                    self.src = sum(R, []) + [("m0", 0)]
                elif "load" in op:
                    self.dst = R[0]
                    self.src = sum(R[1:], [])
                    if "d16" in op:
                        self.src += R[0]
                elif "atomic" in op:
                    self.data = R[0]
                    self.src = sum(R, [])
                    if " sc0 " in allmods:
                        self.dst = R[0][: max(1, len(R[0]) // (2 if "cmpswap" in op else 1))]
                else:
                    self.data = R[0]
                    self.src = sum(R, [])
            else:
                if is_lds:
                    self.lds_dma = True
                    self.src = sum(R, []) + [("m0", 0)]
                elif "load" in op:
                    self.dst = R[0]
                    self.src = sum(R[1:], [])
                elif "atomic" in op:
                    if " sc0 " in allmods:
                        self.dst = R[0]
                        self.src = sum(R[1:], [])
                        self.data = R[2]
                    else:
                        self.src = sum(R, [])
                        self.data = R[1]
                else:
                    self.data = R[1]
                    self.src = sum(R, [])
        elif op.startswith("ds_"):
            self.kind = "ds"
            if "read" in op or "permute" in op or "swizzle" in op:
                self.dst = R[0]
                self.src = sum(R[1:], [])
            else:
                self.src = sum(R, [])
        elif op.startswith(("s_load", "s_buffer_load", "s_memtime", "s_memrealtime")):
            self.kind = "smem"
            self.dst = R[0]
            self.src = sum(R[1:], [])
        elif op in ("s_waitcnt", "s_nop", "s_barrier", "s_endpgm", "s_sleep", "s_setprio", "s_branch") or op.startswith("s_cbranch"):
            self.kind = "ctl"
        elif op.startswith("s_"):
            self.kind = "salu"
            if op.startswith("s_cmp"):
                self.src = sum(R, [])
            else:
                self.dst = R[0]
                self.src = sum(R[1:], [])
                if "saveexec" in op:
                    self.dst = self.dst + [("exec", 0)]
        else:
            raise ValueError("unknown instruction: " + text)


class Wait:
    def __init__(self, what, tag=None):
        self.what = what
        self.tag = tag


class Need:
    def __init__(self, tok):
        self.regs = regs_of(tok)


class Raw:
    def __init__(self, text, uses=(), defs=(), pad=True):
        self.pad = pad
        self.text = text
        self.uses = [r for t in uses for r in regs_of(t)]
        self.defs = [r for t in defs for r in regs_of(t)]


class Prog:
    def __init__(self):
        self.items = []

    def raw(self, text, uses=(), defs=(), pad=True):
        self.items.append(Raw(text, uses, defs, pad))

    def __call__(self, text, tag=None):
        for line in text.strip().split("\n"):
            line = line.strip()
            if line and not line.startswith(";"):
                self.items.append(Ins(line, tag))

    def add(self, items):
        self.items.extend(items)

    def wait_vm(self, tag):
        self.items.append(Wait("vmtag", tag))

    def wait_vm0(self):
        self.items.append(Wait("vm0"))

    def wait_lgkm0(self):
        self.items.append(Wait("lgkm0"))

    def barrier(self, lgkm=True):
        if lgkm:
            self.wait_lgkm0()
        self("s_barrier")

    def sub(self):
        return Prog()


def merge(main, fill, per=None, start=0):
    idx = [i for i, it in enumerate(main) if isinstance(it, Ins) and it.kind == "mfma"]
    idx = idx[start:]
    out = []
    n = len(idx)
    if n == 0:
        return list(main) + list(fill)
    pos = 0
    total = len(fill)
    slot = 0
    idxset = {i: k for k, i in enumerate(idx)}
    for i, it in enumerate(main):
        out.append(it)
        if i in idxset:
            k = idxset[i] + 1
            want = (total * k + n - 1) // n if per is None else min(total, per * k)
            while pos < want:
                out.append(fill[pos])
                pos += 1
    out.extend(fill[pos:])
    return out


def finalize(items, name="", check_uninit=False):
    out = []
    vm_issued = 0
    vm_done = 0
    lg_issued = 0
    lg_done = 0
    smem_pending = False
    pend_vm = {}
    pend_lg = {}
    pend_smem = set()
    tag_vm = {}
    hist = []
    pos = 0

    def emit(ins):
        nonlocal pos
        out.append(ins)
        if ins.kind == "label":
            return
        hist.append((ins, pos))
        if ins.op == "s_nop":
            pos += int(ins.text.split()[1], 0) + 1
        else:
            pos += 1
        if len(hist) > 40:
            del hist[0]

    def do_wait(vm=None, lg=None):
        nonlocal vm_done, lg_done, smem_pending
        parts = []
        if vm is not None:
            n = vm_issued - vm
            if vm > vm_done:
                parts.append(f"vmcnt({min(n, 63)})")
                vm_done = vm_issued - min(n, 63)
        if lg is not None:
            if smem_pending:
                parts.append("lgkmcnt(0)")
                lg_done = lg_issued
                smem_pending = False
                pend_smem.clear()
            elif lg > lg_done:
                n = lg_issued - lg
                parts.append(f"lgkmcnt({min(n, 15)})")
                lg_done = lg_issued - min(n, 15)
        if parts:
            if out and out[-1].op == "s_waitcnt" and getattr(out[-1], "extra", None) == "auto":
                cur = dict(re.findall(r"(vmcnt|lgkmcnt)\((\d+)\)", out[-1].text))
                for k_, v_ in re.findall(r"(vmcnt|lgkmcnt)\((\d+)\)", " ".join(parts)):
                    cur[k_] = str(min(int(v_), int(cur.get(k_, 99))))
                out[-1].text = "s_waitcnt " + " ".join(f"{k_}({cur[k_]})" for k_ in ("vmcnt", "lgkmcnt") if k_ in cur)
            else:
                w_ = Ins("s_waitcnt " + " ".join(parts))
                w_.extra = "auto"
                emit(w_)

    for it in items:
        if isinstance(it, Need):
            nv = max([pend_vm[r] for r in it.regs if r in pend_vm] + [0])
            nl = max([pend_lg[r] for r in it.regs if r in pend_lg] + [0])
            do_wait(vm=nv if nv > vm_done else None, lg=nl if nl > lg_done else None)
            continue
        if isinstance(it, Raw):
            nv = max([pend_vm[r] for r in it.uses + it.defs if r in pend_vm] + [0])
            nl = max([pend_lg[r] for r in it.uses + it.defs if r in pend_lg] + [0])
            if any(r in pend_smem for r in it.uses + it.defs) and smem_pending:
                nl = max(nl, lg_issued, 1)
            do_wait(vm=nv if nv > vm_done else None, lg=nl if (nl > lg_done or (nl and smem_pending)) else None)
            if it.pad:
                emit(Ins("s_nop 4"))
            for line in it.text.strip().split("\n"):
                line = line.strip()
                if line and not line.startswith(";"):
                    emit(Ins(line))
            if it.pad:
                emit(Ins("s_nop 4"))
            continue
        if isinstance(it, Wait):
            if it.what == "vmtag":
                assert it.tag in tag_vm, f"unknown vm tag {it.tag}"
                do_wait(vm=tag_vm[it.tag])
            elif it.what == "vm0":
                do_wait(vm=vm_issued)
            elif it.what == "lgkm0":
                if smem_pending or lg_issued > lg_done:
                    do_wait(lg=lg_issued)
            continue
        ins = it
        if ins.kind == "label" or (ins.kind == "ctl" and (ins.op.startswith("s_cbranch") or ins.op == "s_branch")):
            emit(ins)
            continue
        if ins.op == "s_waitcnt":
            m = re.search(r"vmcnt\((\d+)\)", ins.text)
            if m:
                vm_done = max(vm_done, vm_issued - int(m.group(1)))
            m = re.search(r"lgkmcnt\((\d+)\)", ins.text)
            if m:
                n = int(m.group(1))
                if n == 0:
                    lg_done = lg_issued
                    smem_pending = False
                    pend_smem.clear()
                elif not smem_pending:
                    lg_done = max(lg_done, lg_issued - n)
            emit(ins)
            continue
        need_vm, need_lg = 0, 0
        touch = list(ins.src) + list(ins.dst)
        srcset = set(ins.src)
        for r in touch:
            if r in pend_vm and pend_vm[r] > vm_done and not (ins.kind == "vmem" and r not in srcset):
                need_vm = max(need_vm, pend_vm[r])
            if r in pend_lg and pend_lg[r] > lg_done and not (ins.kind == "ds" and r not in srcset):
                need_lg = max(need_lg, pend_lg[r])
            if r in pend_smem and smem_pending:
                need_lg = max(need_lg, lg_issued, 1)
        if need_vm or need_lg:
            do_wait(vm=need_vm or None, lg=need_lg or None)
        need = 0
        srcs, dsts = set(ins.src), set(ins.dst)
        for (p, ppos) in hist:
            dist = pos - ppos - 1
            if p.op == "s_nop":
                continue
            req = 0
            pd = set(p.dst)
            if p.kind == "valu":
                isdot = p.op.startswith("v_dot")
                if ins.kind == "mfma" and pd & srcs:
                    req = max(req, 3 if isdot else 2)
                if ins.kind == "valu":
                    if p.op.startswith(TRANS) and not ins.op.startswith(TRANS) and pd & srcs:
                        req = max(req, 1)
                    if ins.op.startswith("v_permlane") and pd & srcs:
                        req = max(req, 2)
                    if "dpp" in ins.text and pd & srcs:
                        req = max(req, 2)
                    if ins.op.startswith(("v_readfirstlane", "v_readlane")) and pd & srcs:
                        req = max(req, 1)
                    sg = {r for r in pd if r[0] in ("s", "vcc")}
                    if sg & srcs:
                        req = max(req, 4 if ins.op.startswith(("v_readlane", "v_writelane")) else 2)
                    if isdot and pd & (srcs | dsts):
                        same = ins.op == p.op
                        if same:
                            ab = set(ins.src[:-1]) if ins.op.startswith("v_dot2c") else set(ins.src[:2])
                            if pd & ab:
                                req = max(req, 3)
                        else:
                            req = max(req, 3)
                if ins.kind in ("vmem", "ds") and isdot and pd & srcs:
                    req = max(req, 3)
                if ins.kind == "vmem":
                    sg = {r for r in pd if r[0] in ("s", "vcc")}
                    if sg & srcs:
                        req = max(req, 5)
                if ("exec", 0) in pd:
                    req = max(req, 5)
            elif p.kind == "mfma":
                big = p.passes == 8
                if ins.kind == "mfma":
                    c = set(ins.srcC)
                    if pd & c and not (list(p.dst) == list(ins.srcC) and p.passes == ins.passes):
                        req = max(req, 10 if big else 6)
                    if pd & set(ins.srcAB):
                        req = max(req, 12 if big else 8)
                    if pd & dsts and not (list(p.dst) == list(ins.srcC)):
                        req = max(req, 12 if big else 8)
                elif ins.kind in ("valu", "vmem", "ds"):
                    if pd & (srcs | dsts):
                        req = max(req, 12 if big else 8)
                    if set(p.srcC) & dsts:
                        req = max(req, 7 if big else 3)
            elif p.kind == "salu":
                if ("m0", 0) in pd and ins.kind == "vmem" and ins.lds_dma:
                    req = max(req, 1)
            elif p.kind == "vmem":
                if len(p.data) >= 3 and set(p.data) & dsts:
                    req = max(req, 2)
            if req > dist:
                need = max(need, req - dist)
        while need > 0:
            n = min(need, 16)
            emit(Ins(f"s_nop {n - 1}"))
            need -= n
        emit(ins)
        if ins.kind == "vmem":
            vm_issued += 1
            for r in ins.dst:
                pend_vm[r] = vm_issued
            if ins.tag is not None:
                tag_vm[ins.tag] = vm_issued
        elif ins.kind == "ds":
            lg_issued += 1
            for r in ins.dst:
                pend_lg[r] = lg_issued
        elif ins.kind == "smem":
            lg_issued += 1
            smem_pending = True
            for r in ins.dst:
                pend_smem.add(r)
    return [("" if i.kind == "label" else "    ") + i.text for i in out]


def vr(n, c=1):
    return f"v{n}" if c == 1 else f"v[{n}:{n + c - 1}]"


def ar(n, c=1):
    return f"a{n}" if c == 1 else f"a[{n}:{n + c - 1}]"


def sr(n, c=1):
    return f"s{n}" if c == 1 else f"s[{n}:{n + c - 1}]"


class RegAlloc:
    def __init__(self, start, limit):
        self.next = start
        self.limit = limit
        self.hi = start

    def __call__(self, n=1, align=None):
        if align is None:
            align = 1 if n == 1 else (2 if n == 2 else 4)
        self.next = (self.next + align - 1) // align * align
        r = self.next
        self.next += n
        assert self.next <= self.limit, f"out of registers: {self.next} > {self.limit}"
        self.hi = max(self.hi, self.next)
        return r

    def mark(self):
        return self.next

    def release(self, m):
        self.next = m


def est_cost(it):
    if not isinstance(it, Ins):
        return 0
    if it.kind == "label":
        return 0
    if it.kind == "mfma":
        return 32 if it.passes == 8 else 16
    if it.op.startswith(TRANS) or it.op.startswith("v_permlane"):
        return 8
    if it.op == "s_nop":
        return 4 * (int(it.text.split()[1], 0) + 1)
    if it.kind == "vmem":
        return 20
    return 4


def sprinkle(fg, groups, spacing, start=0, hide=24):
    out = []
    t = 0
    credit = 0
    nxt = start
    gi = 0
    for it in fg:
        if isinstance(it, list):
            out.extend(it)
            t += sum(est_cost(x) for x in it)
            continue
        out.append(it)
        c = est_cost(it)
        if isinstance(it, Ins) and it.kind == "mfma":
            t += c
            credit = hide if it.passes == 8 else 8
        else:
            use = min(credit, c)
            credit -= use
            t += c - use
        while gi < len(groups) and t >= nxt:
            out.extend(groups[gi])
            gc = sum(est_cost(x) for x in groups[gi])
            use = min(credit, gc)
            credit -= use
            t += gc - use
            gi += 1
            nxt = max(nxt + spacing, t + spacing // 2) if spacing else nxt
    for g in groups[gi:]:
        out.extend(g)
    return out


def flat(items):
    out = []
    for it in items:
        if isinstance(it, list):
            out.extend(it)
        else:
            out.append(it)
    return out
```

```python
import sys, math, struct
from dsl import *

NAME = "sequential_preLN__linear_kernel_hedgehog__mixer_channel_mlp__prompt"
S, D, H, DH, F = 2048, 448, 16, 28, 1792

WS_KVP = 0
WS_FLAG = 1 << 20
WS_ST = (1 << 20) + (512 << 10)
WS_OF = 2 << 20
WS_HF = 4 << 20
WS_H1F = 6 << 20
WS_TS = 32 << 20
WS_SIZE = 256 << 20

LOG2E = 1.4426950408889634
DIAG = False
OPT = {}


def f32(x):
    return "0x%08x" % struct.unpack("<I", struct.pack("<f", x))[0]


SX, SWQKV, SWPHI, SWO, SBX, SW1, SB1, SW2, SB2, SOUT, SDBG, SWS = [16 + 2 * i for i in range(12)]
RX, RWQKV, RWPHI, RWO, RB1, RWS, RW1, RW2, RB2, ROUT, RDBG = 40, 44, 48, 52, 56, 60, 64, 68, 72, 76, 80
SPOLL = 44
sI, sW = 3, 4
sH, sRB, sRT = 5, 6, 7
sCT, sRB64 = 8, 9
sFT, sRB3 = 10, 11
sA, sB, sC, sD = 12, 13, 14, 15
sK1, sK2, sWOl, sRTf, sTf, sRT3 = 16, 17, 18, 19, 20, 21
sTag = 22
sW2src, sWOsrc, sK4, sT1 = 24, 25, 26, 27
sPo, sW2src2, sWo2, sC2, sD2, sH1a, sH1b = 28, 29, 30, 31, 32, 33, 34
sW1b = [35, 36, 37, 38]
sR3 = 39
sCx, sCw, sRot, sSh, sXRb, sXbeg, sXend, sWbeg = 84, 85, 86, 87, 88, 89, 90, 91
TBL = [84, 85, 86, 87, 88, 89, 90, 91, 93, 94, 95, 96, 97, 98]
sBG, sE = 92, 99
sCw2, sWend = 93, 94
sMk = 96

L_WK, L_WV, L_WQ, L_XR, L_WPHI, L_MISC = 0, 28672, 57344, 86016, 151552, 155648
L_PK, L_VF, L_WO = 0, 155648, 86016
L_I = [0, 57344]
L_EX2 = 147456
L_CSX = 147456
LDS_BYTES = 163840
A_XRES, A_B2, A_B1 = 96, 104, 112


def R(r):
    return f"s[{r}:{r+3}]"


def srd(p, d, src, nbytes):
    p(f"s_mov_b32 s{d}, s{src}")
    p(f"s_mov_b32 s{d+1}, s{src+1}")
    p(f"s_mov_b32 s{d+2}, {nbytes}")
    p(f"s_mov_b32 s{d+3}, 0x00020000")


NST = [0]
STNAMES = []


def stamp(p, label=""):
    if not DIAG:
        return
    i = NST[0]
    NST[0] += 1
    STNAMES.append(label)
    assert i < 64
    p("s_memtime s[100:101]" if OPT.get("cyc") else "s_memrealtime s[100:101]")
    p(f"v_writelane_b32 v255, s100, {i}")


def stamp_flush(p):
    if not DIAG:
        return
    stamp(p, "end")
    p(f"s_lshl_b32 s{sA}, s2, 2")
    p(f"s_add_u32 s{sA}, s{sA}, s{sW}")
    p(f"s_lshl_b32 s{sA}, s{sA}, 8")
    p(f"s_add_u32 s{sA}, s{sA}, {WS_TS}")
    p("v_lshlrev_b32 v2, 2, v1")
    p(f"buffer_store_dword v255, v2, {R(RWS)}, s{sA} offen")


def xhalf(p, op, a, t):
    p(f"v_mov_b32 v{t}, v{a}")
    p(f"v_permlane32_swap_b32 v{a}, v{t}")
    p(f"{op} v{a}, v{a}, v{t}")


def pr(r, j=0, k="v"):
    return f"{k}[{r+j}:{r+j+1}]"


def q4(r, k="v"):
    return f"{k}[{r}:{r+3}]"


def q16(r):
    return f"v[{r}:{r+15}]"


def mfma(p, d, a, b, c=None, ak="v", bk="v"):
    cc = "0" if c is None else q16(c)
    p(f"v_mfma_f32_32x32x16_bf16 {q16(d)}, {q4(a, ak)}, {q4(b, bk)}, {cc}")


def dma_group(voff, srdreg, sbase, soff, slds, ldsoff, tag):
    return [Ins(f"s_add_u32 m0, s{slds}, {ldsoff}"),
            Ins(f"s_add_u32 s{sBG}, s{sbase}, {soff}"),
            Ins(f"buffer_load_dwordx4 v{voff}, {R(srdreg)}, s{sBG} offen lds", tag)]


def dma_run(voffs, srdreg, sbase, soff0, sstep, slds, lds0, a, b, tag):
    gs = []
    for j in range(a, b):
        grp = []
        if (j & 3) == 0 or j == a:
            grp.append(Ins(f"s_add_u32 m0, s{slds}, {lds0 + (j & ~3)*1024}"))
            grp.append(Ins(f"s_add_u32 s{sBG}, s{sbase}, {soff0 + (j & ~3)*sstep}"))
        grp.append(Ins(f"buffer_load_dwordx4 v{voffs[j & 3]}, {R(srdreg)}, s{sBG} offen offset:{(j & 3)*1024} lds", tag))
        gs.append(grp)
    return gs


def weave(mf, fill, budget=24):
    out, pos = [], 0
    n = len(mf)
    cost = lambda f: sum(est_cost(x) for x in f) if isinstance(f, list) else est_cost(f)
    spent = 0
    for i, it in enumerate(mf):
        out.append(it)
        if isinstance(it, Ins) and it.kind == "mfma":
            spent = 0
        else:
            spent += cost(it)
        nxt_is_mfma = (i + 1 == n) or (isinstance(mf[i + 1], Ins) and mf[i + 1].kind == "mfma")
        if nxt_is_mfma:
            b = budget - spent
            took = False
            while pos < len(fill) and (cost(fill[pos]) <= b or (not took and spent == 0)):
                b -= cost(fill[pos])
                out.append(fill[pos])
                pos += 1
                took = True
    return out, fill[pos:]


def paced(mf, groups, every, first=0):
    out, k, n = [], 0, 0
    for i, it in enumerate(mf):
        out.append(it)
        last = (i + 1 == len(mf)) or (isinstance(mf[i + 1], Ins) and mf[i + 1].kind == "mfma")
        if last:
            if n >= first and (n - first) % every == 0 and k < len(groups):
                out.append(groups[k])
                k += 1
            n += 1
    return out, groups[k:]


def split_pair(p, dst, x, t):
    p(f"v_cvt_pk_bf16_f32 v{t}, v{x}, v{x}")
    p(f"v_and_b32 v{t}, 0xffff0000, v{t}")
    p(f"v_sub_f32 v{t}, v{x}, v{t}")
    p(f"v_cvt_pk_bf16_f32 v{dst}, v{x}, v{t}")


def split_dup(p, dhi, dlo, x, t):
    p(f"v_cvt_pk_bf16_f32 v{dhi}, v{x}, v{x}")
    p(f"v_and_b32 v{t}, 0xffff0000, v{dhi}")
    p(f"v_sub_f32 v{t}, v{x}, v{t}")
    p(f"v_cvt_pk_bf16_f32 v{dlo}, v{t}, v{t}")


def masked(lo, hi, lines):
    q = Prog()
    q(f"s_mov_b32 exec_lo, {lo}")
    q(f"s_mov_b32 exec_hi, {hi}")
    for l in lines:
        q(l)
    q("s_mov_b64 exec, -1")
    return q.items


def sm_parts(P, E, OUT, vsc, T):
    mx, mn, t0, t1 = T, T + 1, T + 2, T + 4
    r = {}
    q = Prog()
    q(f"v_max3_f32 v{mx}, v{P}, v{P+1}, v{P+2}")
    q(f"v_min3_f32 v{mn}, v{P}, v{P+1}, v{P+2}")
    for j in range(3, 13, 2):
        q(f"v_max3_f32 v{mx}, v{mx}, v{P+j}, v{P+j+1}")
        q(f"v_min3_f32 v{mn}, v{mn}, v{P+j}, v{P+j+1}")
    q(f"v_max_f32 v{mx}, v{mx}, v{P+13}")
    q(f"v_max_f32 v{mn}, -v{mn}, -v{P+13}")
    q(f"v_mov_b32 v{OUT+7}, 0")
    q(f"v_mov_b32 v{OUT+15}, 0")
    q(f"v_permlane32_swap_b32 v{mx}, v{mn}")
    q(f"v_max_f32 v{mx}, v{mx}, v{mn}")
    q(f"v_mul_f32 v{t0}, v{mx}, v{vsc}")
    q(f"v_mul_f32 v{t1}, v{mx}, v{vsc}")
    q("s_nop 1")
    q(f"v_permlane32_swap_b32 v{t0}, v{t1}")
    r["max"] = q.items
    q = Prog()
    for j in range(0, 14, 2):
        q(f"v_pk_fma_f32 {pr(E,j)}, {pr(P,j)}, {pr(vsc)}, {pr(t0)} op_sel_hi:[1,0,0] neg_lo:[0,0,1] neg_hi:[0,0,1]")
        q(f"v_pk_fma_f32 {pr(E+14,j)}, {pr(P,j)}, {pr(vsc)}, {pr(t1)} op_sel_hi:[1,0,0] neg_lo:[1,0,1] neg_hi:[1,0,1]")
    r["fma"] = q.items
    r["exp"] = [Ins(f"v_exp_f32 v{E+j}, v{E+j}") for j in range(28)]
    q = Prog()
    q(f"v_pk_add_f32 {pr(t0)}, {pr(E)}, {pr(E,2)}")
    q(f"v_pk_add_f32 {pr(t1)}, {pr(E+14)}, {pr(E+14,2)}")
    for j in range(4, 14, 2):
        q(f"v_pk_add_f32 {pr(t0)}, {pr(t0)}, {pr(E,j)}")
        q(f"v_pk_add_f32 {pr(t1)}, {pr(t1)}, {pr(E+14,j)}")
    r["add"] = q.items
    q = Prog()
    q(f"v_add_f32 v{mx}, v{t0}, v{t0+1}")
    q(f"v_add_f32 v{mn}, v{t1}, v{t1+1}")
    q("s_nop 1")
    q(f"v_permlane32_swap_b32 v{mx}, v{mn}")
    q(f"v_add_f32 v{mx}, v{mx}, v{mn}")
    q(f"v_rcp_f32 v{t0}, v{mx}")
    q(f"v_rcp_f32 v{t1}, v{mx}")
    q("s_nop 1")
    q(f"v_permlane32_swap_b32 v{t0}, v{t1}")
    r["rcp"] = q.items
    r["mul"] = [Ins(f"v_pk_mul_f32 {pr(E+14*sg,j)}, {pr(E+14*sg,j)}, {pr([t0, t1][sg])} op_sel_hi:[1,0]") for sg in range(2) for j in range(0, 14, 2)]
    r["cvt"] = [Ins(f"v_cvt_pk_bf16_f32 v{OUT+8*sg+j//2}, v{E+14*sg+j}, v{E+14*sg+j+1}") for sg in range(2) for j in range(0, 14, 2)]
    return r


class G:
    pass


def flag(p, g, sync):
    p(f"buffer_store_dword v{g.vTag}, v{g.vFl[min(sync, 3)]}, {R(RWS)}, 0 offen offset:{sync*128} sc1")


def publish(p, g, sync, store_tag):
    p.wait_vm(store_tag)
    p.barrier()
    flag(p, g, sync)


def spoll(p, sync, n):
    np_ = n // 2
    x = "\n".join(f"s_xor_b64 s[{SPOLL+2*k}:{SPOLL+2*k+1}], s[{SPOLL+2*k}:{SPOLL+2*k+1}], s[{sTag}:{sTag+1}]" for k in range(np_))
    o = "\n".join(f"s_or_b64 s[{SPOLL}:{SPOLL+1}], s[{SPOLL}:{SPOLL+1}], s[{SPOLL+2*k}:{SPOLL+2*k+1}]" for k in range(1, np_))
    p.wait_lgkm0()
    p.raw(f"""
    s_mov_b32 s{sB}, 0
L_sp{sync}:
    s_load_dwordx16 s[{SPOLL}:{SPOLL+15}], s[0:1], {sync*128} glc
    s_add_u32 s{sB}, s{sB}, 1
    s_waitcnt lgkmcnt(0)
{x}
{o}
    s_cbranch_scc0 L_sp{sync}_done
    s_cmp_lt_u32 s{sB}, 0x10000
    s_cbranch_scc1 L_sp{sync}
L_sp{sync}_done:
""", pad=False)


def poll_issue(p, g, sync, n):
    p(f"buffer_load_dword v{g.vPT}, v{g.vPo}, {R(RWS)}, s{sPo} offen offset:{sync*128} sc1")


def poll_check(p, g, sync):
    t = g.vPT
    p.raw(f"""
    v_cmp_ne_u32 vcc, v{t}, v{g.vTag}
    s_mov_b32 s{sB}, 0
    s_cbranch_vccz L_poll{sync}_done
L_poll{sync}:
    buffer_load_dword v{t}, v{g.vPo}, {R(RWS)}, s{sPo} offen offset:{sync*128} sc1
    s_waitcnt vmcnt(0)
    v_cmp_ne_u32 vcc, v{t}, v{g.vTag}
    s_add_u32 s{sB}, s{sB}, 1
    s_cbranch_vccz L_poll{sync}_done
    s_cmp_lt_u32 s{sB}, 0x10000
    s_cbranch_scc1 L_poll{sync}
L_poll{sync}_done:
""", uses=[f"v{g.vPo}", f"v{g.vTag}", f"v{t}"], defs=[f"v{t}"], pad=False)


def mod7(q, r, tmp):
    q.items.append([Ins(f"s_sub_u32 s{tmp}, s{r}, 7"), Ins(f"s_cmp_ge_u32 s{r}, 7"), Ins(f"s_cselect_b32 s{r}, s{tmp}, s{r}")])


def gen():
    p = Prog()
    g = G()
    name = NAME
    p("s_cmp_ge_u32 s2, 256")
    p(f"s_cbranch_scc1 L_end")
    p("s_load_dwordx16 s[16:31], s[0:1], 0")
    p("s_load_dwordx8 s[32:39], s[0:1], 64")
    p("s_getpc_b64 s[96:97]")
    p("L_pc:")
    p("v_lshrrev_b32 v1, 6, v0")
    p(f"s_lshr_b32 s{sI}, s2, 3")
    p(f"v_readfirstlane_b32 s{sW}, v1")
    p("v_and_b32 v1, 63, v0")
    ra = RegAlloc(2, 255)
    t0, t1, t2, t3 = ra(), ra(), ra(), ra()
    vL16 = ra()
    g.vTag, g.vPT, g.vPo = ra(), ra(), ra()
    g.vFl = [ra() for _ in range(4)]
    vR, vMC, vHF, vOnes = ra(), ra(), ra(), ra()
    vW64 = [ra() for _ in range(4)]
    vW1 = [ra() for _ in range(4)]
    vEp, vTch = ra(), ra()
    PHQ = ra(16, 4)
    HRES = PHQ + 8
    p1_mark = ra.mark()
    vCs = ra(2, 2)
    vAw, vAi0 = ra(), ra()
    vB4 = [[ra(), ra()] for _ in range(3)]
    base_mark = ra.mark()
    assert base_mark - p1_mark <= 11
    ra.release(p1_mark)
    vX = [ra() for _ in range(4)]
    vWk, vWv, vWq = ra(), ra(), ra()
    vXr = [ra() for _ in range(4)]
    vAw4 = [ra() for _ in range(4)]
    vAq4 = vAw4
    vAphi, vApk, vBv, vPkw, vMisc, vMr, vCx, vCr = [ra() for _ in range(8)]
    vS, vQ, vCk, vCv, vCq = [ra() for _ in range(5)]
    vSelL, vSelH = vS, vQ
    vRS, vSC = ra(2, 2), ra(2, 2)
    T = ra(6, 2)
    XM, CMk, CMv = ra(4, 4), ra(4, 4), ra(4, 4)
    X = [ra(16, 4) for _ in range(4)]
    WF = ra(32, 4)
    AK, AV = ra(16, 4), ra(16, 4)
    E = ra(28, 4)
    PH = 48
    p(f"s_and_b32 s{sB}, s2, 3")
    p(f"s_lshl_b32 s{sB}, s{sB}, 2")
    p(f"s_and_b32 s{sRB}, s{sI}, 3")
    p(f"s_lshr_b32 s{sH}, s{sI}, 2")
    p(f"s_lshl_b32 s{sRot}, s{sRB}, 1")
    p(f"s_add_u32 s{sRot}, s{sRot}, s{sH}")
    mod7(p, sRot, sC)
    if not OPT.get("rot", 1):
        p(f"s_mov_b32 s{sRot}, 0")
    p(f"s_add_u32 s{sRB}, s{sRB}, s{sB}")
    p(f"s_and_b32 s{sB}, s2, 4")
    p(f"s_lshl_b32 s{sB}, s{sB}, 1")
    p(f"s_add_u32 s{sH}, s{sH}, s{sB}")
    p(f"s_lshl_b32 s{sRT}, s{sRB}, 2")
    p(f"s_add_u32 s{sRT}, s{sRT}, s{sW}")
    p(f"v_lshrrev_b32 v{t0}, 3, v1")
    p(f"v_mul_u32_u24 v{t3}, 896, v{t0}")
    p(f"v_and_b32 v{t1}, 7, v1")
    p(f"v_lshrrev_b32 v{t2}, 4, v1")
    p(f"v_xor_b32 v{t1}, v{t1}, v{t2}")
    p(f"v_lshl_add_u32 v{vX[0]}, v{t1}, 4, v{t3}")
    p(f"v_xor_b32 v{vX[1]}, 64, v{vX[0]}")
    p(f"v_add_u32 v{vX[1]}, {8*896-1024}, v{vX[1]}")
    p(f"v_add_u32 v{vX[2]}, {16*896-2048}, v{vX[0]}")
    p(f"v_add_u32 v{vX[3]}, {16*896-2048}, v{vX[1]}")
    p(f"v_lshrrev_b32 v{t0}, 2, v1")
    p(f"v_mul_u32_u24 v{t0}, 2688, v{t0}")
    p(f"v_and_b32 v{t1}, 3, v1")
    p(f"v_lshl_add_u32 v{vWq}, v{t1}, 4, v{t0}")
    p(f"v_add_u32 v{vWk}, 896, v{vWq}")
    p(f"s_mul_i32 s{sXbeg}, s{sRT}, {32*896}")
    p(f"s_add_u32 s{sXend}, s{sXbeg}, 896")
    p(f"s_lshl_b32 s{sA}, s{sRot}, 7")
    p(f"s_add_u32 s{sCx}, s{sXbeg}, s{sA}")
    p(f"s_mul_i32 s{sC}, s{sH}, 56")
    p(f"s_cmp_eq_u32 s{sH}, 15")
    p(f"s_cselect_b32 s{sSh}, 8, 0")
    p(f"s_sub_u32 s{sC}, s{sC}, s{sSh}")
    p(f"s_mul_i32 s{sWbeg}, s{sW}, {16*2688}")
    p(f"s_add_u32 s{sWbeg}, s{sWbeg}, s{sC}")
    p(f"s_mul_i32 s{sA}, s{sRot}, {64*2688}")
    p(f"s_add_u32 s{sCw}, s{sWbeg}, s{sA}")
    p(f"s_mov_b32 s{sCw2}, s{sCw}")
    p(f"s_add_u32 s{sWend}, s{sWbeg}, {448*2688}")
    p(f"s_lshl_b32 s{sXRb}, s{sW}, 14")
    p(f"s_add_u32 s{sXRb}, s{sXRb}, {L_XR}")
    p(f"s_lshl_b32 s{sD}, s{sW}, 10")
    p(f"s_mov_b32 s{RX+2}, {S*D*2}")
    p(f"s_mov_b32 s{RX+3}, 0x00020000")
    p(f"s_mov_b32 s{RWQKV+2}, {D*3*D*2}")
    p(f"s_mov_b32 s{RWQKV+3}, 0x00020000")
    p(f"s_and_b32 s{sB}, s{sI}, 7")
    p(f"s_lshl_b32 s{sB}, s{sB}, 2")
    p(f"s_add_u32 s{sB}, s{sB}, s{sW}")
    p(f"s_lshl_b32 s{sB}, s{sB}, 10")
    p(f"v_and_b32 v{t0}, 7, v1")
    p(f"v_lshl_add_u32 v{t0}, v{t0}, 7, s{sB}")
    p(f"v_min_u32 v{t0}, L_end-L_pc, v{t0}")
    p(f"global_load_dword a60, v{t0}, s[96:97]")
    stamp(p, "start")
    p(f"s_mov_b64 s[{RX}:{RX+1}], s[{SX}:{SX+1}]")
    p(f"s_mov_b64 s[{RWQKV}:{RWQKV+1}], s[{SWQKV}:{SWQKV+1}]")
    p(f"s_mov_b32 s{sK1}, s{sD}")

    def adv():
        return [Ins(f"s_add_u32 s{sCw}, s{sCw}, {64*2688}"), Ins(f"s_add_u32 s{sCx}, s{sCx}, 128"),
                Ins(f"s_cmp_eq_u32 s{sCx}, s{sXend}"), Ins(f"s_cselect_b32 s{sCx}, s{sXbeg}, s{sCx}"),
                Ins(f"s_cselect_b32 s{sCw}, s{sWbeg}, s{sCw}")]

    def wpiece(voff, base, pos, tag):
        return [Ins(f"s_add_u32 m0, s{sK1}, {base + pos*4096}"), Ins("s_nop 0"),
                Ins(f"buffer_load_dwordx4 v{voff}, {R(RWQKV)}, s{sCw} offen lds", tag)]

    def pos_groups(pos):
        gs = [wpiece(vWk, L_WK, pos, f"p{pos}")]
        for j in range(4):
            gs.append(([Ins(f"s_add_u32 m0, s{sXRb}, {(pos & 3)*4096}"), Ins("s_nop 0")] if j == 0 else []) +
                      [Ins(f"buffer_load_dwordx4 v{vX[j]}, {R(RX)}, s{sCx} offen offset:{j*1024} lds", f"p{pos}")] + (adv() if j == 3 else []))
        return gs

    def wstream(voff, base, tag):
        return [[Ins(f"s_add_u32 m0, s{sK1}, {base + pos*4096}"), Ins("s_nop 0"),
                 Ins(f"buffer_load_dwordx4 v{voff}, {R(RWQKV)}, s{sCw2} offen lds", tag),
                 Ins(f"s_add_u32 s{sCw2}, s{sCw2}, {64*2688}"), Ins(f"s_cmp_eq_u32 s{sCw2}, s{sWend}"),
                 Ins(f"s_cselect_b32 s{sCw2}, s{sWbeg}, s{sCw2}")] for pos in range(7)]

    NP0 = OPT.get("np0", 2)
    for pos in range(NP0):
        p.add(flat(pos_groups(pos)))
    stamp(p, "iss0")
    q = Prog()
    q(f"s_lshl_b32 s{sK2}, s{sW}, 11")
    q(f"v_bfe_u32 v{vR}, v1, 2, 2")
    q(f"v_and_b32 v{vMC}, 3, v1")
    q(f"v_lshlrev_b32 v{vMC}, 3, v{vMC}")
    q(f"v_bfe_u32 v{vHF}, v1, 4, 1")
    q(f"v_lshl_add_u32 v{vMC}, v{vHF}, 5, v{vMC}")
    q(f"v_lshrrev_b32 v{vHF}, 5, v1")
    q(f"v_lshl_add_u32 v{t3}, v{vHF}, 3, v{vR}")
    q(f"v_add_u32 v{t0}, s{sSh}, v{vMC}")
    q(f"v_and_b32 v{t0}, 63, v{t0}")
    q(f"v_lshl_add_u32 v{t0}, v{t3}, 6, v{t0}")
    q(f"v_add_u32 v{vAw4[0]}, s{sK1}, v{t0}")
    for s in range(1, 4):
        q(f"v_xor_b32 v{vAw4[s]}, {s*1024}, v{vAw4[0]}")
    q(f"v_and_b32 v{t0}, 31, v1")
    q(f"v_bfe_u32 v{t1}, v1, 1, 3")
    q(f"v_xor_b32 v{t1}, v{t1}, v{vHF}")
    q(f"s_lshl_b32 s{sA}, s{sW}, 1")
    q(f"v_xor_b32 v{t1}, s{sA}, v{t1}")
    q(f"v_lshlrev_b32 v{t0}, 7, v{t0}")
    q(f"v_add_u32 v{t0}, s{sXRb}, v{t0}")
    q(f"v_lshl_add_u32 v{vXr[0]}, v{t1}, 4, v{t0}")
    for s in range(1, 4):
        q(f"v_xor_b32 v{vXr[s]}, {32*s}, v{vXr[0]}")
    q(f"v_mov_b32 v{vOnes}, 0x3f803f80")
    for r in (vS, vQ, vCk, vCv, vCq):
        q(f"v_mov_b32 v{r}, 0")
    q(f"v_add_u32 v{vWv}, 1792, v{vWq}")
    q("s_memrealtime s[98:99]")
    srd(q, RDBG, SDBG, 256)
    q(f"v_lshlrev_b32 v{vL16}, 4, v1")
    q(f"s_or_b32 s{sA}, s2, s{sW}")
    q(f"v_or_b32 v{vEp}, s{sA}, v1")
    q(f"v_lshlrev_b32 v{vEp}, 12, v{vEp}")
    srd(q, RWPHI, SWPHI, H * DH * DH * 2)
    srd(q, RWS, SWS, WS_SIZE)
    srd(q, RWO, SWO, D * D * 2)
    srd(q, RW1, SW1, D * F * 2)
    srd(q, RW2, SW2, F * D * 2)
    srd(q, RB1, SB1, F * 2)
    srd(q, RB2, SB2, D * 2)
    srd(q, ROUT, SOUT, S * D * 2)
    q(f"s_or_b32 s98, s98, 1")
    q(f"v_mov_b32 v{g.vPT}, s98")
    epst = [Ins(f"buffer_store_dword v{g.vPT}, v{vEp}, {R(RDBG)}, 0 offen sc1")]
    q(f"s_mov_b32 s{sMk}, 0xf0000000")
    q(f"s_mov_b32 s{sMk+1}, 0xf0000000")
    q(f"s_lshl_b32 s{sPo}, s2, 10")
    q(f"s_add_u32 s{sPo}, s{sPo}, {WS_FLAG}")
    q.items.append([Ins(f"s_add_u32 s0, s{SWS}, s{sPo}"), Ins(f"s_addc_u32 s1, s{SWS+1}, 0")])
    for r in (XM, CMk, CMv):
        q(f"v_mov_b32 v{r+2}, 0")
        q(f"v_mov_b32 v{r+3}, 0")
    q(f"v_lshl_add_u32 v{t3}, v{vHF}, 2, v{vR}")
    q(f"v_mul_u32_u24 v{vAphi}, 56, v{t3}")
    q(f"v_add_u32 v{vAphi}, v{vAphi}, v{vMC}")
    q(f"v_add_u32 v{vAphi}, {L_WPHI}, v{vAphi}")
    q(f"v_cmp_eq_u32 vcc, 56, v{vMC}")
    q(f"v_add_u32 v{t0}, {2048 - 8}, v{vAphi}")
    q(f"v_bfe_u32 v{t1}, v1, 4, 1")
    q(f"v_cndmask_b32 v{vAphi}, v{vAphi}, v{t0}, vcc")
    q(f"v_lshl_add_u32 v{t0}, v{t1}, 2, v{vR}")
    q(f"v_lshl_add_u32 v{t0}, v{vHF}, 4, v{t0}")
    q(f"v_mul_u32_u24 v{t0}, 136, v{t0}")
    q(f"v_and_b32 v{t2}, 3, v1")
    q(f"v_lshl_add_u32 v{t0}, v{t2}, 3, v{t0}")
    q(f"s_lshl_b32 s{sB}, s{sW}, 5")
    q(f"v_add_u32 v{vApk}, s{sB}, v{t0}")
    q(f"v_and_b32 v{t0}, 15, v1")
    q(f"v_lshlrev_b32 v{t0}, 4, v{t0}")
    q(f"v_lshl_add_u32 v{t0}, v{t1}, 9, v{t0}")
    q(f"v_lshl_add_u32 v{vBv}, v{vHF}, 10, v{t0}")
    q(f"v_add_u32 v{vBv}, {L_VF}, v{vBv}")
    q(f"v_and_b32 v{t0}, 31, v1")
    q(f"s_add_u32 s{sB}, s{sK2}, {L_VF}")
    q(f"v_lshl_add_u32 v{vMisc}, v{t0}, 2, s{sB}")
    q(f"v_lshl_add_u32 v{vMr}, v{vHF}, 4, s{sB}")
    q(f"v_mul_u32_u24 v{t0}, 136, v{t0}")
    q(f"v_lshl_add_u32 v{t0}, v{vHF}, 3, v{t0}")
    q(f"s_mul_i32 s{sB}, s{sW}, {32*136}")
    q(f"v_add_u32 v{vPkw}, s{sB}, v{t0}")
    q(f"v_lshlrev_b32 v{vCr}, 2, v1")
    q(f"v_add_u32 v{vCr}, {L_CSX}, v{vCr}")
    q(f"s_lshl_b32 s{sB}, s{sW}, 8")
    q(f"v_add_u32 v{vCx}, s{sB}, v{vCr}")
    q(f"s_and_b32 s{sC}, s{sW}, 1")
    q(f"s_lshl_b32 s{sC}, s{sC}, 10")
    q(f"s_lshr_b32 s{sB}, s{sW}, 1")
    q(f"s_lshl_b32 s{sB}, s{sB}, 2")
    q(f"s_add_u32 s{sC}, s{sC}, s{sB}")
    q(f"s_mul_i32 s{sB}, s{sH}, {DH*DH*2}")
    q(f"s_add_u32 s{sC}, s{sC}, s{sB}")
    q(f"s_lshl_b32 s{sB}, s{sI}, 2")
    q(f"s_add_u32 s{sB}, s{sB}, s{sW}")
    q(f"s_lshl_b32 s{sB}, s{sB}, 7")
    q(f"v_lshl_add_u32 v{vTch}, v1, 14, s{sB}")
    p.add(sprinkle(q.items, sum([pos_groups(k) for k in range(NP0, 3)], []), OPT.get("sp0", 90), start=OPT.get("st0", 200), hide=0))
    p.add(epst)
    stamp(p, "setup")

    s3 = Prog()
    s3(f"s_and_b32 s{sA}, s2, 7")
    s3(f"s_lshr_b32 s{sCT}, s{sI}, 2")
    s3(f"s_lshl_b32 s{sB}, s{sCT}, 7")
    s3(f"s_mul_i32 s{sWOsrc}, s{sW}, {15*8*896}")
    s3(f"s_add_u32 s{sWOsrc}, s{sWOsrc}, s{sB}")
    s3(f"s_mul_i32 s{sWOl}, s{sW}, {15*1024}")
    s3(f"v_lshrrev_b32 v{t0}, 2, v1")
    s3(f"v_lshrrev_b32 v{t1}, 4, v1")
    s3(f"v_xor_b32 v{t0}, v{t0}, v{t1}")
    s3(f"v_and_b32 v{t0}, 1, v{t0}")
    s3(f"v_and_b32 v{t1}, 3, v1")
    s3(f"v_lshlrev_b32 v{t1}, 4, v{t1}")
    s3(f"v_lshl_add_u32 v{vW1[0]}, v{t0}, 6, v{t1}")
    s3(f"v_lshrrev_b32 v{t0}, 3, v1")
    s3(f"v_mul_u32_u24 v{t0}, 896, v{t0}")
    s3(f"v_add_u32 v{vW64[0]}, v{t0}, v{vW1[0]}")
    s3(f"v_lshl_add_u32 v{vW1[0]}, v{t0}, 2, v{vW1[0]}")
    for j in range(1, 4):
        s3(f"v_add_u32 v{vW64[j]}, {j*(8*896-1024)}, v{vW64[0]}")
    n_s3a = len(s3.items)
    s3(f"s_lshl_b32 s{sB}, s{sW}, 2")
    s3(f"v_add_u32 v{t0}, s{sB}, v1")
    s3(f"v_mov_b32 v{t3}, 0xffff0000")
    s3(f"s_lshr_b32 s{sB}, s{sH}, 3")
    s3(f"s_lshl_b32 s{sB}, s{sB}, 2")
    s3(f"s_and_b32 s{sE}, s{sH}, 7")
    s3(f"s_lshl_b32 s{sE}, s{sE}, 5")
    s3(f"s_add_u32 s{sB}, s{sB}, s{sE}")
    s3(f"s_lshl_b32 s{sB}, s{sB}, 10")
    s3(f"s_lshl_b32 s{sE}, s{sRB}, 2")
    s3(f"s_add_u32 s{sB}, s{sB}, s{sE}")
    s3(f"s_add_u32 s{sB}, s{sB}, {WS_FLAG}")
    s3(f"v_lshrrev_b32 v{t1}, 2, v{t0}")
    s3(f"v_and_b32 v{t2}, 3, v{t0}")
    s3(f"v_cmp_gt_u32 vcc, 4, v1")
    s3(f"v_lshl_add_u32 v{t1}, v{t2}, 3, v{t1}")
    s3(f"v_lshl_add_u32 v{t1}, v{t1}, 10, s{sB}")
    s3(f"v_cndmask_b32 v{g.vFl[0]}, v{t3}, v{t1}, vcc")
    n_s3b = len(s3.items)
    s3(f"s_and_b32 s{sRB64}, s{sI}, 3")
    s3(f"s_lshl_b32 s{sB}, s{sA}, 2")
    s3(f"s_add_u32 s{sRB64}, s{sRB64}, s{sB}")
    s3(f"s_lshr_b32 s{sFT}, s{sI}, 1")
    s3(f"s_lshr_b32 s{sB}, s{sW}, 1")
    s3(f"s_lshl_b32 s{sRTf}, s{sRB64}, 1")
    s3(f"s_add_u32 s{sRTf}, s{sRTf}, s{sB}")
    s3(f"s_and_b32 s{sB}, s{sW}, 1")
    s3(f"s_lshl_b32 s{sTf}, s{sCT}, 1")
    s3(f"s_add_u32 s{sTf}, s{sTf}, s{sB}")
    s3(f"v_and_b32 v{t0}, 31, v1")
    s3(f"v_lshlrev_b32 v{t2}, 1, v{t0}")
    s3(f"s_lshl_b32 s{sE}, s{sFT}, 8")
    small = [[Ins(f"buffer_load_ushort a{A_B1+T_}, v{t2}, {R(RB1)}, s{sE} offen offset:{64*T_}")] for T_ in range(4)]

    s4 = Prog()
    s4(f"s_and_b32 s{sD}, s2, 7")
    s4(f"s_and_b32 s{sRB3}, s{sI}, 1")
    s4(f"s_lshl_b32 s{sB}, s{sD}, 1")
    s4(f"s_add_u32 s{sRB3}, s{sRB3}, s{sB}")
    s4(f"s_lshl_b32 s{sRT3}, s{sRB3}, 2")
    s4(f"s_add_u32 s{sRT3}, s{sRT3}, s{sW}")
    for j in range(1, 4):
        s4(f"v_add_u32 v{vW1[j]}, {j*(8*3584-1024)}, v{vW1[0]}")
    s4(f"s_lshl_b32 s{sK4}, s{sW}, 12")
    s4(f"s_mov_b32 s{sR3}, s{sFT}")
    mod7(s4, sR3, sE)
    mod7(s4, sR3, sE)
    if not OPT.get("rot3", 0):
        s4(f"s_mov_b32 s{sR3}, 0")
    s4(f"s_lshl_b32 s{sB}, s{sFT}, 8")
    s4(f"s_and_b32 s{sT1}, s{sW}, 1")
    s4(f"s_mul_i32 s{sT1}, s{sT1}, {32*3584}")
    s4(f"s_add_u32 s{sT1}, s{sT1}, s{sB}")
    for blk in range(4):
        r_ = sW1b[blk]
        if blk < 3:
            s4(f"s_lshr_b32 s{r_}, s{sW}, 1")
            s4(f"s_add_u32 s{r_}, s{r_}, s{sR3}")
            s4(f"s_add_u32 s{r_}, s{r_}, {2*blk}")
        else:
            s4(f"s_mul_i32 s{sT1}, s{sW}, {16*3584}")
            s4(f"s_add_u32 s{sT1}, s{sT1}, s{sB}")
            s4(f"s_add_u32 s{r_}, s{sR3}, 6")
        mod7(s4, r_, sE)
        s4(f"s_mul_i32 s{r_}, s{r_}, {64*3584}")
        s4(f"s_add_u32 s{r_}, s{r_}, s{sT1}")
    s4(f"s_lshl_b32 s{sB}, s{sW}, 2")
    s4(f"v_add_u32 v{t0}, s{sB}, v1")
    s4(f"v_mov_b32 v{t3}, 0xffff0000")
    s4(f"v_cmp_gt_u32 vcc, 4, v1")
    s4(f"v_cmp_gt_u32 s[94:95], 14, v{t0}")
    s4(f"v_and_b32 v{t1}, 1, v{t0}")
    s4(f"v_lshrrev_b32 v{t2}, 1, v{t0}")
    s4(f"s_and_b64 vcc, vcc, s[94:95]")
    s4(f"v_lshl_add_u32 v{t1}, v{t2}, 2, v{t1}")
    s4(f"v_lshlrev_b32 v{t1}, 13, v{t1}")
    for sync, srb, sslot in ((1, sRB, sH), (3, sRB3, sFT)):
        s4(f"s_lshr_b32 s{sB}, s{srb}, 1")
        s4(f"s_and_b32 s{sE}, s{srb}, 1")
        s4(f"s_lshl_b32 s{sE}, s{sE}, 4")
        s4(f"s_add_u32 s{sB}, s{sB}, s{sE}")
        s4(f"s_lshl_b32 s{sB}, s{sB}, 10")
        s4(f"s_lshl_b32 s{sE}, s{sslot}, 2")
        s4(f"s_add_u32 s{sB}, s{sB}, s{sE}")
        s4(f"s_add_u32 s{sB}, s{sB}, {WS_FLAG}")
        s4(f"v_add_u32 v{t2}, s{sB}, v{t1}")
        s4(f"v_cndmask_b32 v{g.vFl[sync]}, v{t3}, v{t2}, vcc")
    s4(f"s_lshr_b32 s{sB}, s{sRB64}, 1")
    s4(f"s_and_b32 s{sB}, s{sB}, 1")
    s4(f"s_lshl_b32 s{sB}, s{sB}, 3")
    s4(f"s_add_u32 s{sB}, s{sB}, s{sD}")
    s4(f"s_lshl_b32 s{sB}, s{sB}, 10")
    s4(f"s_and_b32 s{sE}, s{sRB64}, 1")
    s4(f"s_mul_i32 s{sE}, s{sE}, 7")
    s4(f"s_add_u32 s{sE}, s{sE}, s{sCT}")
    s4(f"s_lshl_b32 s{sE}, s{sE}, 2")
    s4(f"s_add_u32 s{sB}, s{sB}, s{sE}")
    s4(f"s_add_u32 s{sB}, s{sB}, {WS_FLAG}")
    s4(f"v_lshl_add_u32 v{t2}, v{t0}, 14, s{sB}")
    s4(f"v_cndmask_b32 v{g.vFl[2]}, v{t3}, v{t2}, vcc")
    s4(f"v_min_u32 v{g.vPo}, 13, v1")
    s4(f"v_lshlrev_b32 v{g.vPo}, 2, v{g.vPo}")

    def touch(srdreg, k):
        return [Ins(f"s_mov_b32 s{sBG}, {k << 20}"), Ins(f"buffer_load_dword a60, v{vTch}, {R(srdreg)}, s{sBG} offen")]

    def wo_groups(a, b):
        return dma_run(vW64, RWO, sWOsrc, 0, 8 * 896, sWOl, L_WO, a, b, "wo")

    def w1r(a, b):
        gs = []
        for im in range(2):
            for blk in range(4):
                k0, n = 14 * im + 4 * blk, (4 if blk < 3 else 2)
                lo, hi = max(a, k0), min(b, k0 + n)
                if lo < hi:
                    gs += dma_run(vW1, RW1, sW1b[blk], 128 * im, 8 * 3584, sK4 if blk < 3 else sK2, L_I[im] + blk * 16384, lo - k0, hi - k0, f"w1{im}")
        return gs

    def xop(pos, s):
        return ("a", 16 * pos + 4 * s) if pos < 3 else ("v", X[pos & 3] + 4 * s)

    def k_reads(pos):
        xr = [Ins(f"ds_read_b128 {q4(X[pos & 3]+4*s)}, v{vXr[s]} offset:{(pos & 3) * 4096}") for s in range(4)]
        wr = [Ins(f"ds_read_b64_tr_b16 {pr(WF+16*(pos & 1)+4*s,2*u)}, v{vAw4[s]} offset:{L_WK+pos*4096+u*256}") for s in range(4) for u in range(2)]
        return xr, wr

    def a_reads(pos):
        return [Ins(f"ds_read_b128 a[{16*pos+4*s}:{16*pos+4*s+3}], v{vXr[s]} offset:{(pos & 3) * 4096}") for s in range(4)] if pos < 3 else []

    def dots(pos):
        x = X[pos & 3]
        out = [Ins(l) for j in range(16) for l in (f"v_dot2c_f32_bf16 v{vS}, v{x+j}, v{vOnes}", f"v_dot2c_f32_bf16 v{vQ}, v{x+j}, v{x+j}")]
        return out + [Ins(f"v_dot2c_f32_bf16 v{vCk}, v{WF+16*(pos & 1)+j}, v{vOnes}") for j in range(4)]

    wphi_g = [Ins(f"s_add_u32 m0, s{sK1}, {L_WPHI}"), Ins("s_nop 0"), Ins(f"buffer_load_dwordx4 v{vL16}, {R(RWPHI)}, s{sC} offen lds", "wphi")]
    ep_g = [Ins(f"v_mov_b32 v{t0}, 0"), Ins(f"buffer_load_dword v{g.vTag}, v{t0}, {R(RDBG)}, 0 offen sc1")]
    tsel = OPT.get("tsel", 3)
    side = [wphi_g] + wstream(vWv, L_WV, "wv") + [ep_g] + wstream(vWq, L_WQ, "wq") + \
        [t_ for i_, t_ in enumerate([touch(RWO, 0), touch(RW1, 0), touch(RW1, 1)]) if tsel >> i_ & 1]
    sq = [int(c_) for c_ in "%06d" % OPT.get("sq", 264)]
    assert sum(sq) >= 8

    p.wait_vm("p0")
    p("s_barrier")
    stamp(p, "pos0")
    xr, wr = k_reads(0)
    p.add([xr[0]] + wr[:2] + [xr[1]] + wr[2:4] + [xr[2]] + wr[4:6] + [xr[3]] + wr[6:])
    for pos in range(7):
        if pos < 6:
            p.wait_vm(f"p{pos+1}")
            p.barrier(lgkm=(pos > 0))
        else:
            p.wait_vm("wphi")
            p.barrier()
        if pos in (2, 4, 6):
            stamp(p, f"it{pos}")
        m = Prog()
        for s in range(4):
            mfma(m, AK, WF + 16 * (pos & 1) + 4 * s, X[pos & 3] + 4 * s, None if (pos == 0 and s == 0) else AK)
        if pos == 6:
            break
        xr, wr = k_reads(pos + 1)
        bg = (pos_groups(pos + 3) if pos + 3 < 7 else []) + side[:sq[pos]]
        side = side[sq[pos]:]
        seq = xr[:2] + wr[:2] + xr[2:] + wr[2:] + a_reads(pos)
        o = []
        for i_, mm in enumerate(m.items):
            o += [mm] + seq[3 * i_:3 * i_ + 3]
            if bg and i_ < OPT.get("nbm", 4):
                o.append(bg.pop(0))
        p.add(o + seq[12:])
        p.add((dots(0) if pos == 0 else []) + dots(pos + 1))
        if pos == 5:
            p(f"ds_write_b32 v{vCx}, v{vCk}")
        p.add(flat(bg))
    order = [(pos, 0) for pos in range(7)] + [(pos, s) for pos in range(7) for s in range(1, 4)]
    def pass_stream(acc, addr, base, regs, transposed, PRE):
        def rd(n):
            pos, s = order[n]
            k_, r_ = regs(n)
            return [Ins(f"ds_read_b64_tr_b16 {pr(r_,2*u,k_)}, v{addr[s]} offset:{base+pos*4096+u*256}") for u in range(2)]
        head = [x for n in range(PRE) for x in rd(n)]
        body = []
        for n in range(28):
            k_, xr_ = xop(*order[n])
            wk_, wr_ = regs(n)
            q = Prog()
            if n % 2 == 0 and n + 1 < 28:
                q.items.append(Need(f"{regs(n+1)[0]}[{regs(n+1)[1]}:{regs(n+1)[1]+3}]"))
            if transposed:
                mfma(q, acc, wr_, xr_, None if n == 0 else acc, ak=wk_, bk=k_)
            else:
                mfma(q, acc, xr_, wr_, None if n == 0 else acc, ak=k_, bk=wk_)
            body.append(q.items)
        for n in range(PRE, 28):
            body[n - PRE] += rd(n)
        return head, body

    KEEP = [WF + 4 * n for n in range(7)]
    wregs = lambda n: ("v", KEEP[n]) if n < 7 else ("a", 64 + 4 * (n & 7))
    vhead, vb = pass_stream(AV, vAw4, L_WV, wregs, False, 6)
    CP, KB, OUT = T, PHQ, PHQ
    CS, VB = AK, WF
    st = Prog()
    for w2 in range(4):
        st(f"ds_read_b32 v{CP+w2}, v{vCr} offset:{w2*256}")
    xhalf(st, "v_add_f32", vS, t0)
    st(f"v_mul_f32 v{vS}, {f32(-1.0/D)}, v{vS}")
    split_dup(st, XM, XM + 1, vS, t0)
    st(f"v_add_f32 v{CP}, v{CP}, v{CP+1}")
    st(f"v_add_f32 v{CP+2}, v{CP+2}, v{CP+3}")
    st(f"v_add_f32 v{CP}, v{CP}, v{CP+2}")
    split_pair(st, CMk, CP, t1)
    st(f"v_mov_b32 v{CMk+1}, v{CMk}")
    ph = [Ins(f"ds_read_b64_tr_b16 {pr(PH,4*t+2*u,'a')}, v{vAphi} offset:{(16*t+8*u)*56}") for t in range(2) for u in range(2)]
    o, rest = weave(m.items, st.items[:4] + ph + st.items[4:], 28)
    p.add(o + rest)
    mfma(p, AK, CMk, XM, AK)
    stamp(p, "kmfma")
    fs = (lambda n_: stamp(p, n_)) if OPT.get("fine") else (lambda n_: None)
    xhalf(p, "v_add_f32", vQ, t1)
    p(f"v_mul_f32 v{t3}, {f32(1.0/D)}, v{vQ}")
    p(f"v_fma_f32 v{t3}, -v{vS}, v{vS}, v{t3}")
    p.add(masked(0, -1, [f"v_accvgpr_write_b32 a{PH+6}, 0", f"v_accvgpr_write_b32 a{PH+7}, 0"]))
    for j in range(0, 16, 2):
        p(f"v_cvt_pk_bf16_f32 v{KB+j//2}, v{AK+j}, v{AK+j+1}")
    mfma(p, AK, PH, KB, ak="a")
    p(f"v_max_f32 v{t3}, 0, v{t3}")
    p(f"v_add_f32 v{t3}, {f32(1e-5)}, v{t3}")
    p(f"v_rsq_f32 v{vRS}, v{t3}")
    mfma(p, AK, PH + 4, KB + 4, AK, ak="a")
    ne1, ne2 = OPT.get("ne1", 2), OPT.get("ne2", 2)
    p.add(flat(side[:ne1]))
    side = side[ne1:]
    p(f"v_mul_f32 v{vSC}, {f32(LOG2E)}, v{vRS}")
    p(f"ds_write_b32 v{vMisc}, v{vRS}")
    fs("e_phi")
    sm = sm_parts(AK, E, OUT, vSC, T)
    p.add(sm["max"][:-2])
    p.add(flat(side[:ne2]))
    side = side[ne2:]
    p.add(sm["max"][-1:])
    fs("e_max")
    p.wait_vm("wv")
    p.add(vhead)
    p.add(sm["fma"])
    p.add(flat(side))
    p("s_barrier")
    fs("e_fma")
    o, rest = weave(flat(vb[0:14]), sm["exp"], 24)
    p.add(o + rest)
    fs("e_exp")
    p.add(sm["add"])
    for n in range(7):
        for j in range(4):
            p(f"v_dot2c_f32_bf16 v{vCv}, v{KEEP[n]+j}, v{vOnes}")
    cv = Prog()
    cv(f"ds_write_b32 v{vCx}, v{vCv} offset:1024")
    for gg in range(4):
        cv(f"ds_read_b128 {q4(CS+4*gg)}, v{vMr} offset:{32*gg}")
    o, rest = weave(flat(vb[14:18]), sm["rcp"][:2] + cv.items + sm["rcp"][3:], 26)
    p.add(o + rest)
    fs("e_rcp")
    p.add(sm["mul"])
    p.barrier()
    cv = Prog()
    for w2, r_ in enumerate((t0, t1, t2, t3)):
        cv(f"ds_read_b32 v{r_}, v{vCr} offset:{1024+w2*256}")
    pkw = [Ins(f"ds_write_b64 v{vPkw}, {pr(OUT, 8*sg+2*gg)} offset:{L_PK+64*sg+16*gg}") for sg in range(2) for gg in range(4)]
    cv.add(sm["cvt"][:7] + pkw[:4])
    cv(f"v_add_f32 v{t0}, v{t0}, v{t1}")
    cv(f"v_add_f32 v{t2}, v{t2}, v{t3}")
    cv(f"v_add_f32 v{t0}, v{t0}, v{t2}")
    split_pair(cv, CMv, t0, t1)
    cv(f"v_mov_b32 v{CMv+1}, v{CMv}")
    cv.add(sm["cvt"][7:] + pkw[4:])
    cv(f"s_add_u32 s{sA}, s{sK2}, {L_VF}")
    cv(f"v_add_u32 v{t2}, s{sA}, v{vL16}")
    o, rest = weave(flat(vb[18:28]), cv.items, 24)
    p.add(o + rest)
    mfma(p, AV, XM, CMv, AV)
    fs("e_cvt")
    for s in range(4):
        p(f"v_add_u32 v{vAw4[s]}, {L_WQ}, v{vAw4[s]}")
    p(f"s_lshl_b32 s{sA}, s{sH}, 4")
    p(f"s_add_u32 s{sA}, s{sA}, s{sRB}")
    p(f"s_lshl_b32 s{sA}, s{sA}, 12")
    p(f"s_add_u32 s{sA}, s{sA}, s{sK1}")
    for t in range(2):
        for j in range(8 * t, 8 * t + 8, 2):
            p(f"v_pk_mul_f32 {pr(AV,j)}, {pr(AV,j)}, {pr(CS,j)}")
        for j in range(8 * t, 8 * t + 8, 2):
            p(f"v_cvt_pk_bf16_f32 v{VB+j//2}, v{AV+j}, v{AV+j+1}")
        for j in range(4 * t, 4 * t + 4):
            p(f"v_cndmask_b32 v{VB+j}, v{VB+j}, v{vOnes}, s[{sMk}:{sMk+1}]")
        p(f"ds_write_b128 v{t2}, {q4(VB+4*t)} offset:{t*1024}")
    p.barrier()
    stamp(p, "pkbar")
    AFk, BFv = AK, E - 4
    for ws in range(4):
        for u in range(2):
            p(f"ds_read_b64_tr_b16 {pr(AFk, 4*ws+2*u)}, v{vApk} offset:{L_PK+(32*ws+8*u)*136}")
        for nt in range(2):
            p(f"ds_read_b128 {q4(BFv+8*ws+4*nt)}, v{vBv} offset:{ws*2048 + nt*256}")
    DK, PKD = PHQ, PHQ + 8
    AQ = AV
    qhead, qb = pass_stream(AQ, vAq4, 0, wregs, True, 6)
    for ws in range(4):
        for nt in range(2):
            c = "0" if ws == 0 else q4(DK + 4 * nt)
            p(f"v_mfma_f32_16x16x32_bf16 {q4(DK+4*nt)}, {q4(AFk+4*ws)}, {q4(BFv+8*ws+4*nt)}, {c}")
    for j in range(4):
        p(f"v_cvt_pk_bf16_f32 v{PKD+j}, v{DK+2*j}, v{DK+2*j+1}")
    p(f"v_permlane32_swap_b32 v{PKD}, v{PKD+2}")
    p(f"v_permlane32_swap_b32 v{PKD+1}, v{PKD+3}")
    p(f"buffer_store_dwordx4 {q4(PKD)}, v{vL16}, {R(RWS)}, s{sA} offen sc1", tag="stA")
    stamp(p, "kvstored")
    p.wait_vm("wq")
    p.add(qhead)
    p("s_barrier")
    p.add(s3.items[:12])
    o, rest = weave(flat(qb[:7]), s3.items[12:n_s3b], 26)
    p.add(o)
    for n in range(7):
        for j in range(4):
            p(f"v_dot2c_f32_bf16 v{vCq}, v{KEEP[n]+j}, v{vOnes}")
    p(f"ds_write_b32 v{vCx}, v{vCq} offset:2048")
    NQ1 = OPT.get("nq1", 17)
    o, rest = weave(flat(qb[7:10]), rest, 26)
    p.add(o + rest)
    wog = wo_groups(0, 15)
    o, wog = paced(flat(qb[10:NQ1]), wog, 2)
    p.add(o)
    p.raw(f"""
    v_cmp_eq_u32 vcc, 0, v{g.vTag}
    s_mov_b32 s{sB}, 0
    s_cbranch_vccz L_epoch_done
    v_mov_b32 v{t0}, 0
L_epoch:
    buffer_load_dword v{g.vTag}, v{t0}, {R(RDBG)}, 0 offen sc1
    s_waitcnt vmcnt(0)
    v_cmp_eq_u32 vcc, 0, v{g.vTag}
    s_add_u32 s{sB}, s{sB}, 1
    s_cbranch_vccz L_epoch_done
    s_cmp_lt_u32 s{sB}, 0x10000
    s_cbranch_scc1 L_epoch
L_epoch_done:
""", uses=[f"v{g.vTag}"], defs=[f"v{g.vTag}", f"v{t0}"], pad=False)
    p.wait_vm("stA")
    p("s_barrier")
    flag(p, g, 0)
    stamp(p, "pubA")
    fb = Prog()
    for w2 in range(4):
        fb(f"ds_read_b32 v{CP+w2}, v{vCr} offset:{2048+w2*256}")
    fb(f"v_readfirstlane_b32 s{sTag}, v{g.vTag}")
    fb(f"v_readfirstlane_b32 s{sTag+1}, v{g.vTag}")
    fb(f"v_add_f32 v{CP}, v{CP}, v{CP+1}")
    fb(f"v_add_f32 v{CP+2}, v{CP+2}, v{CP+3}")
    fb(f"v_add_f32 v{CP}, v{CP}, v{CP+2}")
    split_pair(fb, CMk, CP, CP + 1)
    fb(f"v_mov_b32 v{CMk+1}, v{CMk}")
    o, wog = paced(flat(qb[NQ1:]), wog, 2)
    o, rest = weave(o, fb.items + s3.items[n_s3b:], 28)
    p.add(o + rest)
    mfma(p, AQ, CMk, XM, AQ)
    KB = WF
    bgs = wog + small
    p.add(flat(bgs[:2]))
    for j in range(0, 16, 2):
        p(f"v_cvt_pk_bf16_f32 v{KB+j//2}, v{AQ+j}, v{AQ+j+1}")
    mfma(p, AK, PH, KB, ak="a")
    p.add(flat(bgs[2:3]))
    mfma(p, AK, PH + 4, KB + 4, AK, ak="a")
    p.add(flat(bgs[3:5]))
    stamp(p, "qmfma")
    SUM = XM
    sm = sm_parts(AK, E, PHQ, vSC, T)
    z = Prog()
    for j in range(8):
        z(f"v_mov_b32 v{SUM+j}, 0")
    z(f"v_mov_b32 v{vSelL}, 0x00003f80")
    z(f"v_mov_b32 v{vSelH}, 0x3f800000")
    z(f"s_lshl_b32 s{sC}, s{sH}, 16")
    z(f"s_add_u32 s{sC}, s{sC}, s{sK1}")
    p.add(sprinkle(z.items + sm["max"] + sm["fma"] + sm["exp"] + sm["add"] + sm["rcp"] + sm["mul"] + sm["cvt"], bgs[5:], OPT.get("spq", 56), hide=0))
    stamp(p, "qdone")
    p("s_barrier")
    spoll(p, 0, 16)
    stamp(p, "syncA")

    PARTS = [X[j >> 2] + 4 * (j & 3) for j in range(16)]
    ld = []
    for pp in range(16):
        ld.append([Ins(f"s_add_u32 s{sA}, s{sC}, {pp*4096}"),
                   Ins(f"buffer_load_dwordx4 {q4(PARTS[pp])}, v{vL16}, {R(RWS)}, s{sA} offen sc1")])
    wb, wc, wd = OPT.get("wb", 2), OPT.get("wc", 14), OPT.get("wd", 18)
    assert wc <= wd <= 18
    vA0, vA1, vRc = vAw4[0], vAw4[1], vRS
    vEx0, vEx1 = vAw4[2], vAw4[3]
    q = Prog()
    q(f"v_and_b32 v{t0}, 15, v1")
    q(f"v_lshl_add_u32 v{t0}, v{vHF}, 4, v{t0}")
    q(f"v_bfe_u32 v{t1}, v1, 4, 1")
    q(f"v_lshl_add_u32 v{t0}, v{t1}, 5, v{t0}")
    q(f"s_add_u32 s{sB}, s{sK1}, {L_MISC}")
    q(f"v_lshl_add_u32 v{vEx0}, v{t0}, 4, s{sB}")
    q(f"v_add_u32 v{vEx1}, {L_MISC}, v{vL16}")
    q(f"v_lshl_add_u32 v{t3}, v{vHF}, 2, v{vR}")
    q(f"v_lshl_add_u32 v{vAi0}, v{t3}, 7, v{vMC}")
    q(f"v_lshrrev_b32 v{t3}, 1, v{vR}")
    q(f"v_lshl_add_u32 v{vAi0}, v{t3}, 6, v{vAi0}")
    q(f"s_and_b32 s{sB}, s{sW}, 1")
    q(f"s_lshl_b32 s{sE}, s{sB}, 6")
    q(f"v_xor_b32 v{vAw}, s{sE}, v{vAi0}")
    q(f"v_xor_b32 v{vA1}, 64, v{vAw}")
    q(f"s_mul_i32 s{sB}, s{sB}, {224*128}")
    q(f"s_add_u32 s{sB}, s{sB}, {L_WO}")
    q(f"v_add_u32 v{vA0}, s{sB}, v{vAw}")
    q(f"v_add_u32 v{vA1}, s{sB}, v{vA1}")
    q(f"s_lshl_b32 s{sD}, s{sRT}, 4")
    q(f"s_add_u32 s{sD}, s{sD}, s{sH}")
    q(f"s_lshl_b32 s{sD}, s{sD}, 11")
    q(f"s_add_u32 s{sD}, s{sD}, {WS_OF}")
    p.add(flat(ld[:5]))
    p.add(sprinkle(s4.items + q.items, ld[5:], 56, hide=0))
    p(f"v_and_b32 v{t0}, 31, v1")
    p(f"v_mul_u32_u24 v{t0}, 896, v{t0}")
    p(f"v_lshl_add_u32 v{t0}, v{vHF}, 4, v{t0}")
    p(f"v_lshlrev_b32 v{t3}, 3, v{vHF}")
    p(f"s_mul_i32 s{sA}, s{sRTf}, {32*896}")
    p(f"s_lshl_b32 s{sB}, s{sTf}, 6")
    p(f"s_add_u32 s{sA}, s{sA}, s{sB}")
    small2 = [[Ins(f"buffer_load_dwordx4 {q4(A_XRES+4*q_,'a')}, v{t0}, {R(RX)}, s{sA} offen offset:{32*q_}")] for q_ in range(2)] + \
             [[Ins(f"buffer_load_dwordx2 {pr(A_B2,2*gg,'a')}, v{t3}, {R(RB2)}, s{sB} offen offset:{16*gg}")] for gg in range(4)]
    p.add(flat(small2))
    p.add(flat(w1r(0, wb)))
    dq = Prog()
    for pp in range(16):
        for j in range(4):
            dq(f"v_dot2c_f32_bf16 v{SUM+2*j}, v{PARTS[pp]+j}, v{vSelL}")
            dq(f"v_dot2c_f32_bf16 v{SUM+2*j+1}, v{PARTS[pp]+j}, v{vSelH}")
    p.add(dq.items)
    AF, ACC1, OB = WF, AV, WF + 16
    for j in range(4):
        p(f"v_cvt_pk_bf16_f32 v{OB+j}, v{SUM+2*j}, v{SUM+2*j+1}")
    p(f"ds_write_b128 v{vEx0}, {q4(OB)}")
    stamp(p, "kvsum")
    p.barrier()
    for kk in range(4):
        p(f"ds_read_b128 {q4(AF+4*kk)}, v{vEx1} offset:{kk*1024}")
    WOF = 128
    wof = []
    for k in range(16):
        row0 = 28 * (k >> 1) + 16 * (k & 1)
        for mt in range(2):
            for u in range(2):
                wof.append(Ins(f"ds_read_b64_tr_b16 {pr(WOF, 8*k+4*mt+2*u, 'a')}, v{[vA0, vA1][mt]} offset:{(row0+8*u)*128}"))
    m = Prog()
    for kk in range(4):
        mfma(m, ACC1, AF + 4 * kk, PHQ + 4 * kk, None if kk == 0 else ACC1)
    w1b_ = w1r(wb, wc)
    o, w1b_ = paced(m.items, w1b_, 1)
    p.add(o + flat(w1b_[:2]))
    p(f"v_mov_b32 v{t0}, v{ACC1+12}")
    p(f"v_mov_b32 v{t1}, v{ACC1+12}")
    p(f"v_permlane32_swap_b32 v{t0}, v{t1}")
    p(f"v_add_f32 v{t1}, {f32(1e-6)}, v{t1}")
    p(f"v_rcp_f32 v{vRc}, v{t1}")
    for j in range(0, 16, 2):
        p(f"v_pk_mul_f32 {pr(ACC1,j)}, {pr(ACC1,j)}, {pr(vRc)} op_sel_hi:[1,0]")
    for j in range(0, 8, 2):
        p(f"v_cvt_pk_bf16_f32 v{OB+j//2}, v{ACC1+j}, v{ACC1+j+1}")
    p(f"buffer_store_dwordx4 {q4(OB)}, v{vL16}, {R(RWS)}, s{sD} offen sc1")
    for j in range(8, 16, 2):
        p(f"v_cvt_pk_bf16_f32 v{OB+j//2}, v{ACC1+j}, v{ACC1+j+1}")
    p.add(masked(0, -1, [f"v_mov_b32 v{OB+6}, 0", f"v_mov_b32 v{OB+7}, 0"]))
    p(f"buffer_store_dwordx4 {q4(OB+4)}, v{vL16}, {R(RWS)}, s{sD} offen offset:1024 sc1", tag="stB")
    stamp(p, "ostored")
    p.add(sprinkle(wof, w1b_[2:] + w1r(wc, wd), 40, hide=0))
    publish(p, g, 1, "stB")
    stamp(p, "pubB")
    p(f"s_cmp_ge_u32 s{sI}, 28")
    p("s_cbranch_scc1 L_idle")

    def ksb(j):
        return 8 * j if j < 14 else (16 * (j - 14) + 4 if j < 21 else 16 * (j - 21) + 6)
    ROW = [14, 15, 16, 17] * 3 + [0, 1, 2, 3, 4, 5, 6, 18, 19] + [7, 8, 9, 10, 11, 12, 13]

    def tb(j):
        return TBL[j] if j < 14 else TBL[2 * ((j - 14) % 7)]

    def w2g(j0, j1):
        gs = []
        for j in range(j0, j1):
            vo = vW64[0:2] if j < 14 else vW64[2:4]
            gs.append([Ins(f"s_add_u32 m0, s{sK2}, {ROW[j]*8192}"), Ins(f"s_mul_i32 s{sBG}, s{tb(j)}, 14")] +
                      ([Ins(f"s_add_u32 s{sBG}, s{sBG}, {2*16*896}")] if j >= 21 else []) +
                      [Ins(f"buffer_load_dwordx4 v{vo[0]}, {R(RW2)}, s{sBG} offen lds", f"w2_{j}")])
            gs.append([Ins(f"buffer_load_dwordx4 v{vo[1]}, {R(RW2)}, s{sBG} offen offset:1024 lds", f"w2_{j}")])
        return gs

    def w2_read(j, dst, k):
        off = ROW[j] * 8192
        out = [Wait("vmtag", f"w2_{j}")]
        for jm in range(2):
            for u in range(2):
                out.append(Ins(f"ds_read_b64_tr_b16 {pr(dst[jm],2*u,k)}, v{vB4[off >> 16][jm]} offset:{(off & 0xffff)+u*1024}"))
        return out

    def w2_move(j0, j1):
        return [x for j in range(j0, j1) for x in w2_read(j, [8 * j, 8 * j + 4], "a")]
    we = OPT.get("we", 28)
    s5 = Prog()
    s5(f"s_lshl_b32 s{sC}, s{sRTf}, 15")
    s5(f"s_and_b32 s{sA}, s{sW}, 1")
    s5(f"s_lshl_b32 s{sA}, s{sA}, 14")
    s5(f"s_add_u32 s{sC}, s{sC}, s{sA}")
    s5(f"s_add_u32 s{sC}, s{sC}, {WS_OF}")
    s5(f"s_and_b32 s{sA}, s{sRB64}, 3")
    s5(f"s_lshl_b32 s{sA}, s{sA}, 1")
    s5(f"s_add_u32 s{sA}, s{sA}, s{sCT}")
    mod7(s5, sA, sB)
    if not OPT.get("rot4", 0):
        s5(f"s_mov_b32 s{sA}, 0")
    s5(f"s_lshl_b32 s{TBL[0]}, s{sA}, 14")
    for j in range(1, 14):
        s5(f"s_add_u32 s{TBL[j]}, s{TBL[j-1]}, 8192")
        if j % 2 == 0:
            s5.items.append([Ins(f"s_cmp_eq_u32 s{TBL[j]}, {14*8192}"), Ins(f"s_cselect_b32 s{TBL[j]}, 0, s{TBL[j]}")])
    s5(f"s_lshl_b32 s{sB}, s{sCT}, 7")
    s5(f"s_mul_i32 s{sW2src}, s{sW}, {16*896}")
    s5(f"s_add_u32 s{sW2src}, s{sW2src}, s{sB}")
    s5(f"s_lshr_b32 s{sWo2}, s{sW}, 1")
    s5(f"s_lshl_b32 s{sWo2}, s{sWo2}, 3")
    s5(f"s_and_b32 s{sW2src2}, s{sW}, 1")
    s5(f"s_add_u32 s{sWo2}, s{sWo2}, s{sW2src2}")
    s5(f"s_mul_i32 s{sW2src2}, s{sWo2}, {16*896}")
    s5(f"s_add_u32 s{sW2src2}, s{sW2src2}, s{sB}")
    s5(f"s_lshl_b32 s{sWo2}, s{sWo2}, 10")
    s5(f"s_add_u32 s{sA}, s{sW2src2}, {4*16*896}")
    s5(f"v_add_u32 v{vW64[2]}, s{sA}, v{vW64[0]}")
    s5(f"v_add_u32 v{vW64[3]}, s{sA}, v{vW64[1]}")
    s5(f"v_add_u32 v{vW64[0]}, s{sW2src}, v{vW64[0]}")
    s5(f"v_add_u32 v{vW64[1]}, s{sW2src}, v{vW64[1]}")
    s5(f"v_xor_b32 v{t1}, 64, v{vAw}")
    for b_ in range(3):
        s5(f"s_add_u32 s{sA}, s{sK2}, {b_*65536}")
        s5(f"v_add_u32 v{vB4[b_][0]}, s{sA}, v{vAw}")
        s5(f"v_add_u32 v{vB4[b_][1]}, s{sA}, v{t1}")
    s5(f"s_lshr_b32 s{sA}, s{sW}, 1")
    s5(f"s_mul_i32 s{sA}, s{sA}, {224*128}")
    s5(f"v_add_u32 v{vAw}, s{sA}, v{vAw}")
    s5(f"v_mov_b32 v{vCs}, 0")
    s5(f"v_mov_b32 v{vCs+1}, 0")
    ra.release(base_mark)
    B = ra(64, 4)
    ACC = ra(32, 4)
    RD = ra(16, 4)
    vSt = ra(2, 2)
    XF = ra(16, 4)
    for j in range(8):
        s5(f"v_accvgpr_read_b32 v{XF+2*j+1}, a{A_XRES+j}")
    for q_ in range(2):
        for e_ in range(2):
            s5(f"v_permlane32_swap_b32 v{XF+2*(4*q_+e_)+1}, v{XF+2*(4*q_+2+e_)+1}")
    for j in range(8):
        s5(f"v_lshlrev_b32 v{XF+2*j}, 16, v{XF+2*j+1}")
        s5(f"v_and_b32 v{XF+2*j+1}, 0xffff0000, v{XF+2*j+1}")
    p.add(sprinkle(s5.items, w1r(wd, we), 56, hide=0))

    def colsum(im, buf):
        q = Prog()
        for c4 in range(0, 14, 4):
            a = buf + 16 * ((c4 >> 2) & 1)
            for s in range(min(4, 14 - c4)):
                for u in range(2):
                    q(f"ds_read_b64_tr_b16 {pr(a,4*s+2*u)}, v{vAw} offset:{(16*(c4+s)+8*u)*128}")
            if c4 > 0:
                a = buf + 16 * (((c4 >> 2) - 1) & 1)
                for j in range(16):
                    q(f"v_dot2c_f32_bf16 v{vCs+im}, v{a+j}, v{vOnes}")
        for j in range(8):
            q(f"v_dot2c_f32_bf16 v{vCs+im}, v{buf+16+j}, v{vOnes}")
        return q.items
    p.wait_vm("w10")
    p("s_barrier")
    stamp(p, "winB")
    spoll(p, 1, 16)
    stamp(p, "syncB")
    bgP2 = w1r(we, 28) + w2g(0, 4)

    ldo = []
    for k in range(16):
        ldo.append(([Ins(f"s_add_u32 s{sA}, s{sC}, {k*1024}")] if (k & 3) == 0 else []) +
                   [Ins(f"buffer_load_dwordx4 {q4(B+4*k)}, v{vL16}, {R(RWS)}, s{sA} offen offset:{(k&3)*1024} sc1")])
    CSB = ra(32, 4)
    p.add(flat(ldo[:6]))
    p.add(sprinkle(colsum(0, CSB), ldo[6:], 50, hide=0))
    p(f"v_add_u32 v{vAw}, {L_I[1]}, v{vAw}")
    q = Prog()
    q(f"v_mov_b32 v{vSt}, 0")
    q(f"v_mov_b32 v{vSt+1}, 0")
    q(f"buffer_store_dword v{vSt}, v{vEp}, {R(RDBG)}, 0 offen sc1")
    q(f"s_add_u32 s{sA}, s{sK4}, {L_EX2}")
    q(f"v_add_u32 v{t0}, s{sA}, v{vL16}")
    q(f"v_xor_b32 v{t1}, 4096, v{t0}")
    q(f"s_mul_i32 s{sA}, s{sRTf}, {28*1024}")
    q(f"s_lshl_b32 s{sB}, s{sTf}, 11")
    q(f"s_add_u32 s{sA}, s{sA}, s{sB}")
    q(f"s_add_u32 s{sA}, s{sA}, {WS_HF}")
    q(f"s_lshl_b32 s{sC}, s{sRTf}, 12")
    q(f"s_lshl_b32 s{sB}, s{sCT}, 9")
    q(f"s_add_u32 s{sC}, s{sC}, s{sB}")
    q(f"s_and_b32 s{sB}, s{sW}, 1")
    q(f"s_lshl_b32 s{sB}, s{sB}, 3")
    q(f"s_add_u32 s{sC}, s{sC}, s{sB}")
    q(f"s_add_u32 s{sC}, s{sC}, {WS_ST}")
    q(f"v_and_b32 v{t2}, 31, v1")
    q(f"v_lshlrev_b32 v{t2}, 4, v{t2}")
    q(f"v_lshl_add_u32 v{t2}, v{vHF}, 2, v{t2}")
    m = Prog()
    NDEF2 = OPT.get("ndef2", 5)
    for k in range(16):
        mfma(m, ACC + 16, WOF + 8 * k + 4, B + 4 * k, None if k == 0 else ACC + 16, ak="a")
        if k < 16 - NDEF2:
            mfma(m, ACC, WOF + 8 * k, B + 4 * k, XF if k == 0 else ACC, ak="a")
    o, rest = paced(m.items, bgP2, 2)
    assert not rest
    o, rest = weave(o, q.items, 24)
    p.add(o + rest)
    stamp(p, "p2mfma")
    for i_, k in enumerate(range(16 - NDEF2, 16)):
        mfma(p, ACC, WOF + 8 * k, B + 4 * k, ACC, ak="a")
        if i_ >= NDEF2 - 4:
            gg = i_ - (NDEF2 - 4)
            p(f"ds_write_b128 v{t0}, {q4(ACC+16+4*gg)} offset:{gg*1024}")
    p.barrier()
    for gg in range(4):
        p(f"ds_read_b128 {q4(RD+4*gg)}, v{t1} offset:{gg*1024}")
    for t in range(2):
        for j in range(8 * t, 8 * t + 8, 2):
            p(f"v_pk_add_f32 {pr(RD,j)}, {pr(RD,j)}, {pr(ACC,j)}")
        for j in range(8 * t, 8 * t + 8, 2):
            p(f"v_cvt_pk_bf16_f32 v{HRES+j//2}, v{RD+j}, v{RD+j+1}")
        p(f"buffer_store_dwordx4 {q4(HRES+4*t)}, v{vL16}, {R(RWS)}, s{sA} offen offset:{t*1024} sc1")
    for j in range(8):
        p(f"v_dot2c_f32_bf16 v{vSt}, v{HRES+j}, v{vOnes}")
        p(f"v_dot2c_f32_bf16 v{vSt+1}, v{HRES+j}, v{HRES+j}")
    p(f"v_permlane32_swap_b32 v{vSt}, v{vSt+1}")
    p(f"v_add_f32 v{vSt}, v{vSt}, v{vSt+1}")
    p(f"buffer_store_dword v{vSt}, v{t2}, {R(RWS)}, s{sC} offen sc1", tag="stC")
    stamp(p, "hstored")

    ra.release(base_mark)
    vAi = [ra() for _ in range(4)]
    vSo = [ra(), ra()]
    vK = ra(6, 2)
    YM = ra(4, 4)
    CM = ra(16, 4)
    ACC3 = ra(64, 4)
    AFR = ra(32, 4)
    G1 = ra(16, 4)
    STR = G1
    OB3 = ra(16, 4)
    CSP = OB3
    B2R = ra(8, 4)
    HA = 144
    p.add(w2_move(0, 4))
    p(f"v_and_b32 v{t0}, 31, v1")
    p(f"v_mov_b32 v{vAi[0]}, v{vAi0}")
    p(f"v_xor_b32 v{vAi[1]}, 64, v{vAi0}")
    p(f"v_add_u32 v{vAi[2]}, {L_I[1]}, v{vAi[0]}")
    p(f"v_add_u32 v{vAi[3]}, {L_I[1]}, v{vAi[1]}")
    p(f"v_lshlrev_b32 v{t0}, 4, v{t0}")
    p(f"v_lshl_add_u32 v{vSo[0]}, v{vHF}, 9, v{t0}")
    p(f"v_lshl_add_u32 v{vSo[1]}, v{vHF}, 31, v{t0}")
    for T in range(4):
        p(f"v_accvgpr_read_b32 v{CM+4*T+2}, a{A_B1+T}")
    for j in range(8):
        p(f"v_accvgpr_read_b32 v{B2R+j}, a{A_B2+j}")
    p.wait_lgkm0()
    nc1 = OPT.get("nc1", 4)
    w2b_ = w2g(4, 8)
    p.add(flat(w2b_[:nc1]))
    publish(p, g, 2, "stC")
    stamp(p, "pubC")
    p.add(sprinkle(colsum(1, AFR), w2b_[nc1:], 50, hide=0))
    p(f"s_lshl_b32 s{sA}, s{sW}, 9")
    p(f"s_add_u32 s{sA}, s{sA}, {L_MISC}")
    p(f"v_lshl_add_u32 v{t1}, v1, 3, s{sA}")
    p(f"ds_write_b64 v{t1}, {pr(vCs)}")
    for T in range(4):
        p(f"v_mov_b32 v{CM+4*T+3}, v{CM+4*T+2}")
        p(f"v_lshl_or_b32 v{CM+4*T+2}, v{CM+4*T+2}, 16, v{CM+4*T+2}")
    p(f"s_mul_i32 s{sC}, s{sRT3}, {28*1024}")
    p(f"s_add_u32 s{sC}, s{sC}, {WS_HF}")
    p(f"s_add_u32 s{sE}, s{sC}, {28*1024}")
    p(f"s_lshl_b32 s{sC2}, s{sR3}, 12")
    p(f"s_add_u32 s{sC2}, s{sC2}, s{sC}")
    p(f"s_lshl_b32 s{sD}, s{sRT3}, 12")
    p(f"s_add_u32 s{sD}, s{sD}, {WS_ST}")
    p(f"s_mul_i32 s{sH1a}, s{sRT3}, {112*1024}")
    p(f"s_lshl_b32 s{sA}, s{sFT}, 13")
    p(f"s_add_u32 s{sH1a}, s{sH1a}, s{sA}")
    p(f"s_add_u32 s{sH1a}, s{sH1a}, {WS_H1F}")
    p(f"s_add_u32 s{sH1b}, s{sH1a}, 4096")
    p(f"v_lshlrev_b32 v{t2}, 3, v1")
    p(f"v_add_u32 v{t2}, {L_MISC}, v{t2}")

    def trd(dst, T, ks, u):
        return Ins(f"ds_read_b64_tr_b16 {pr(dst)}, v{vAi[T]} offset:{(16*ks+8*u)*128}")

    def corr(T, first=False):
        q = Prog()
        mfma(q, ACC3 + 16 * T, CM + 4 * T, YM, None if first else ACC3 + 16 * T)
        return q.items

    def pass_parts(tiles, init):
        n = len(tiles)
        depth = 32 // (4 * n)
        pre = min(depth - 1, 3)

        def reads(ks):
            a = AFR + 4 * n * (ks % depth)
            return [trd(a + 4 * i + 2 * u, T, ks, u) for i, T in enumerate(tiles) for u in range(2)]
        head = [x for ks in range(pre) for x in reads(ks)]
        items = []
        for ks in range(28):
            nxt = reads(ks + pre) if ks + pre < 28 else []
            a = AFR + 4 * n * (ks % depth)
            for i, T in enumerate(tiles):
                acc = ACC3 + 16 * T
                cc = "0" if (ks == 0 and init) else q16(acc)
                items.append(Ins(f"v_mfma_f32_32x32x16_bf16 {q16(acc)}, {q4(a+4*i)}, a[{HA+4*ks}:{HA+4*ks+3}], {cc}"))
                items += nxt[2 * i:2 * i + 2]
        return head, items

    h1, b1_ = pass_parts([0, 1], True)
    p.add(h1)
    stamp(p, "cs1")
    p.barrier()
    spoll(p, 2, 14)
    stamp(p, "syncC")

    ldh = []
    for ks in range(28):
        q = Prog()
        q(f"buffer_load_dwordx4 a[{HA+4*ks}:{HA+4*ks+3}], v{vL16}, {R(RWS)}, s{sC2} offen offset:{(ks&3)*1024} sc1")
        if (ks & 3) == 3 and ks < 27:
            q(f"s_add_u32 s{sC2}, s{sC2}, 4096")
            q(f"s_cmp_eq_u32 s{sC2}, s{sE}")
            q(f"s_cselect_b32 s{sC2}, s{sC}, s{sC2}")
        ldh.append(q.items)
    NH0 = OPT.get("nh0", 14)
    p.add(flat(ldh[:4]))
    for n_ in range(4):
        p(f"buffer_load_dwordx4 {q4(STR+4*n_)}, v{vSo[n_ == 3]}, {R(RWS)}, s{sD} offen offset:{n_*1024} sc1")
    x = Prog()
    for w2 in range(4):
        x(f"ds_read_b64 {pr(CSP,2*w2)}, v{t2} offset:{w2*512}")
    x.add(w2_move(4, 8))
    for T in range(4):
        x(f"v_add_f32 v{CSP+8+T}, v{CSP+2*(T&1)+(T>>1)}, v{CSP+4+2*(T&1)+(T>>1)}")
    for T in range(4):
        split_pair(x, CM + 4 * T, CSP + 8 + T, t1)
        x(f"v_mov_b32 v{CM+4*T+1}, v{CM+4*T}")
    p.add(sprinkle(x.items, ldh[4:NH0], 20, hide=0))
    st = Prog()
    for o_ in range(2):
        for n_ in range(4):
            st(f"v_add_f32 v{STR+4*n_+o_}, v{STR+4*n_+o_}, v{STR+4*n_+2+o_}")
        st(f"v_add_f32 v{STR+o_}, v{STR+o_}, v{STR+4+o_}")
        st(f"v_add_f32 v{STR+8+o_}, v{STR+8+o_}, v{STR+12+o_}")
        st(f"v_add_f32 v{STR+o_}, v{STR+o_}, v{STR+8+o_}")
    xhalf(st, "v_add_f32", STR, t0)
    xhalf(st, "v_add_f32", STR + 1, t1)
    st(f"v_mul_f32 v{STR}, {f32(-1.0/D)}, v{STR}")
    split_dup(st, YM, YM + 1, STR, t0)
    st(f"v_mul_f32 v{t2}, {f32(1.0/D)}, v{STR+1}")
    st(f"v_fma_f32 v{t2}, -v{STR}, v{STR}, v{t2}")
    st(f"v_max_f32 v{t2}, 0, v{t2}")
    st(f"v_add_f32 v{t3}, {f32(1e-5)}, v{t2}")
    st(f"v_fmac_f32 v{t2}, {f32(1e-5)}, v{t3}")
    st(f"v_rsq_f32 v{t3}, v{t2}")
    st(f"v_cvt_f32_u32 v{t0}, v{vHF}")
    st(f"v_mul_f32 v{vK+4}, v{t2}, v{t3}")
    K0 = math.sqrt(2.0 / math.pi)
    c1 = -2.0 * K0 * LOG2E
    c2 = c1 * 0.044715
    st(f"v_fma_f32 v{t0}, -v{t0}, v{vK+4}, v{vK+4}")
    st(f"v_cvt_pk_bf16_f32 v{t1}, v{t0}, v{t0}")
    st(f"v_and_b32 v{t1}, 0xffff0000, v{t1}")
    st(f"v_sub_f32 v{t1}, v{t0}, v{t1}")
    st(f"v_cvt_pk_bf16_f32 v{YM+2}, v{t0}, v{t1}")
    st(f"v_and_b32 v{t2}, 0xffff0000, v{YM+2}")
    st(f"v_sub_f32 v{t1}, v{t1}, v{t2}")
    st(f"v_cvt_pk_bf16_f32 v{YM+3}, v{t1}, v{t1}")
    st(f"v_mul_f32 v{vK}, {f32(c1)}, v{t3}")
    st(f"v_mul_f32 v{t2}, v{t3}, v{t3}")
    st(f"v_mul_f32 v{t2}, v{t2}, v{t3}")
    st(f"v_mul_f32 v{vK+2}, {f32(c2)}, v{t2}")
    vH1 = vW1
    st(f"s_mul_i32 s{sA}, s{sRTf}, {112*1024}")
    st(f"s_add_u32 s{sA}, s{sA}, {WS_H1F}")
    st(f"s_xor_b32 s{sD2}, s{sRTf}, 1")
    st(f"s_mul_i32 s{sD2}, s{sD2}, {112*1024}")
    st(f"s_add_u32 s{sD2}, s{sD2}, {WS_H1F}")
    st(f"v_add_u32 v{vH1[0]}, s{sA}, v{vL16}")
    st(f"v_add_u32 v{vH1[1]}, s{sD2}, v{vL16}")
    st(f"s_add_u32 s{sA}, s{sWo2}, 4096")
    st(f"v_add_u32 v{vH1[2]}, s{sA}, v{vH1[0]}")
    st(f"v_add_u32 v{vH1[3]}, s{sA}, v{vH1[1]}")
    st(f"v_add_u32 v{vH1[0]}, s{sK1}, v{vH1[0]}")
    st(f"v_add_u32 v{vH1[1]}, s{sK1}, v{vH1[1]}")
    nl = 28 - NH0
    part1 = b1_[:6 * nl]
    o1 = []
    for i_ in range(nl):
        o1 += part1[6 * i_:6 * i_ + 3] + [ldh[NH0 + i_]] + part1[6 * i_ + 3:6 * i_ + 6]
    o, rest = weave(o1, st.items, 24)
    p.add(o)
    o, rest = weave(b1_[6 * nl:-12], rest + w2g(8, 12), 28)
    p.add(o + rest)
    p.add(corr(0) + corr(1))
    p.add(b1_[-12:])
    h2, b2_ = pass_parts([2], False)
    h3, b3_ = pass_parts([3], False)
    p.add(corr(2, True))
    p.add(h2)
    p.add(corr(3, True))
    p("s_barrier")
    stamp(p, "p3pass1")

    def gelu(T):
        q = Prog()
        acc = ACC3 + 16 * T
        ob = OB3 + 8 * (T & 1)
        for half in range(2):
            js = range(8 * half, 8 * half + 8)
            for j in js[::2]:
                q(f"v_pk_mul_f32 {pr(G1,j)}, {pr(acc,j)}, {pr(acc,j)}")
            for j in js[::2]:
                q(f"v_pk_fma_f32 {pr(G1,j)}, {pr(G1,j)}, {pr(vK+2)}, {pr(vK)} op_sel_hi:[1,0,0]")
            for j in js[::2]:
                q(f"v_pk_mul_f32 {pr(G1,j)}, {pr(G1,j)}, {pr(acc,j)}")
            for j in js:
                q(f"v_exp_f32 v{G1+j}, v{G1+j}")
            for j in js[::2]:
                q(f"v_pk_fma_f32 {pr(G1,j)}, {pr(G1,j)}, {pr(vK+4)}, {pr(vK+4)} op_sel_hi:[1,0,0]")
            for j in js:
                q(f"v_rcp_f32 v{G1+j}, v{G1+j}")
            for j in js[::2]:
                q(f"v_pk_mul_f32 {pr(G1,j)}, {pr(G1,j)}, {pr(acc,j)}")
            for j in js[::2]:
                q(f"v_cvt_pk_bf16_f32 v{ob+j//2}, v{G1+j}, v{G1+j+1}")
            q(f"buffer_store_dwordx4 {q4(ob+4*half)}, v{vL16}, {R(RWS)}, s{sH1a if T < 2 else sH1b} offen offset:{((2*T+half)&3)*1024} sc1", tag=f"stD{T}")
        return q.items

    def pub(sync, tag):
        q = Prog()
        q.wait_vm(tag)
        q("s_barrier")
        flag(q, g, sync)
        return q.items

    def bslot(j):
        return 64 + 8 * j if j < 24 else 64 + 8 * (j - 24)

    def ldB(j0, j1):
        gs = []
        for j in range(j0, j1):
            for jn in range(2):
                r = bslot(j) + 4 * jn
                gs.append([Ins(f"buffer_load_dwordx4 a[{r}:{r+3}], v{vH1[jn + (2 if j >= 14 else 0)]}, {R(RWS)}, s{tb(j)} offen offset:{2048 if j >= 21 else 0} sc1")])
        return gs

    def mf_split(items, n):
        idx = [i for i, it in enumerate(items) if isinstance(it, Ins) and it.kind == "mfma"]
        return items[:idx[n]], items[idx[n]:]

    wA = w2g(12, 21)
    ng01 = OPT.get("ng01", 4)
    p.add(sprinkle(gelu(0) + gelu(1), wA[:ng01], OPT.get("sg01", 100), start=OPT.get("st01", 20), hide=0))
    stamp(p, "g01")
    o, rest = paced(b2_ + h3, wA[ng01:], 2, OPT.get("f2", 0))
    pd1 = OPT.get("pd1", 24)
    if pd1 < 28:
        oa, ob_ = mf_split(o, pd1)
        p.add(oa + pub(3, "stD1") + ob_)
    else:
        p.add(o + pub(3, "stD1"))
    stamp(p, "p3pass2")
    p.add(sprinkle(gelu(2), rest, 64, hide=0))
    stamp(p, "g2")
    hb = Prog()
    HB = ACC3
    for j in range(8):
        hb(f"v_lshlrev_b32 v{t0}, 16, v{HRES+j}")
        hb(f"v_and_b32 v{t1}, 0xffff0000, v{HRES+j}")
        hb(f"v_lshlrev_b32 v{t2}, 16, v{B2R+j}")
        hb(f"v_and_b32 v{HB+2*j+1}, 0xffff0000, v{B2R+j}")
        hb(f"v_add_f32 v{HB+2*j}, v{t0}, v{t2}")
        hb(f"v_add_f32 v{HB+2*j+1}, v{t1}, v{HB+2*j+1}")
    pi1, pc1, pd2 = OPT.get("pi1", 2), OPT.get("pc1", 20), OPT.get("pd2", 24)
    s0, s1 = mf_split(b3_, pi1)
    s1, s2 = mf_split(s1, pc1 - pi1)
    p.add(s0)
    poll_issue(p, g, 3, 14)
    o, rest = weave(s1, hb.items, 24)
    p.add(o + rest)
    poll_check(p, g, 3)
    stamp(p, "syncD1")
    lb1 = ldB(0, 10)
    o, rest1 = paced(s2, lb1, OPT.get("e3", 1))
    oa, ob_ = mf_split(o, pd2 - pc1)
    p.add(oa + pub(4, "stD2") + ob_)
    p("s_barrier")
    stamp(p, "p3pass3")
    bgq = rest1 + ldB(10, 14)
    ng3 = OPT.get("ng3", 8)
    p.add(sprinkle(gelu(3), bgq[:ng3], 60, hide=0))
    bgq = bgq[ng3:]
    stamp(p, "h1stored")

    AF4 = AFR
    ACC4 = ACC3
    AKEEP = [CM, CM + 4, CM + 8, CM + 12, B2R, B2R + 4, YM]
    vOo = vAi[0]
    RD4 = [AFR, AFR + 16, G1]
    OB4 = OB3

    def a_regs(j):
        if j < 8:
            return "a", 8 * j, 8 * j + 4
        a = AF4 + 8 * (j & 3)
        return "v", (AKEEP[j - 21] if j >= 21 else a), a + 4

    pd3, pi2, pc2, pi3, pc3 = OPT.get("pd3", 5), OPT.get("pi2", 2), OPT.get("pc2", 7), OPT.get("pi3", 12), OPT.get("pc3", 17)
    bgq = bgq + w2g(21, 28)
    for j in range(28):
        if j == pd3:
            p.add(pub(5, "stD3"))
        if j == pi2:
            poll_issue(p, g, 4, 14)
        if j == pc2:
            poll_check(p, g, 4)
            stamp(p, "syncD2")
            bgq = ldB(14, 21) + bgq
        if j == pi3:
            poll_issue(p, g, 5, 14)
        if j == pc3:
            poll_check(p, g, 5)
            stamp(p, "syncD3")
            assert not bgq, len(bgq)
            bgq = ldB(21, 28)
        if j == 21:
            p("s_barrier")
        kind, a0, a1 = a_regs(j)
        rd = []
        if 8 <= j + 3 < 28:
            _, r0, r1 = a_regs(j + 3)
            rd = w2_read(j + 3, [r0, r1], "v")
        k = 0
        for jn in range(2):
            for jm in range(2):
                if j >= 21 and jm == 0 and jn == 0:
                    continue
                acc = ACC4 + 16 * (jm + 2 * jn)
                cin = acc if (j > 0 or (jm == 0 and jn == 0)) else None
                mfma(p, acc, [a0, a1][jm], bslot(j) + 4 * jn, cin, ak=kind, bk="a")
                take = OPT.get("p4take", 3) if j < pc3 else 4
                if k < take and bgq:
                    p.add(bgq.pop(0))
                if jm == 1 and jn == 1:
                    p.add(rd)
                k += 1
        if j in (13, 20):
            stamp(p, f"p4j{j}")
    assert not bgq
    stamp(p, "p4mfma")
    wr = Prog()
    for j in range(1, 4):
        wr(f"s_xor_b32 s{sA}, s{sW}, {j}")
        wr(f"s_mul_i32 s{sA}, s{sA}, 12288")
        wr(f"v_add_u32 v{[t0, t1, t2][j-1]}, s{sA}, v{vL16}")
    wr(f"s_mul_i32 s{sA}, s{sW}, 12288")
    wr(f"v_add_u32 v{t3}, s{sA}, v{vL16}")
    for j in range(1, 4):
        for gg in range(4):
            wr(f"ds_write_b128 v{[t0, t1, t2][j-1]}, {q4(ACC4+16*j+4*gg)} offset:{(j-1)*4096+gg*1024}")
    m = Prog()
    for j in range(21, 28):
        mfma(m, ACC4, AKEEP[j - 21], bslot(j), ACC4, bk="a")
    wi = wr.items
    p.add(m.items[:1] + wi[:6] + m.items[1:2] + wi[6:11])
    for i_ in range(5):
        p.add(m.items[2 + i_:3 + i_] + wi[11 + i_:12 + i_])
    p.add(wi[16:])
    p(f"v_and_b32 v{t0}, 31, v1")
    p(f"v_mul_u32_u24 v{t0}, 896, v{t0}")
    p(f"v_lshl_add_u32 v{vOo}, v{vHF}, 4, v{t0}")
    p(f"s_mul_i32 s{sA}, s{sRTf}, {32*896}")
    p(f"s_lshl_b32 s{sB}, s{sTf}, 6")
    p(f"s_add_u32 s{sA}, s{sA}, s{sB}")
    p.barrier()
    stamp(p, "p4ex")
    for half in range(2):
        for gg in range(2 * half, 2 * half + 2):
            for j in range(3):
                p(f"ds_read_b128 {q4(RD4[j]+4*gg)}, v{t3} offset:{j*4096+gg*1024}")
    for half in range(2):
        js = range(8 * half, 8 * half + 8, 2)
        for j in js:
            p(f"v_pk_add_f32 {pr(ACC4,j)}, {pr(ACC4,j)}, {pr(RD4[0],j)}")
            p(f"v_pk_add_f32 {pr(RD4[1],j)}, {pr(RD4[1],j)}, {pr(RD4[2],j)}")
        for j in js:
            p(f"v_pk_add_f32 {pr(ACC4,j)}, {pr(ACC4,j)}, {pr(RD4[1],j)}")
        for j in js:
            p(f"v_cvt_pk_bf16_f32 v{OB4+j//2}, v{ACC4+j}, v{ACC4+j+1}")
        p(f"v_permlane32_swap_b32 v{OB4+4*half}, v{OB4+4*half+2}")
        p(f"v_permlane32_swap_b32 v{OB4+4*half+1}, v{OB4+4*half+3}")
        p(f"buffer_store_dwordx4 {q4(OB4+4*half)}, v{vOo}, {R(ROUT)}, s{sA} offen offset:{32*half}")
    p("s_branch L_fin")
    p("L_idle:")
    p(f"s_sub_u32 s{sA}, s{sI}, 28")
    p(f"s_lshl_b32 s{sA}, s{sA}, 2")
    p(f"s_add_u32 s{sA}, s{sA}, s{sW}")
    p(f"s_lshl_b32 s{sA}, s{sA}, 13")
    p(f"v_lshl_add_u32 v{vTch}, v1, 7, s{sA}")
    if OPT.get("idle", 1):
        for k in range(13):
            p(f"s_mov_b32 s{sA}, {k << 17}")
            p(f"buffer_load_dword a60, v{vTch}, {R(RW2)}, s{sA} offen")
    p("L_fin:")
    p("s_waitcnt vmcnt(0)")
    stamp_flush(p)
    body = finalize(flat(p.items), name)
    txt = [f".globl {name}_kernel", ".p2align 8", f".type {name}_kernel,@function", f"{name}_kernel:"]
    txt += body
    txt += ["L_end:", "    s_endpgm"]
    kd = f""".amdhsa_kernel {name}_kernel
  .amdhsa_next_free_vgpr 512
  .amdhsa_next_free_sgpr 102
  .amdhsa_accum_offset 256
  .amdhsa_group_segment_fixed_size 0
  .amdhsa_kernarg_size 96
  .amdhsa_user_sgpr_count 2
  .amdhsa_user_sgpr_kernarg_segment_ptr 1
  .amdhsa_system_sgpr_workgroup_id_x 1
.end_amdhsa_kernel"""
    return "\n".join(txt), kd


def main(out):
    body, kd = gen()
    hdr = open("cdna_kernels/" + NAME + ".s.ref").read().split("; Override launch")[0]
    txt = hdr
    txt += f"; @launch grid=(256,1,1) block=(256,1,1) lds={LDS_BYTES}\n"
    if DIAG:
        txt += "; stamps: " + ",".join(STNAMES) + "\n"
    txt += '.amdgcn_target "amdgcn-amd-amdhsa--gfx950"\n.text\n'
    txt += body + "\n"
    txt += '.section .rodata,"a"\n.p2align 6\n' + kd + "\n"
    open(out, "w").write(txt)


if __name__ == "__main__":
    for a in sys.argv[2:]:
        if a == "diag":
            DIAG = True
        elif "=" in a:
            k, v = a.split("=")
            OPT[k] = int(v)
    main(sys.argv[1])
```

```python
import sys, math, struct
from dsl import *

NAME = "sequential_preLN__linear_kernel_hedgehog__mixer_channel_mlp__prompt"
S, D, H, DH, F = 2048, 448, 16, 28, 1792

WS_KVP = 0
WS_FLAG = 1 << 20
WS_ST = (1 << 20) + (512 << 10)
WS_OF = 2 << 20
WS_HF = 4 << 20
WS_H1F = 6 << 20
WS_TS = 32 << 20
WS_SIZE = 256 << 20

LOG2E = 1.4426950408889634
DIAG = False
OPT = {}


def f32(x):
    return "0x%08x" % struct.unpack("<I", struct.pack("<f", x))[0]


SX, SWQKV, SWPHI, SWO, SBX, SW1, SB1, SW2, SB2, SOUT, SDBG, SWS = [16 + 2 * i for i in range(12)]
RX, RWQKV, RWPHI, RWO, RB1, RWS, RW1, RW2, RB2, ROUT, RDBG = 40, 44, 48, 52, 56, 60, 64, 68, 72, 76, 80
SPOLL = 44
sI, sW = 3, 4
sH, sRB, sRT = 5, 6, 7
sCT, sRB64 = 8, 9
sFT, sRB3 = 10, 11
sA, sB, sC, sD = 12, 13, 14, 15
sK1, sK2, sWOl, sRTf, sTf, sRT3 = 16, 17, 18, 19, 20, 21
sTag = 22
sW2src, sWOsrc, sK4, sT1 = 24, 25, 26, 27
sPo, sW2src2, sWo2, sC2, sD2, sH1a, sH1b = 28, 29, 30, 31, 32, 33, 34
sW1b = [35, 36, 37, 38]
sR3 = 39
sCx, sCw, sRot, sSh, sXRb, sXbeg, sXend, sWbeg = 84, 85, 86, 87, 88, 89, 90, 91
TBL = [84, 85, 86, 87, 88, 89, 90, 91, 93, 94, 95, 96, 97, 98]
sBG, sE = 92, 99
sCw2, sWend = 93, 94
sMk = 96

L_WK, L_WV, L_WQ, L_XR, L_WPHI, L_MISC = 0, 28672, 57344, 86016, 151552, 155648
L_PK, L_VF, L_WO = 0, 155648, 86016
L_I = [0, 57344]
L_EX2 = 147456
L_CSX = 147456
LDS_BYTES = 163840
A_XRES, A_B2, A_B1 = 96, 104, 112


def R(r):
    return f"s[{r}:{r+3}]"


def srd(p, d, src, nbytes):
    p(f"s_mov_b32 s{d}, s{src}")
    p(f"s_mov_b32 s{d+1}, s{src+1}")
    p(f"s_mov_b32 s{d+2}, {nbytes}")
    p(f"s_mov_b32 s{d+3}, 0x00020000")


NST = [0]
STNAMES = []


PROBE = None


def stamp(p, label=""):
    if PROBE and label == PROBE:
        p("s_memrealtime s[100:101]")
        p("v_writelane_b32 v255, s100, 1")
    if not DIAG:
        return
    if OPT.get("cnt") and label not in ("start", "end"):
        if label.startswith("sync"):
            i = NST[0]
            NST[0] += 1
            STNAMES.append(label)
            p(f"v_writelane_b32 v255, s{sB}, {i}")
        return
    i = NST[0]
    NST[0] += 1
    STNAMES.append(label)
    assert i < 64
    p("s_memtime s[100:101]" if OPT.get("cyc") else "s_memrealtime s[100:101]")
    p(f"v_writelane_b32 v255, s100, {i}")


def stamp_flush(p):
    if not DIAG:
        return
    stamp(p, "end")
    p(f"s_lshl_b32 s{sA}, s2, 2")
    p(f"s_add_u32 s{sA}, s{sA}, s{sW}")
    p(f"s_lshl_b32 s{sA}, s{sA}, 8")
    p(f"s_add_u32 s{sA}, s{sA}, {WS_TS}")
    p("v_lshlrev_b32 v2, 2, v1")
    p(f"buffer_store_dword v255, v2, {R(RWS)}, s{sA} offen")


def xhalf(p, op, a, t):
    p(f"v_mov_b32 v{t}, v{a}")
    p(f"v_permlane32_swap_b32 v{a}, v{t}")
    p(f"{op} v{a}, v{a}, v{t}")


def pr(r, j=0, k="v"):
    return f"{k}[{r+j}:{r+j+1}]"


def q4(r, k="v"):
    return f"{k}[{r}:{r+3}]"


def q16(r):
    return f"v[{r}:{r+15}]"


def mfma(p, d, a, b, c=None, ak="v", bk="v"):
    cc = "0" if c is None else q16(c)
    p(f"v_mfma_f32_32x32x16_bf16 {q16(d)}, {q4(a, ak)}, {q4(b, bk)}, {cc}")


def dma_group(voff, srdreg, sbase, soff, slds, ldsoff, tag):
    return [Ins(f"s_add_u32 m0, s{slds}, {ldsoff}"),
            Ins(f"s_add_u32 s{sBG}, s{sbase}, {soff}"),
            Ins(f"buffer_load_dwordx4 v{voff}, {R(srdreg)}, s{sBG} offen lds", tag)]


def dma_run(voffs, srdreg, sbase, soff0, sstep, slds, lds0, a, b, tag):
    gs = []
    for j in range(a, b):
        grp = []
        if (j & 3) == 0 or j == a:
            grp.append(Ins(f"s_add_u32 m0, s{slds}, {lds0 + (j & ~3)*1024}"))
            grp.append(Ins(f"s_add_u32 s{sBG}, s{sbase}, {soff0 + (j & ~3)*sstep}"))
        grp.append(Ins(f"buffer_load_dwordx4 v{voffs[j & 3]}, {R(srdreg)}, s{sBG} offen offset:{(j & 3)*1024} lds", tag))
        gs.append(grp)
    return gs


def weave(mf, fill, budget=24):
    out, pos = [], 0
    n = len(mf)
    cost = lambda f: sum(est_cost(x) for x in f) if isinstance(f, list) else est_cost(f)
    spent = 0
    for i, it in enumerate(mf):
        out.append(it)
        if isinstance(it, Ins) and it.kind == "mfma":
            spent = 0
        else:
            spent += cost(it)
        nxt_is_mfma = (i + 1 == n) or (isinstance(mf[i + 1], Ins) and mf[i + 1].kind == "mfma")
        if nxt_is_mfma:
            b = budget - spent
            took = False
            while pos < len(fill) and (cost(fill[pos]) <= b or (not took and spent == 0)):
                b -= cost(fill[pos])
                out.append(fill[pos])
                pos += 1
                took = True
    return out, fill[pos:]


def paced(mf, groups, every, first=0):
    out, k, n = [], 0, 0
    for i, it in enumerate(mf):
        out.append(it)
        last = (i + 1 == len(mf)) or (isinstance(mf[i + 1], Ins) and mf[i + 1].kind == "mfma")
        if last:
            if n >= first and (n - first) % every == 0 and k < len(groups):
                out.append(groups[k])
                k += 1
            n += 1
    return out, groups[k:]


def split_pair(p, dst, x, t):
    p(f"v_cvt_pk_bf16_f32 v{t}, v{x}, v{x}")
    p(f"v_and_b32 v{t}, 0xffff0000, v{t}")
    p(f"v_sub_f32 v{t}, v{x}, v{t}")
    p(f"v_cvt_pk_bf16_f32 v{dst}, v{x}, v{t}")


def split_dup(p, dhi, dlo, x, t):
    p(f"v_cvt_pk_bf16_f32 v{dhi}, v{x}, v{x}")
    p(f"v_and_b32 v{t}, 0xffff0000, v{dhi}")
    p(f"v_sub_f32 v{t}, v{x}, v{t}")
    p(f"v_cvt_pk_bf16_f32 v{dlo}, v{t}, v{t}")


def masked(lo, hi, lines):
    q = Prog()
    q(f"s_mov_b32 exec_lo, {lo}")
    q(f"s_mov_b32 exec_hi, {hi}")
    for l in lines:
        q(l)
    q("s_mov_b64 exec, -1")
    return q.items


def sm_parts(P, E, OUT, vsc, T):
    mx, mn, t0, t1 = T, T + 1, T + 2, T + 4
    r = {}
    q = Prog()
    q(f"v_max3_f32 v{mx}, v{P}, v{P+1}, v{P+2}")
    q(f"v_min3_f32 v{mn}, v{P}, v{P+1}, v{P+2}")
    for j in range(3, 13, 2):
        q(f"v_max3_f32 v{mx}, v{mx}, v{P+j}, v{P+j+1}")
        q(f"v_min3_f32 v{mn}, v{mn}, v{P+j}, v{P+j+1}")
    q(f"v_max_f32 v{mx}, v{mx}, v{P+13}")
    q(f"v_max_f32 v{mn}, -v{mn}, -v{P+13}")
    q(f"v_mov_b32 v{OUT+7}, 0")
    q(f"v_mov_b32 v{OUT+15}, 0")
    q(f"v_permlane32_swap_b32 v{mx}, v{mn}")
    q(f"v_max_f32 v{mx}, v{mx}, v{mn}")
    q(f"v_mul_f32 v{t0}, v{mx}, v{vsc}")
    q(f"v_mul_f32 v{t1}, v{mx}, v{vsc}")
    q("s_nop 1")
    q(f"v_permlane32_swap_b32 v{t0}, v{t1}")
    r["max"] = q.items
    q = Prog()
    for j in range(0, 14, 2):
        q(f"v_pk_fma_f32 {pr(E,j)}, {pr(P,j)}, {pr(vsc)}, {pr(t0)} op_sel_hi:[1,0,0] neg_lo:[0,0,1] neg_hi:[0,0,1]")
        q(f"v_pk_fma_f32 {pr(E+14,j)}, {pr(P,j)}, {pr(vsc)}, {pr(t1)} op_sel_hi:[1,0,0] neg_lo:[1,0,1] neg_hi:[1,0,1]")
    r["fma"] = q.items
    r["exp"] = [Ins(f"v_exp_f32 v{E+j}, v{E+j}") for j in range(28)]
    q = Prog()
    q(f"v_pk_add_f32 {pr(t0)}, {pr(E)}, {pr(E,2)}")
    q(f"v_pk_add_f32 {pr(t1)}, {pr(E+14)}, {pr(E+14,2)}")
    for j in range(4, 14, 2):
        q(f"v_pk_add_f32 {pr(t0)}, {pr(t0)}, {pr(E,j)}")
        q(f"v_pk_add_f32 {pr(t1)}, {pr(t1)}, {pr(E+14,j)}")
    r["add"] = q.items
    q = Prog()
    q(f"v_add_f32 v{mx}, v{t0}, v{t0+1}")
    q(f"v_add_f32 v{mn}, v{t1}, v{t1+1}")
    q("s_nop 1")
    q(f"v_permlane32_swap_b32 v{mx}, v{mn}")
    q(f"v_add_f32 v{mx}, v{mx}, v{mn}")
    q(f"v_rcp_f32 v{t0}, v{mx}")
    q(f"v_rcp_f32 v{t1}, v{mx}")
    q("s_nop 1")
    q(f"v_permlane32_swap_b32 v{t0}, v{t1}")
    r["rcp"] = q.items
    r["mul"] = [Ins(f"v_pk_mul_f32 {pr(E+14*sg,j)}, {pr(E+14*sg,j)}, {pr([t0, t1][sg])} op_sel_hi:[1,0]") for sg in range(2) for j in range(0, 14, 2)]
    r["cvt"] = [Ins(f"v_cvt_pk_bf16_f32 v{OUT+8*sg+j//2}, v{E+14*sg+j}, v{E+14*sg+j+1}") for sg in range(2) for j in range(0, 14, 2)]
    return r


class G:
    pass


def flag(p, g, sync):
    p(f"buffer_store_dword v{g.vTag}, v{g.vFl[min(sync, 3)]}, {R(RWS)}, 0 offen offset:{sync*128} sc1")


def publish(p, g, sync, store_tag):
    p.wait_vm(store_tag)
    p.barrier()
    flag(p, g, sync)


SLOW = []


def _scmp(n):
    np_ = n // 2
    x = "\n".join(f"s_xor_b64 s[{SPOLL+2*k}:{SPOLL+2*k+1}], s[{SPOLL+2*k}:{SPOLL+2*k+1}], s[{sTag}:{sTag+1}]" for k in range(np_))
    o = "\n".join(f"s_or_b64 s[{SPOLL}:{SPOLL+1}], s[{SPOLL}:{SPOLL+1}], s[{SPOLL+2*k}:{SPOLL+2*k+1}]" for k in range(1, np_))
    return x + "\n" + o


def spoll_issue(p, sync):
    p(f"s_load_dwordx16 s[{SPOLL}:{SPOLL+15}], s[0:1], {sync*128} glc")


def spoll_check(p, sync, n):
    p(f"s_mov_b32 s{sB}, 0")
    p.wait_lgkm0()
    p.raw(f"""
{_scmp(n)}
    s_cbranch_scc1 L_sp{sync}
L_sp{sync}_done:
""", pad=False)
    SLOW.append(f"""
L_sp{sync}:
    s_load_dwordx16 s[{SPOLL}:{SPOLL+15}], s[0:1], {sync*128} glc
    s_add_u32 s{sB}, s{sB}, 1
    s_waitcnt lgkmcnt(0)
{_scmp(n)}
    s_cbranch_scc0 L_sp{sync}_done
    s_cmp_lt_u32 s{sB}, 0x10000
    s_cbranch_scc1 L_sp{sync}
    s_branch L_sp{sync}_done
""")


def poll_issue(p, g, sync, n):
    p(f"buffer_load_dword v{g.vPT}, v{g.vPo}, {R(RWS)}, s{sPo} offen offset:{sync*128} sc1")


def poll_check(p, g, sync):
    t = g.vPT
    p.raw(f"""
    v_cmp_ne_u32 vcc, v{t}, v{g.vTag}
    s_mov_b32 s{sB}, 0
    s_cbranch_vccnz L_poll{sync}
L_poll{sync}_done:
""", uses=[f"v{g.vPo}", f"v{g.vTag}", f"v{t}"], defs=[f"v{t}"], pad=False)
    SLOW.append(f"""
L_poll{sync}:
    buffer_load_dword v{t}, v{g.vPo}, {R(RWS)}, s{sPo} offen offset:{sync*128} sc1
    s_waitcnt vmcnt(0)
    v_cmp_ne_u32 vcc, v{t}, v{g.vTag}
    s_add_u32 s{sB}, s{sB}, 1
    s_cbranch_vccz L_poll{sync}_done
    s_cmp_lt_u32 s{sB}, 0x10000
    s_cbranch_scc1 L_poll{sync}
    s_branch L_poll{sync}_done
""")


def mod7(q, r, tmp):
    q.items.append([Ins(f"s_sub_u32 s{tmp}, s{r}, 7"), Ins(f"s_cmp_ge_u32 s{r}, 7"), Ins(f"s_cselect_b32 s{r}, s{tmp}, s{r}")])


def gen():
    p = Prog()
    g = G()
    name = NAME
    p("s_cmp_ge_u32 s2, 256")
    p(f"s_cbranch_scc1 L_end")
    if PROBE:
        p("s_memrealtime s[100:101]")
        p("v_writelane_b32 v255, s100, 0")
        p("v_writelane_b32 v255, s100, 1")
    p("s_load_dwordx16 s[16:31], s[0:1], 0")
    p("s_load_dwordx8 s[32:39], s[0:1], 64")
    p("s_getpc_b64 s[96:97]")
    p("L_pc:")
    p("v_lshrrev_b32 v1, 6, v0")
    p(f"s_lshr_b32 s{sI}, s2, 3")
    p(f"v_readfirstlane_b32 s{sW}, v1")
    p("v_and_b32 v1, 63, v0")
    ra = RegAlloc(2, 255)
    t0, t1, t2, t3 = ra(), ra(), ra(), ra()
    vL16 = ra()
    g.vTag, g.vPT, g.vPo = ra(), ra(), ra()
    g.vFl = [ra() for _ in range(4)]
    vR, vMC, vHF, vOnes = ra(), ra(), ra(), ra()
    vW64 = [ra() for _ in range(4)]
    vW1 = [ra() for _ in range(4)]
    vEp, vTch = ra(), ra()
    PHQ = ra(16, 4)
    HRES = PHQ + 8
    p1_mark = ra.mark()
    vCs = ra(2, 2)
    vAw, vAi0 = ra(), ra()
    vB4 = [[ra(), ra()] for _ in range(3)]
    base_mark = ra.mark()
    assert base_mark - p1_mark <= 11
    ra.release(p1_mark)
    vX = [ra() for _ in range(4)]
    vWk, vWv, vWq = ra(), ra(), ra()
    vXr = [ra() for _ in range(4)]
    vAw4 = [ra() for _ in range(4)]
    vAq4 = vAw4
    vAphi, vApk, vBv, vPkw, vMisc, vMr, vCx, vCr = [ra() for _ in range(8)]
    vS, vQ, vCk, vCv, vCq = [ra() for _ in range(5)]
    vSelL, vSelH = vS, vQ
    vRS, vSC = ra(2, 2), ra(2, 2)
    T = ra(6, 2)
    XM, CMk, CMv = ra(4, 4), ra(4, 4), ra(4, 4)
    X = [ra(16, 4) for _ in range(4)]
    WF = ra(32, 4)
    AK, AV = ra(16, 4), ra(16, 4)
    E = ra(28, 4)
    PH = 48
    p(f"s_and_b32 s{sB}, s2, 3")
    p(f"s_lshl_b32 s{sB}, s{sB}, 2")
    p(f"s_and_b32 s{sRB}, s{sI}, 3")
    p(f"s_lshr_b32 s{sH}, s{sI}, 2")
    p(f"s_lshl_b32 s{sRot}, s{sRB}, 1")
    p(f"s_add_u32 s{sRot}, s{sRot}, s{sH}")
    mod7(p, sRot, sC)
    if not OPT.get("rot", 1):
        p(f"s_mov_b32 s{sRot}, 0")
    p(f"s_add_u32 s{sRB}, s{sRB}, s{sB}")
    p(f"s_and_b32 s{sB}, s2, 4")
    p(f"s_lshl_b32 s{sB}, s{sB}, 1")
    p(f"s_add_u32 s{sH}, s{sH}, s{sB}")
    p(f"s_lshl_b32 s{sRT}, s{sRB}, 2")
    p(f"s_add_u32 s{sRT}, s{sRT}, s{sW}")
    p(f"v_lshrrev_b32 v{t0}, 3, v1")
    p(f"v_mul_u32_u24 v{t3}, 896, v{t0}")
    p(f"v_and_b32 v{t1}, 7, v1")
    p(f"v_lshrrev_b32 v{t2}, 4, v1")
    p(f"v_xor_b32 v{t1}, v{t1}, v{t2}")
    p(f"v_lshl_add_u32 v{vX[0]}, v{t1}, 4, v{t3}")
    p(f"v_xor_b32 v{vX[1]}, 64, v{vX[0]}")
    p(f"v_add_u32 v{vX[1]}, {8*896-1024}, v{vX[1]}")
    p(f"v_add_u32 v{vX[2]}, {16*896-2048}, v{vX[0]}")
    p(f"v_add_u32 v{vX[3]}, {16*896-2048}, v{vX[1]}")
    p(f"v_lshrrev_b32 v{t0}, 2, v1")
    p(f"v_mul_u32_u24 v{t0}, 2688, v{t0}")
    p(f"v_and_b32 v{t1}, 3, v1")
    p(f"v_lshl_add_u32 v{vWq}, v{t1}, 4, v{t0}")
    p(f"v_add_u32 v{vWk}, 896, v{vWq}")
    p(f"s_mul_i32 s{sXbeg}, s{sRT}, {32*896}")
    p(f"s_add_u32 s{sXend}, s{sXbeg}, 896")
    p(f"s_lshl_b32 s{sA}, s{sRot}, 7")
    p(f"s_add_u32 s{sCx}, s{sXbeg}, s{sA}")
    p(f"s_mul_i32 s{sC}, s{sH}, 56")
    p(f"s_cmp_eq_u32 s{sH}, 15")
    p(f"s_cselect_b32 s{sSh}, 8, 0")
    p(f"s_sub_u32 s{sC}, s{sC}, s{sSh}")
    p(f"s_mul_i32 s{sWbeg}, s{sW}, {16*2688}")
    p(f"s_add_u32 s{sWbeg}, s{sWbeg}, s{sC}")
    p(f"s_mul_i32 s{sA}, s{sRot}, {64*2688}")
    p(f"s_add_u32 s{sCw}, s{sWbeg}, s{sA}")
    p(f"s_mov_b32 s{sCw2}, s{sCw}")
    p(f"s_add_u32 s{sWend}, s{sWbeg}, {448*2688}")
    p(f"s_lshl_b32 s{sXRb}, s{sW}, 14")
    p(f"s_add_u32 s{sXRb}, s{sXRb}, {L_XR}")
    p(f"s_lshl_b32 s{sD}, s{sW}, 10")
    p(f"s_mov_b32 s{RX+2}, {S*D*2}")
    p(f"s_mov_b32 s{RX+3}, 0x00020000")
    p(f"s_mov_b32 s{RWQKV+2}, {D*3*D*2}")
    p(f"s_mov_b32 s{RWQKV+3}, 0x00020000")
    p(f"s_and_b32 s{sB}, s{sI}, 7")
    p(f"s_lshl_b32 s{sB}, s{sB}, 2")
    p(f"s_add_u32 s{sB}, s{sB}, s{sW}")
    p(f"s_lshl_b32 s{sB}, s{sB}, 10")
    p(f"v_and_b32 v{t0}, 7, v1")
    p(f"v_lshl_add_u32 v{t0}, v{t0}, 7, s{sB}")
    p(f"v_min_u32 v{t0}, L_end-L_pc, v{t0}")
    p(f"global_load_dword a116, v{t0}, s[96:97]")
    stamp(p, "start")
    p(f"s_mov_b64 s[{RX}:{RX+1}], s[{SX}:{SX+1}]")
    p(f"s_mov_b64 s[{RWQKV}:{RWQKV+1}], s[{SWQKV}:{SWQKV+1}]")
    p(f"s_mov_b32 s{sK1}, s{sD}")

    def adv():
        return [Ins(f"s_add_u32 s{sCw}, s{sCw}, {64*2688}"), Ins(f"s_add_u32 s{sCx}, s{sCx}, 128"),
                Ins(f"s_cmp_eq_u32 s{sCx}, s{sXend}"), Ins(f"s_cselect_b32 s{sCx}, s{sXbeg}, s{sCx}"),
                Ins(f"s_cselect_b32 s{sCw}, s{sWbeg}, s{sCw}")]

    def wpiece(voff, base, pos, tag):
        return [Ins(f"s_add_u32 m0, s{sK1}, {base + pos*4096}"), Ins("s_nop 0"),
                Ins(f"buffer_load_dwordx4 v{voff}, {R(RWQKV)}, s{sCw} offen lds", tag)]

    def pos_groups(pos):
        gs = [wpiece(vWk, L_WK, pos, f"p{pos}")]
        for j in range(4):
            gs.append(([Ins(f"s_add_u32 m0, s{sXRb}, {(pos & 3)*4096}"), Ins("s_nop 0")] if j == 0 else []) +
                      [Ins(f"buffer_load_dwordx4 v{vX[j]}, {R(RX)}, s{sCx} offen offset:{j*1024} lds", f"p{pos}")] + (adv() if j == 3 else []))
        return gs

    def wstream(voff, base, tag):
        return [[Ins(f"s_add_u32 m0, s{sK1}, {base + pos*4096}"), Ins("s_nop 0"),
                 Ins(f"buffer_load_dwordx4 v{voff}, {R(RWQKV)}, s{sCw2} offen lds", tag),
                 Ins(f"s_add_u32 s{sCw2}, s{sCw2}, {64*2688}"), Ins(f"s_cmp_eq_u32 s{sCw2}, s{sWend}"),
                 Ins(f"s_cselect_b32 s{sCw2}, s{sWbeg}, s{sCw2}")] for pos in range(7)]

    NP0 = OPT.get("np0", 2)
    for pos in range(NP0):
        p.add(flat(pos_groups(pos)))
    stamp(p, "iss0")
    q = Prog()
    q(f"s_lshl_b32 s{sK2}, s{sW}, 11")
    q(f"v_bfe_u32 v{vR}, v1, 2, 2")
    q(f"v_and_b32 v{vMC}, 3, v1")
    q(f"v_lshlrev_b32 v{vMC}, 3, v{vMC}")
    q(f"v_bfe_u32 v{vHF}, v1, 4, 1")
    q(f"v_lshl_add_u32 v{vMC}, v{vHF}, 5, v{vMC}")
    q(f"v_lshrrev_b32 v{vHF}, 5, v1")
    q(f"v_lshl_add_u32 v{t3}, v{vHF}, 3, v{vR}")
    q(f"v_add_u32 v{t0}, s{sSh}, v{vMC}")
    q(f"v_and_b32 v{t0}, 63, v{t0}")
    q(f"v_lshl_add_u32 v{t0}, v{t3}, 6, v{t0}")
    q(f"v_add_u32 v{vAw4[0]}, s{sK1}, v{t0}")
    for s in range(1, 4):
        q(f"v_xor_b32 v{vAw4[s]}, {s*1024}, v{vAw4[0]}")
    q(f"v_and_b32 v{t0}, 31, v1")
    q(f"v_bfe_u32 v{t1}, v1, 1, 3")
    q(f"v_xor_b32 v{t1}, v{t1}, v{vHF}")
    q(f"s_lshl_b32 s{sA}, s{sW}, 1")
    q(f"v_xor_b32 v{t1}, s{sA}, v{t1}")
    q(f"v_lshlrev_b32 v{t0}, 7, v{t0}")
    q(f"v_add_u32 v{t0}, s{sXRb}, v{t0}")
    q(f"v_lshl_add_u32 v{vXr[0]}, v{t1}, 4, v{t0}")
    for s in range(1, 4):
        q(f"v_xor_b32 v{vXr[s]}, {32*s}, v{vXr[0]}")
    q(f"v_mov_b32 v{vOnes}, 0x3f803f80")
    for r in (vS, vQ, vCk, vCv, vCq):
        q(f"v_mov_b32 v{r}, 0")
    q(f"v_add_u32 v{vWv}, 1792, v{vWq}")
    q("s_memrealtime s[98:99]")
    srd(q, RDBG, SDBG, 256)
    q(f"v_lshlrev_b32 v{vL16}, 4, v1")
    q(f"s_or_b32 s{sA}, s2, s{sW}")
    q(f"v_or_b32 v{vEp}, s{sA}, v1")
    q(f"v_lshlrev_b32 v{vEp}, 12, v{vEp}")
    srd(q, RWPHI, SWPHI, H * DH * DH * 2)
    srd(q, RWS, SWS, WS_SIZE)
    nobg = OPT.get("nobg", 0)
    srd(q, RWO, SWO, 0 if nobg & 1 else D * D * 2)
    srd(q, RW1, SW1, 0 if nobg & 2 else D * F * 2)
    srd(q, RW2, SW2, 0 if nobg & 4 else F * D * 2)
    srd(q, RB1, SB1, F * 2)
    srd(q, RB2, SB2, D * 2)
    srd(q, ROUT, SOUT, S * D * 2)
    q(f"s_or_b32 s98, s98, 1")
    q(f"v_mov_b32 v{g.vPT}, s98")
    epst = [Ins(f"buffer_store_dword v{g.vPT}, v{vEp}, {R(RDBG)}, 0 offen sc1")]
    q(f"s_mov_b32 s{sMk}, 0xf0000000")
    q(f"s_mov_b32 s{sMk+1}, 0xf0000000")
    q(f"s_lshl_b32 s{sPo}, s2, 10")
    q(f"s_add_u32 s{sPo}, s{sPo}, {WS_FLAG}")
    q.items.append([Ins(f"s_add_u32 s0, s{SWS}, s{sPo}"), Ins(f"s_addc_u32 s1, s{SWS+1}, 0")])
    for r in (XM, CMk, CMv):
        q(f"v_mov_b32 v{r+2}, 0")
        q(f"v_mov_b32 v{r+3}, 0")
    q(f"v_lshl_add_u32 v{t3}, v{vHF}, 2, v{vR}")
    q(f"v_mul_u32_u24 v{vAphi}, 56, v{t3}")
    q(f"v_add_u32 v{vAphi}, v{vAphi}, v{vMC}")
    q(f"v_add_u32 v{vAphi}, {L_WPHI}, v{vAphi}")
    q(f"v_cmp_eq_u32 vcc, 56, v{vMC}")
    q(f"v_add_u32 v{t0}, {2048 - 8}, v{vAphi}")
    q(f"v_bfe_u32 v{t1}, v1, 4, 1")
    q(f"v_cndmask_b32 v{vAphi}, v{vAphi}, v{t0}, vcc")
    q(f"v_lshl_add_u32 v{t0}, v{t1}, 2, v{vR}")
    q(f"v_lshl_add_u32 v{t0}, v{vHF}, 4, v{t0}")
    q(f"v_mul_u32_u24 v{t0}, 136, v{t0}")
    q(f"v_and_b32 v{t2}, 3, v1")
    q(f"v_lshl_add_u32 v{t0}, v{t2}, 3, v{t0}")
    q(f"s_lshl_b32 s{sB}, s{sW}, 5")
    q(f"v_add_u32 v{vApk}, s{sB}, v{t0}")
    q(f"v_and_b32 v{t0}, 15, v1")
    q(f"v_lshlrev_b32 v{t0}, 4, v{t0}")
    q(f"v_lshl_add_u32 v{t0}, v{t1}, 9, v{t0}")
    q(f"v_lshl_add_u32 v{vBv}, v{vHF}, 10, v{t0}")
    q(f"v_add_u32 v{vBv}, {L_VF}, v{vBv}")
    q(f"v_and_b32 v{t0}, 31, v1")
    q(f"s_add_u32 s{sB}, s{sK2}, {L_VF}")
    q(f"v_lshl_add_u32 v{vMisc}, v{t0}, 2, s{sB}")
    q(f"v_lshl_add_u32 v{vMr}, v{vHF}, 4, s{sB}")
    q(f"v_mul_u32_u24 v{t0}, 136, v{t0}")
    q(f"v_lshl_add_u32 v{t0}, v{vHF}, 3, v{t0}")
    q(f"s_mul_i32 s{sB}, s{sW}, {32*136}")
    q(f"v_add_u32 v{vPkw}, s{sB}, v{t0}")
    q(f"v_lshlrev_b32 v{vCr}, 2, v1")
    q(f"v_add_u32 v{vCr}, {L_CSX}, v{vCr}")
    q(f"s_lshl_b32 s{sB}, s{sW}, 8")
    q(f"v_add_u32 v{vCx}, s{sB}, v{vCr}")
    q(f"s_and_b32 s{sC}, s{sW}, 1")
    q(f"s_lshl_b32 s{sC}, s{sC}, 10")
    q(f"s_lshr_b32 s{sB}, s{sW}, 1")
    q(f"s_lshl_b32 s{sB}, s{sB}, 2")
    q(f"s_add_u32 s{sC}, s{sC}, s{sB}")
    q(f"s_mul_i32 s{sB}, s{sH}, {DH*DH*2}")
    q(f"s_add_u32 s{sC}, s{sC}, s{sB}")
    q(f"s_lshl_b32 s{sB}, s{sI}, 2")
    q(f"s_add_u32 s{sB}, s{sB}, s{sW}")
    q(f"s_lshl_b32 s{sB}, s{sB}, 7")
    q(f"v_lshl_add_u32 v{vTch}, v1, 14, s{sB}")
    q(f"s_lshl_b32 s{sB}, s2, 2")
    q(f"s_add_u32 s{sB}, s{sB}, s{sW}")
    q(f"s_lshl_b32 s{sB}, s{sB}, 7")
    q(f"v_lshl_add_u32 v{g.vPo}, v1, 17, s{sB}")
    p.add(sprinkle(q.items, sum([pos_groups(k) for k in range(NP0, 3)], []), OPT.get("sp0", 90), start=OPT.get("st0", 200), hide=0))
    p.add(epst)
    stamp(p, "setup")

    s3 = Prog()
    s3(f"s_and_b32 s{sA}, s2, 7")
    s3(f"s_lshr_b32 s{sCT}, s{sI}, 2")
    s3(f"s_lshl_b32 s{sB}, s{sCT}, 7")
    s3(f"s_mul_i32 s{sWOsrc}, s{sW}, {15*8*896}")
    s3(f"s_add_u32 s{sWOsrc}, s{sWOsrc}, s{sB}")
    s3(f"s_mul_i32 s{sWOl}, s{sW}, {15*1024}")
    s3(f"v_lshrrev_b32 v{t0}, 2, v1")
    s3(f"v_lshrrev_b32 v{t1}, 4, v1")
    s3(f"v_xor_b32 v{t0}, v{t0}, v{t1}")
    s3(f"v_and_b32 v{t0}, 1, v{t0}")
    s3(f"v_and_b32 v{t1}, 3, v1")
    s3(f"v_lshlrev_b32 v{t1}, 4, v{t1}")
    s3(f"v_lshl_add_u32 v{vW1[0]}, v{t0}, 6, v{t1}")
    s3(f"v_lshrrev_b32 v{t0}, 3, v1")
    s3(f"v_mul_u32_u24 v{t0}, 896, v{t0}")
    s3(f"v_add_u32 v{vW64[0]}, v{t0}, v{vW1[0]}")
    s3(f"v_lshl_add_u32 v{vW1[0]}, v{t0}, 2, v{vW1[0]}")
    for j in range(1, 4):
        s3(f"v_add_u32 v{vW64[j]}, {j*(8*896-1024)}, v{vW64[0]}")
    n_s3a = len(s3.items)
    s3(f"s_lshl_b32 s{sB}, s{sW}, 2")
    s3(f"v_add_u32 v{t0}, s{sB}, v1")
    s3(f"v_mov_b32 v{t3}, 0xffff0000")
    s3(f"s_lshr_b32 s{sB}, s{sH}, 3")
    s3(f"s_lshl_b32 s{sB}, s{sB}, 2")
    s3(f"s_and_b32 s{sE}, s{sH}, 7")
    s3(f"s_lshl_b32 s{sE}, s{sE}, 5")
    s3(f"s_add_u32 s{sB}, s{sB}, s{sE}")
    s3(f"s_lshl_b32 s{sB}, s{sB}, 10")
    s3(f"s_lshl_b32 s{sE}, s{sRB}, 2")
    s3(f"s_add_u32 s{sB}, s{sB}, s{sE}")
    s3(f"s_add_u32 s{sB}, s{sB}, {WS_FLAG}")
    s3(f"v_lshrrev_b32 v{t1}, 2, v{t0}")
    s3(f"v_and_b32 v{t2}, 3, v{t0}")
    s3(f"v_cmp_gt_u32 vcc, 4, v1")
    s3(f"v_lshl_add_u32 v{t1}, v{t2}, 3, v{t1}")
    s3(f"v_lshl_add_u32 v{t1}, v{t1}, 10, s{sB}")
    s3(f"v_cndmask_b32 v{g.vFl[0]}, v{t3}, v{t1}, vcc")
    n_s3b = len(s3.items)
    s3(f"s_and_b32 s{sRB64}, s{sI}, 3")
    s3(f"s_lshl_b32 s{sB}, s{sA}, 2")
    s3(f"s_add_u32 s{sRB64}, s{sRB64}, s{sB}")
    s3(f"s_lshr_b32 s{sFT}, s{sI}, 1")
    s3(f"s_lshr_b32 s{sB}, s{sW}, 1")
    s3(f"s_lshl_b32 s{sRTf}, s{sRB64}, 1")
    s3(f"s_add_u32 s{sRTf}, s{sRTf}, s{sB}")
    s3(f"s_and_b32 s{sB}, s{sW}, 1")
    s3(f"s_lshl_b32 s{sTf}, s{sCT}, 1")
    s3(f"s_add_u32 s{sTf}, s{sTf}, s{sB}")
    s3(f"v_and_b32 v{t0}, 31, v1")
    s3(f"v_lshlrev_b32 v{t2}, 1, v{t0}")
    s3(f"s_lshl_b32 s{sE}, s{sFT}, 8")
    small = [[Ins(f"buffer_load_ushort a{A_B1+T_}, v{t2}, {R(RB1)}, s{sE} offen offset:{64*T_}")] for T_ in range(4)]

    s4 = Prog()
    s4(f"s_and_b32 s{sD}, s2, 7")
    s4(f"s_and_b32 s{sRB3}, s{sI}, 1")
    s4(f"s_lshl_b32 s{sB}, s{sD}, 1")
    s4(f"s_add_u32 s{sRB3}, s{sRB3}, s{sB}")
    s4(f"s_lshl_b32 s{sRT3}, s{sRB3}, 2")
    s4(f"s_add_u32 s{sRT3}, s{sRT3}, s{sW}")
    for j in range(1, 4):
        s4(f"v_add_u32 v{vW1[j]}, {j*(8*3584-1024)}, v{vW1[0]}")
    s4(f"s_lshl_b32 s{sK4}, s{sW}, 12")
    s4(f"s_mov_b32 s{sR3}, s{sFT}")
    mod7(s4, sR3, sE)
    mod7(s4, sR3, sE)
    if not OPT.get("rot3", 0):
        s4(f"s_mov_b32 s{sR3}, 0")
    s4(f"s_lshl_b32 s{sB}, s{sFT}, 8")
    s4(f"s_and_b32 s{sT1}, s{sW}, 1")
    s4(f"s_mul_i32 s{sT1}, s{sT1}, {32*3584}")
    s4(f"s_add_u32 s{sT1}, s{sT1}, s{sB}")
    for blk in range(4):
        r_ = sW1b[blk]
        if blk < 3:
            s4(f"s_lshr_b32 s{r_}, s{sW}, 1")
            s4(f"s_add_u32 s{r_}, s{r_}, s{sR3}")
            s4(f"s_add_u32 s{r_}, s{r_}, {2*blk}")
        else:
            s4(f"s_mul_i32 s{sT1}, s{sW}, {16*3584}")
            s4(f"s_add_u32 s{sT1}, s{sT1}, s{sB}")
            s4(f"s_add_u32 s{r_}, s{sR3}, 6")
        mod7(s4, r_, sE)
        s4(f"s_mul_i32 s{r_}, s{r_}, {0 if OPT.get('hot1') else 64*3584}")
        s4(f"s_add_u32 s{r_}, s{r_}, s{sT1}")
    s4(f"s_lshl_b32 s{sB}, s{sW}, 2")
    s4(f"v_add_u32 v{t0}, s{sB}, v1")
    s4(f"v_mov_b32 v{t3}, 0xffff0000")
    s4(f"v_cmp_gt_u32 vcc, 4, v1")
    s4(f"v_cmp_gt_u32 s[94:95], 14, v{t0}")
    s4(f"v_and_b32 v{t1}, 1, v{t0}")
    s4(f"v_lshrrev_b32 v{t2}, 1, v{t0}")
    s4(f"s_and_b64 vcc, vcc, s[94:95]")
    s4(f"v_lshl_add_u32 v{t1}, v{t2}, 2, v{t1}")
    s4(f"v_lshlrev_b32 v{t1}, 13, v{t1}")
    for sync, srb, sslot in ((1, sRB, sH), (3, sRB3, sFT)):
        s4(f"s_lshr_b32 s{sB}, s{srb}, 1")
        s4(f"s_and_b32 s{sE}, s{srb}, 1")
        s4(f"s_lshl_b32 s{sE}, s{sE}, 4")
        s4(f"s_add_u32 s{sB}, s{sB}, s{sE}")
        s4(f"s_lshl_b32 s{sB}, s{sB}, 10")
        s4(f"s_lshl_b32 s{sE}, s{sslot}, 2")
        s4(f"s_add_u32 s{sB}, s{sB}, s{sE}")
        s4(f"s_add_u32 s{sB}, s{sB}, {WS_FLAG}")
        s4(f"v_add_u32 v{t2}, s{sB}, v{t1}")
        s4(f"v_cndmask_b32 v{g.vFl[sync]}, v{t3}, v{t2}, vcc")
    s4(f"s_lshr_b32 s{sB}, s{sRB64}, 1")
    s4(f"s_and_b32 s{sB}, s{sB}, 1")
    s4(f"s_lshl_b32 s{sB}, s{sB}, 3")
    s4(f"s_add_u32 s{sB}, s{sB}, s{sD}")
    s4(f"s_lshl_b32 s{sB}, s{sB}, 10")
    s4(f"s_and_b32 s{sE}, s{sRB64}, 1")
    s4(f"s_mul_i32 s{sE}, s{sE}, 7")
    s4(f"s_add_u32 s{sE}, s{sE}, s{sCT}")
    s4(f"s_lshl_b32 s{sE}, s{sE}, 2")
    s4(f"s_add_u32 s{sB}, s{sB}, s{sE}")
    s4(f"s_add_u32 s{sB}, s{sB}, {WS_FLAG}")
    s4(f"v_lshl_add_u32 v{t2}, v{t0}, 14, s{sB}")
    s4(f"v_cndmask_b32 v{g.vFl[2]}, v{t3}, v{t2}, vcc")
    s4(f"v_min_u32 v{g.vPo}, 13, v1")
    s4(f"v_lshlrev_b32 v{g.vPo}, 2, v{g.vPo}")

    def touch(srdreg, k):
        return [Ins(f"s_mov_b32 s{sBG}, {k << 20}"), Ins(f"buffer_load_dword a116, v{vTch}, {R(srdreg)}, s{sBG} offen")]

    def wo_groups(a, b):
        return dma_run(vW64, RWO, sWOsrc, 0, 8 * 896, sWOl, L_WO, a, b, "wo")

    def w1r(a, b):
        gs = []
        for im in range(2):
            for blk in range(4):
                k0, n = 14 * im + 4 * blk, (4 if blk < 3 else 2)
                lo, hi = max(a, k0), min(b, k0 + n)
                if lo < hi:
                    gs += dma_run(vW1, RW1, sW1b[blk], 128 * im, 8 * 3584, sK4 if blk < 3 else sK2, L_I[im] + blk * 16384, lo - k0, hi - k0, f"w1{im}")
        return gs

    def xop(pos, s):
        return ("a", 16 * pos + 4 * s) if pos < 3 else ("v", X[pos & 3] + 4 * s)

    def k_reads(pos):
        xr = [Ins(f"ds_read_b128 {q4(X[pos & 3]+4*s)}, v{vXr[s]} offset:{(pos & 3) * 4096}") for s in range(4)]
        wr = [Ins(f"ds_read_b64_tr_b16 {pr(WF+16*(pos & 1)+4*s,2*u)}, v{vAw4[s]} offset:{L_WK+pos*4096+u*256}") for s in range(4) for u in range(2)]
        return xr, wr

    def a_reads(pos):
        return [Ins(f"ds_read_b128 a[{16*pos+4*s}:{16*pos+4*s+3}], v{vXr[s]} offset:{(pos & 3) * 4096}") for s in range(4)] if pos < 3 else []

    def dots(pos):
        x = X[pos & 3]
        out = [Ins(l) for j in range(16) for l in (f"v_dot2c_f32_bf16 v{vS}, v{x+j}, v{vOnes}", f"v_dot2c_f32_bf16 v{vQ}, v{x+j}, v{x+j}")]
        return out + [Ins(f"v_dot2c_f32_bf16 v{vCk}, v{WF+16*(pos & 1)+j}, v{vOnes}") for j in range(4)]

    wphi_g = [Ins(f"s_add_u32 m0, s{sK1}, {L_WPHI}"), Ins("s_nop 0"), Ins(f"buffer_load_dwordx4 v{vL16}, {R(RWPHI)}, s{sC} offen lds", "wphi")]
    ep_g = [Ins(f"v_mov_b32 v{t0}, 0"), Ins(f"buffer_load_dword v{g.vTag}, v{t0}, {R(RDBG)}, 0 offen sc1")]
    tsel = OPT.get("tsel", 3)
    mall = [[Ins(f"buffer_load_dword a116, v{g.vPo}, {R(r_)}, 0 offen")] for r_ in (RWQKV, RWO, RW1, RW2)]
    msel, mpos = OPT.get("msel", 0), OPT.get("mpos", 1)
    mall = [m_ for i_, m_ in enumerate(mall) if msel >> i_ & 1]
    if OPT.get("tlb"):
        mall = [[Ins(f"v_lshlrev_b32 v{g.vPo}, 18, v1"), Ins(f"buffer_load_dword a116, v{g.vPo}, {R(RWS)}, 0 offen")],
                [Ins(f"v_lshlrev_b32 v{g.vPo}, 15, v1"), Ins(f"buffer_load_dword a116, v{g.vPo}, {R(ROUT)}, 0 offen")]] + \
               [[Ins(f"buffer_load_dword a116, v{g.vPo}, {R(r_)}, 0 offen")] for r_ in (RWO, RW1, RW2, RB1, RB2)]
    if mpos < 0:
        p.add(flat(mall))
    side = [wphi_g] + wstream(vWv, L_WV, "wv") + [ep_g] + wstream(vWq, L_WQ, "wq") + \
        [t_ for i_, t_ in enumerate([touch(RWO, 0), touch(RW1, 0), touch(RW1, 1)]) if tsel >> i_ & 1]
    sq = [int(c_) for c_ in "%06d" % OPT.get("sq", 264)]
    assert sum(sq) >= 8

    p.wait_vm("p0")
    p("s_barrier")
    stamp(p, "pos0")
    xr, wr = k_reads(0)
    p.add([xr[0]] + wr[:2] + [xr[1]] + wr[2:4] + [xr[2]] + wr[4:6] + [xr[3]] + wr[6:])
    for pos in range(7):
        if pos < 6:
            p.wait_vm(f"p{pos+1}")
            p.barrier(lgkm=(pos > 0))
        else:
            p.wait_vm("wphi")
            p.barrier()
        if pos in (2, 4, 6):
            stamp(p, f"it{pos}")
        m = Prog()
        for s in range(4):
            mfma(m, AK, WF + 16 * (pos & 1) + 4 * s, X[pos & 3] + 4 * s, None if (pos == 0 and s == 0) else AK)
        if pos == 6:
            break
        xr, wr = k_reads(pos + 1)
        bg = (pos_groups(pos + 3) if pos + 3 < 7 else []) + side[:sq[pos]]
        side = side[sq[pos]:]
        if pos == mpos:
            bg += mall
        seq = xr[:2] + wr[:2] + xr[2:] + wr[2:] + a_reads(pos)
        o = []
        for i_, mm in enumerate(m.items):
            o += [mm] + seq[3 * i_:3 * i_ + 3]
            if bg and i_ < OPT.get("nbm", 4):
                o.append(bg.pop(0))
        p.add(o + seq[12:])
        p.add((dots(0) if pos == 0 else []) + dots(pos + 1))
        if pos == 5:
            p(f"ds_write_b32 v{vCx}, v{vCk}")
        p.add(flat(bg))
    order = [(pos, 0) for pos in range(7)] + [(pos, s) for pos in range(7) for s in range(1, 4)]
    def pass_stream(acc, addr, base, regs, transposed, PRE):
        def rd(n):
            pos, s = order[n]
            k_, r_ = regs(n)
            return [Ins(f"ds_read_b64_tr_b16 {pr(r_,2*u,k_)}, v{addr[s]} offset:{base+pos*4096+u*256}") for u in range(2)]
        head = [x for n in range(PRE) for x in rd(n)]
        body = []
        for n in range(28):
            k_, xr_ = xop(*order[n])
            wk_, wr_ = regs(n)
            q = Prog()
            if n % 2 == 0 and n + 1 < 28:
                q.items.append(Need(f"{regs(n+1)[0]}[{regs(n+1)[1]}:{regs(n+1)[1]+3}]"))
            if transposed:
                mfma(q, acc, wr_, xr_, None if n == 0 else acc, ak=wk_, bk=k_)
            else:
                mfma(q, acc, xr_, wr_, None if n == 0 else acc, ak=k_, bk=wk_)
            body.append(q.items)
        for n in range(PRE, 28):
            body[n - PRE] += rd(n)
        return head, body

    KEEP = [WF + 4 * n for n in range(7)]
    wregs = lambda n: ("v", KEEP[n]) if n < 7 else ("a", 64 + 4 * (n & 7))
    vhead, vb = pass_stream(AV, vAw4, L_WV, wregs, False, 6)
    CP, KB, OUT = T, PHQ, PHQ
    CS, VB = AK, WF
    st = Prog()
    for w2 in range(4):
        st(f"ds_read_b32 v{CP+w2}, v{vCr} offset:{w2*256}")
    xhalf(st, "v_add_f32", vS, t0)
    st(f"v_mul_f32 v{vS}, {f32(-1.0/D)}, v{vS}")
    split_dup(st, XM, XM + 1, vS, t0)
    st(f"v_add_f32 v{CP}, v{CP}, v{CP+1}")
    st(f"v_add_f32 v{CP+2}, v{CP+2}, v{CP+3}")
    st(f"v_add_f32 v{CP}, v{CP}, v{CP+2}")
    split_pair(st, CMk, CP, t1)
    st(f"v_mov_b32 v{CMk+1}, v{CMk}")
    ph = [Ins(f"ds_read_b64_tr_b16 {pr(PH,4*t+2*u,'a')}, v{vAphi} offset:{(16*t+8*u)*56}") for t in range(2) for u in range(2)]
    o, rest = weave(m.items, st.items[:4] + ph + st.items[4:], 28)
    p.add(o + rest)
    mfma(p, AK, CMk, XM, AK)
    stamp(p, "kmfma")
    fs = (lambda n_: stamp(p, n_)) if OPT.get("fine") else (lambda n_: None)
    xhalf(p, "v_add_f32", vQ, t1)
    p(f"v_mul_f32 v{t3}, {f32(1.0/D)}, v{vQ}")
    p(f"v_fma_f32 v{t3}, -v{vS}, v{vS}, v{t3}")
    p.add(masked(0, -1, [f"v_accvgpr_write_b32 a{PH+6}, 0", f"v_accvgpr_write_b32 a{PH+7}, 0"]))
    for j in range(0, 16, 2):
        p(f"v_cvt_pk_bf16_f32 v{KB+j//2}, v{AK+j}, v{AK+j+1}")
    mfma(p, AK, PH, KB, ak="a")
    p(f"v_max_f32 v{t3}, 0, v{t3}")
    p(f"v_add_f32 v{t3}, {f32(1e-5)}, v{t3}")
    p(f"v_rsq_f32 v{vRS}, v{t3}")
    mfma(p, AK, PH + 4, KB + 4, AK, ak="a")
    ne1, ne2 = OPT.get("ne1", 2), OPT.get("ne2", 2)
    p.add(flat(side[:ne1]))
    side = side[ne1:]
    p(f"v_mul_f32 v{vSC}, {f32(LOG2E)}, v{vRS}")
    p(f"ds_write_b32 v{vMisc}, v{vRS}")
    fs("e_phi")
    sm = sm_parts(AK, E, OUT, vSC, T)
    p.add(sm["max"][:-2])
    p.add(flat(side[:ne2]))
    side = side[ne2:]
    p.add(sm["max"][-1:])
    fs("e_max")
    p.wait_vm("wv")
    p.add(vhead)
    p.add(sm["fma"])
    p.add(flat(side))
    p("s_barrier")
    fs("e_fma")
    o, rest = weave(flat(vb[0:14]), sm["exp"], 24)
    p.add(o + rest)
    fs("e_exp")
    p.add(sm["add"])
    for n in range(7):
        for j in range(4):
            p(f"v_dot2c_f32_bf16 v{vCv}, v{KEEP[n]+j}, v{vOnes}")
    cv = Prog()
    cv(f"ds_write_b32 v{vCx}, v{vCv} offset:1024")
    for gg in range(4):
        cv(f"ds_read_b128 {q4(CS+4*gg)}, v{vMr} offset:{32*gg}")
    o, rest = weave(flat(vb[14:18]), sm["rcp"][:2] + cv.items + sm["rcp"][3:], 26)
    p.add(o + rest)
    fs("e_rcp")
    p.add(sm["mul"])
    p.barrier()
    cv = Prog()
    for w2, r_ in enumerate((t0, t1, t2, t3)):
        cv(f"ds_read_b32 v{r_}, v{vCr} offset:{1024+w2*256}")
    pkw = [Ins(f"ds_write_b64 v{vPkw}, {pr(OUT, 8*sg+2*gg)} offset:{L_PK+64*sg+16*gg}") for sg in range(2) for gg in range(4)]
    cv.add(sm["cvt"][:7] + pkw[:4])
    cv(f"v_add_f32 v{t0}, v{t0}, v{t1}")
    cv(f"v_add_f32 v{t2}, v{t2}, v{t3}")
    cv(f"v_add_f32 v{t0}, v{t0}, v{t2}")
    split_pair(cv, CMv, t0, t1)
    cv(f"v_mov_b32 v{CMv+1}, v{CMv}")
    cv.add(sm["cvt"][7:] + pkw[4:])
    cv(f"s_add_u32 s{sA}, s{sK2}, {L_VF}")
    cv(f"v_add_u32 v{t2}, s{sA}, v{vL16}")
    o, rest = weave(flat(vb[18:28]), cv.items, 24)
    p.add(o + rest)
    mfma(p, AV, XM, CMv, AV)
    fs("e_cvt")
    for s in range(4):
        p(f"v_add_u32 v{vAw4[s]}, {L_WQ}, v{vAw4[s]}")
    p(f"s_lshl_b32 s{sA}, s{sH}, 4")
    p(f"s_add_u32 s{sA}, s{sA}, s{sRB}")
    p(f"s_lshl_b32 s{sA}, s{sA}, 12")
    p(f"s_add_u32 s{sA}, s{sA}, s{sK1}")
    for t in range(2):
        for j in range(8 * t, 8 * t + 8, 2):
            p(f"v_pk_mul_f32 {pr(AV,j)}, {pr(AV,j)}, {pr(CS,j)}")
        for j in range(8 * t, 8 * t + 8, 2):
            p(f"v_cvt_pk_bf16_f32 v{VB+j//2}, v{AV+j}, v{AV+j+1}")
        for j in range(4 * t, 4 * t + 4):
            p(f"v_cndmask_b32 v{VB+j}, v{VB+j}, v{vOnes}, s[{sMk}:{sMk+1}]")
        p(f"ds_write_b128 v{t2}, {q4(VB+4*t)} offset:{t*1024}")
    p.barrier()
    stamp(p, "pkbar")
    AFk, BFv = AK, E - 4
    for ws in range(4):
        for u in range(2):
            p(f"ds_read_b64_tr_b16 {pr(AFk, 4*ws+2*u)}, v{vApk} offset:{L_PK+(32*ws+8*u)*136}")
        for nt in range(2):
            p(f"ds_read_b128 {q4(BFv+8*ws+4*nt)}, v{vBv} offset:{ws*2048 + nt*256}")
    DK, PKD = PHQ, PHQ + 8
    AQ = AV
    qhead, qb = pass_stream(AQ, vAq4, 0, wregs, True, 6)
    for ws in range(4):
        for nt in range(2):
            c = "0" if ws == 0 else q4(DK + 4 * nt)
            p(f"v_mfma_f32_16x16x32_bf16 {q4(DK+4*nt)}, {q4(AFk+4*ws)}, {q4(BFv+8*ws+4*nt)}, {c}")
    for j in range(4):
        p(f"v_cvt_pk_bf16_f32 v{PKD+j}, v{DK+2*j}, v{DK+2*j+1}")
    p(f"v_permlane32_swap_b32 v{PKD}, v{PKD+2}")
    p(f"v_permlane32_swap_b32 v{PKD+1}, v{PKD+3}")
    p(f"buffer_store_dwordx4 {q4(PKD)}, v{vL16}, {R(RWS)}, s{sA} offen sc1", tag="stA")
    stamp(p, "kvstored")
    p.wait_vm("wq")
    p.add(qhead)
    p("s_barrier")
    p.add(s3.items[:12])
    o, rest = weave(flat(qb[:7]), s3.items[12:n_s3b], 26)
    p.add(o)
    for n in range(7):
        for j in range(4):
            p(f"v_dot2c_f32_bf16 v{vCq}, v{KEEP[n]+j}, v{vOnes}")
    p(f"ds_write_b32 v{vCx}, v{vCq} offset:2048")
    NQ1 = OPT.get("nq1", 13)
    o, rest = weave(flat(qb[7:10]), rest, 26)
    p.add(o + rest)
    wog = wo_groups(0, 15)
    o, wog = paced(flat(qb[10:NQ1]), wog, 2)
    p.add(o)
    p.raw(f"""
    v_cmp_eq_u32 vcc, 0, v{g.vTag}
    s_mov_b32 s{sB}, 0
    s_cbranch_vccnz L_epoch
L_epoch_done:
""", uses=[f"v{g.vTag}"], defs=[f"v{g.vTag}", f"v{t0}"], pad=False)
    SLOW.append(f"""
L_epoch:
    v_mov_b32 v{t0}, 0
    buffer_load_dword v{g.vTag}, v{t0}, {R(RDBG)}, 0 offen sc1
    s_waitcnt vmcnt(0)
    v_cmp_eq_u32 vcc, 0, v{g.vTag}
    s_add_u32 s{sB}, s{sB}, 1
    s_cbranch_vccz L_epoch_done
    s_cmp_lt_u32 s{sB}, 0x10000
    s_cbranch_scc1 L_epoch
    s_branch L_epoch_done
""")
    p.wait_vm("stA")
    p("s_barrier")
    flag(p, g, 0)
    stamp(p, "pubA")
    fb = Prog()
    for w2 in range(4):
        fb(f"ds_read_b32 v{CP+w2}, v{vCr} offset:{2048+w2*256}")
    fb(f"v_readfirstlane_b32 s{sTag}, v{g.vTag}")
    fb(f"v_readfirstlane_b32 s{sTag+1}, v{g.vTag}")
    fb(f"v_add_f32 v{CP}, v{CP}, v{CP+1}")
    fb(f"v_add_f32 v{CP+2}, v{CP+2}, v{CP+3}")
    fb(f"v_add_f32 v{CP}, v{CP}, v{CP+2}")
    split_pair(fb, CMk, CP, CP + 1)
    fb(f"v_mov_b32 v{CMk+1}, v{CMk}")
    o, wog = paced(flat(qb[NQ1:]), wog, 2)
    o, rest = weave(o, fb.items + s3.items[n_s3b:], 28)
    p.add(o + rest)
    mfma(p, AQ, CMk, XM, AQ)
    KB = WF
    bgs = wog + small
    p.add(flat(bgs[:2]))
    for j in range(0, 16, 2):
        p(f"v_cvt_pk_bf16_f32 v{KB+j//2}, v{AQ+j}, v{AQ+j+1}")
    mfma(p, AK, PH, KB, ak="a")
    p.add(flat(bgs[2:3]))
    mfma(p, AK, PH + 4, KB + 4, AK, ak="a")
    p.add(flat(bgs[3:5]))
    stamp(p, "qmfma")
    SUM = XM
    sm = sm_parts(AK, E, PHQ, vSC, T)
    z = Prog()
    for j in range(8):
        z(f"v_mov_b32 v{SUM+j}, 0")
    z(f"v_mov_b32 v{vSelL}, 0x00003f80")
    z(f"v_mov_b32 v{vSelH}, 0x3f800000")
    z(f"s_lshl_b32 s{sC}, s{sH}, 16")
    z(f"s_add_u32 s{sC}, s{sC}, s{sK1}")
    smq = z.items + sm["max"] + sm["fma"] + sm["exp"] + sm["add"] + sm["rcp"] + sm["mul"] + sm["cvt"]
    na, nb = len(smq) * OPT.get("pa1", 30) // 100, len(smq) * OPT.get("pa2", 100) // 100
    p("s_barrier")
    p.add(sprinkle(smq[:na], bgs[5:], OPT.get("spq", 40), hide=0))
    spoll_issue(p, 0)
    p.add(smq[na:nb])
    stamp(p, "qdone")
    spoll_check(p, 0, 16)
    stamp(p, "syncA")

    PARTS = [X[j >> 2] + 4 * (j & 3) for j in range(16)]
    ld = []
    for pp in range(16):
        ld.append([Ins(f"s_add_u32 s{sA}, s{sC}, {pp*4096}"),
                   Ins(f"buffer_load_dwordx4 {q4(PARTS[pp])}, v{vL16}, {R(RWS)}, s{sA} offen sc1")])
    wb, wc, wd = OPT.get("wb", 2), OPT.get("wc", 14), OPT.get("wd", 18)
    assert wd <= 18
    vA0, vA1, vRc = vAw4[0], vAw4[1], vRS
    vEx0, vEx1 = vAw4[2], vAw4[3]
    q = Prog()
    q(f"v_and_b32 v{t0}, 15, v1")
    q(f"v_lshl_add_u32 v{t0}, v{vHF}, 4, v{t0}")
    q(f"v_bfe_u32 v{t1}, v1, 4, 1")
    q(f"v_lshl_add_u32 v{t0}, v{t1}, 5, v{t0}")
    q(f"s_add_u32 s{sB}, s{sK1}, {L_MISC}")
    q(f"v_lshl_add_u32 v{vEx0}, v{t0}, 4, s{sB}")
    q(f"v_add_u32 v{vEx1}, {L_MISC}, v{vL16}")
    q(f"v_lshl_add_u32 v{t3}, v{vHF}, 2, v{vR}")
    q(f"v_lshl_add_u32 v{vAi0}, v{t3}, 7, v{vMC}")
    q(f"v_lshrrev_b32 v{t3}, 1, v{vR}")
    q(f"v_lshl_add_u32 v{vAi0}, v{t3}, 6, v{vAi0}")
    q(f"s_and_b32 s{sB}, s{sW}, 1")
    q(f"s_lshl_b32 s{sE}, s{sB}, 6")
    q(f"v_xor_b32 v{vAw}, s{sE}, v{vAi0}")
    q(f"v_xor_b32 v{vA1}, 64, v{vAw}")
    q(f"s_mul_i32 s{sB}, s{sB}, {224*128}")
    q(f"s_add_u32 s{sB}, s{sB}, {L_WO}")
    q(f"v_add_u32 v{vA0}, s{sB}, v{vAw}")
    q(f"v_add_u32 v{vA1}, s{sB}, v{vA1}")
    q(f"s_lshl_b32 s{sD}, s{sRT}, 4")
    q(f"s_add_u32 s{sD}, s{sD}, s{sH}")
    q(f"s_lshl_b32 s{sD}, s{sD}, 11")
    q(f"s_add_u32 s{sD}, s{sD}, {WS_OF}")
    p.add(flat(ld[:5]))
    p.add(sprinkle(smq[nb:] + s4.items + q.items, ld[5:], 56, hide=0))
    p(f"v_and_b32 v{t0}, 31, v1")
    p(f"v_mul_u32_u24 v{t0}, 896, v{t0}")
    p(f"v_lshl_add_u32 v{t0}, v{vHF}, 4, v{t0}")
    p(f"v_lshlrev_b32 v{t3}, 3, v{vHF}")
    p(f"s_mul_i32 s{sA}, s{sRTf}, {32*896}")
    p(f"s_lshl_b32 s{sB}, s{sTf}, 6")
    p(f"s_add_u32 s{sA}, s{sA}, s{sB}")
    small2 = [[Ins(f"buffer_load_dwordx4 {q4(A_XRES+4*q_,'a')}, v{t0}, {R(RX)}, s{sA} offen offset:{32*q_}")] for q_ in range(2)] + \
             [[Ins(f"buffer_load_dwordx2 {pr(A_B2,2*gg,'a')}, v{t3}, {R(RB2)}, s{sB} offen offset:{16*gg}")] for gg in range(4)]
    p.add(flat(small2))
    p.add(flat(w1r(0, wb)))
    dq = Prog()
    for pp in range(16):
        for j in range(4):
            dq(f"v_dot2c_f32_bf16 v{SUM+2*j}, v{PARTS[pp]+j}, v{vSelL}")
            dq(f"v_dot2c_f32_bf16 v{SUM+2*j+1}, v{PARTS[pp]+j}, v{vSelH}")
    p.add(dq.items)
    AF, ACC1, OB = WF, AV, WF + 16
    for j in range(4):
        p(f"v_cvt_pk_bf16_f32 v{OB+j}, v{SUM+2*j}, v{SUM+2*j+1}")
    p(f"ds_write_b128 v{vEx0}, {q4(OB)}")
    stamp(p, "kvsum")
    p.barrier()
    for kk in range(4):
        p(f"ds_read_b128 {q4(AF+4*kk)}, v{vEx1} offset:{kk*1024}")
    WOF = 128
    wof = []
    for k in range(16):
        row0 = 28 * (k >> 1) + 16 * (k & 1)
        for mt in range(2):
            for u in range(2):
                wof.append(Ins(f"ds_read_b64_tr_b16 {pr(WOF, 8*k+4*mt+2*u, 'a')}, v{[vA0, vA1][mt]} offset:{(row0+8*u)*128}"))
    m = Prog()
    for kk in range(4):
        mfma(m, ACC1, AF + 4 * kk, PHQ + 4 * kk, None if kk == 0 else ACC1)
    wm = OPT.get("wm", 6)
    o, w1b_ = paced(m.items, w1r(wb, wb + wm), 1)
    p.add(o + flat(w1b_))
    p(f"v_mov_b32 v{t0}, v{ACC1+12}")
    p(f"v_mov_b32 v{t1}, v{ACC1+12}")
    p(f"v_permlane32_swap_b32 v{t0}, v{t1}")
    p(f"v_add_f32 v{t1}, {f32(1e-6)}, v{t1}")
    p(f"v_rcp_f32 v{vRc}, v{t1}")
    for j in range(0, 16, 2):
        p(f"v_pk_mul_f32 {pr(ACC1,j)}, {pr(ACC1,j)}, {pr(vRc)} op_sel_hi:[1,0]")
    for j in range(0, 8, 2):
        p(f"v_cvt_pk_bf16_f32 v{OB+j//2}, v{ACC1+j}, v{ACC1+j+1}")
    p(f"buffer_store_dwordx4 {q4(OB)}, v{vL16}, {R(RWS)}, s{sD} offen sc1")
    for j in range(8, 16, 2):
        p(f"v_cvt_pk_bf16_f32 v{OB+j//2}, v{ACC1+j}, v{ACC1+j+1}")
    p.add(masked(0, -1, [f"v_mov_b32 v{OB+6}, 0", f"v_mov_b32 v{OB+7}, 0"]))
    p(f"buffer_store_dwordx4 {q4(OB+4)}, v{vL16}, {R(RWS)}, s{sD} offen offset:1024 sc1", tag="stB")
    stamp(p, "ostored")
    p.add(sprinkle(wof, w1r(wb + wm, wd), 40, hide=0))
    publish(p, g, 1, "stB")
    stamp(p, "pubB")
    p(f"s_cmp_ge_u32 s{sI}, 28")
    p("s_cbranch_scc1 L_idle")

    def ksb(j):
        return 16 * (j % 7) + 2 * (j // 7)
    ROW = [14, 15, 16, 17] * 3 + [0, 1, 2, 3, 4, 5, 6, 18, 19] + [7, 8, 9, 10, 11, 12, 13]

    def w2g(j0, j1):
        gs = []
        for j in range(j0, j1):
            gs.append([Ins(f"s_add_u32 m0, s{sK2}, {ROW[j]*8192}"), Ins(f"s_mov_b32 s{sBG}, {0 if OPT.get('hot2') else 16*896*ksb(j)}"),
                       Ins(f"buffer_load_dwordx4 v{vW64[0]}, {R(RW2)}, s{sBG} offen lds", f"w2_{j}")])
            gs.append([Ins(f"buffer_load_dwordx4 v{vW64[1]}, {R(RW2)}, s{sBG} offen offset:1024 lds", f"w2_{j}")])
        return gs

    def w2_read(j, dst, k):
        off = ROW[j] * 8192
        out = [Wait("vmtag", f"w2_{j}")]
        for jm in range(2):
            for u in range(2):
                out.append(Ins(f"ds_read_b64_tr_b16 {pr(dst[jm],2*u,k)}, v{vB4[off >> 16][jm]} offset:{(off & 0xffff)+u*1024}"))
        return out

    def w2_move(j0, j1):
        return [x for j in range(j0, j1) for x in w2_read(j, [8 * j, 8 * j + 4], "a")]
    we = OPT.get("we", 28)
    s5 = Prog()
    s5(f"s_lshl_b32 s{sC}, s{sRTf}, 15")
    s5(f"s_and_b32 s{sA}, s{sW}, 1")
    s5(f"s_lshl_b32 s{sA}, s{sA}, 14")
    s5(f"s_add_u32 s{sC}, s{sC}, s{sA}")
    s5(f"s_add_u32 s{sC}, s{sC}, {WS_OF}")
    for n_ in range(7):
        s5(f"s_mov_b32 s{TBL[n_]}, {n_*16384}")
    s5(f"s_lshl_b32 s{sB}, s{sCT}, 7")
    s5(f"s_lshr_b32 s{sWo2}, s{sW}, 1")
    s5(f"s_lshl_b32 s{sWo2}, s{sWo2}, 3")
    s5(f"s_and_b32 s{sW2src2}, s{sW}, 1")
    s5(f"s_add_u32 s{sWo2}, s{sWo2}, s{sW2src2}")
    s5(f"s_mul_i32 s{sW2src2}, s{sWo2}, {16*896}")
    s5(f"s_add_u32 s{sW2src2}, s{sW2src2}, s{sB}")
    s5(f"s_lshl_b32 s{sWo2}, s{sWo2}, 10")
    s5(f"v_add_u32 v{vW64[0]}, s{sW2src2}, v{vW64[0]}")
    s5(f"v_add_u32 v{vW64[1]}, s{sW2src2}, v{vW64[1]}")
    s5(f"v_lshrrev_b32 v{t0}, 2, v1")
    s5(f"v_add_u32 v{t0}, 12, v{t0}")
    s5(f"v_mul_u32_u24 v{t1}, 37, v{t0}")
    s5(f"v_lshrrev_b32 v{t1}, 8, v{t1}")
    s5(f"v_mul_u32_u24 v{t2}, 110, v{t1}")
    s5(f"v_lshlrev_b32 v{t0}, 4, v{t0}")
    s5(f"v_sub_u32 v{t0}, v{t0}, v{t2}")
    s5(f"v_and_b32 v{t1}, 3, v1")
    s5(f"v_lshl_add_u32 v{t0}, v{t0}, 4, v{t1}")
    s5(f"v_mul_u32_u24 v{t0}, 896, v{t0}")
    s5(f"s_and_b32 s{sA}, s{sRB64}, 3")
    s5(f"s_mul_i32 s{sA}, s{sA}, {4*896}")
    s5(f"s_add_u32 s{sA}, s{sA}, s{sW2src2}")
    s5(f"v_add_u32 v{vTch}, s{sA}, v{t0}")
    t2g = [Ins(f"buffer_load_dword a116, v{vTch}, {R(RW2)}, 0 offen")]
    t2pos = OPT.get("t2pos", 0)
    s5(f"v_xor_b32 v{t1}, 64, v{vAw}")
    for b_ in range(3):
        s5(f"s_add_u32 s{sA}, s{sK2}, {b_*65536}")
        s5(f"v_add_u32 v{vB4[b_][0]}, s{sA}, v{vAw}")
        s5(f"v_add_u32 v{vB4[b_][1]}, s{sA}, v{t1}")
    s5(f"s_lshr_b32 s{sA}, s{sW}, 1")
    s5(f"s_mul_i32 s{sA}, s{sA}, {224*128}")
    s5(f"v_add_u32 v{vAw}, s{sA}, v{vAw}")
    s5(f"v_mov_b32 v{vCs}, 0")
    s5(f"v_mov_b32 v{vCs+1}, 0")
    ra.release(base_mark)
    B = ra(64, 4)
    ACC = ra(32, 4)
    RD = ra(16, 4)
    vSt = ra(2, 2)
    XF = ra(16, 4)
    for j in range(8):
        s5(f"v_accvgpr_read_b32 v{XF+2*j+1}, a{A_XRES+j}")
    for q_ in range(2):
        for e_ in range(2):
            s5(f"v_permlane32_swap_b32 v{XF+2*(4*q_+e_)+1}, v{XF+2*(4*q_+2+e_)+1}")
    for j in range(8):
        s5(f"v_lshlrev_b32 v{XF+2*j}, 16, v{XF+2*j+1}")
        s5(f"v_and_b32 v{XF+2*j+1}, 0xffff0000, v{XF+2*j+1}")
    s5i = sprinkle(s5.items, w1r(wd, we), 56, hide=0)
    nb1 = len(s5i) * OPT.get("pb1", 60) // 100
    p.add(s5i[:nb1])
    spoll_issue(p, 1)
    p.add(s5i[nb1:])

    def colsum(im, buf):
        q = Prog()
        for c4 in range(0, 14, 4):
            a = buf + 16 * ((c4 >> 2) & 1)
            for s in range(min(4, 14 - c4)):
                for u in range(2):
                    q(f"ds_read_b64_tr_b16 {pr(a,4*s+2*u)}, v{vAw} offset:{(16*(c4+s)+8*u)*128}")
            if c4 > 0:
                a = buf + 16 * (((c4 >> 2) - 1) & 1)
                for j in range(16):
                    q(f"v_dot2c_f32_bf16 v{vCs+im}, v{a+j}, v{vOnes}")
        for j in range(8):
            q(f"v_dot2c_f32_bf16 v{vCs+im}, v{buf+16+j}, v{vOnes}")
        return q.items
    p.wait_vm("w10")
    p("s_barrier")
    stamp(p, "winB")
    spoll_check(p, 1, 16)
    stamp(p, "syncB")
    bgP2 = w1r(we, 28) + ([t2g] if t2pos == 1 else []) + w2g(0, 4) + ([t2g] if t2pos == 2 else [])

    ldo = []
    for k in range(16):
        ldo.append(([Ins(f"s_add_u32 s{sA}, s{sC}, {k*1024}")] if (k & 3) == 0 else []) +
                   [Ins(f"buffer_load_dwordx4 {q4(B+4*k)}, v{vL16}, {R(RWS)}, s{sA} offen offset:{(k&3)*1024} sc1")])
    CSB = ra(32, 4)
    p.add(flat(ldo[:6]))
    p.add(sprinkle(colsum(0, CSB), ldo[6:], 50, hide=0))
    p(f"v_add_u32 v{vAw}, {L_I[1]}, v{vAw}")
    q = Prog()
    q(f"v_mov_b32 v{vSt}, 0")
    q(f"v_mov_b32 v{vSt+1}, 0")
    q(f"buffer_store_dword v{vSt}, v{vEp}, {R(RDBG)}, 0 offen sc1")
    q(f"s_add_u32 s{sA}, s{sK4}, {L_EX2}")
    q(f"v_add_u32 v{t0}, s{sA}, v{vL16}")
    q(f"v_xor_b32 v{t1}, 4096, v{t0}")
    q(f"s_mul_i32 s{sA}, s{sRTf}, {28*1024}")
    q(f"s_lshl_b32 s{sB}, s{sTf}, 11")
    q(f"s_add_u32 s{sA}, s{sA}, s{sB}")
    q(f"s_add_u32 s{sA}, s{sA}, {WS_HF}")
    q(f"s_lshl_b32 s{sC}, s{sRTf}, 12")
    q(f"s_lshl_b32 s{sB}, s{sCT}, 9")
    q(f"s_add_u32 s{sC}, s{sC}, s{sB}")
    q(f"s_and_b32 s{sB}, s{sW}, 1")
    q(f"s_lshl_b32 s{sB}, s{sB}, 3")
    q(f"s_add_u32 s{sC}, s{sC}, s{sB}")
    q(f"s_add_u32 s{sC}, s{sC}, {WS_ST}")
    q(f"v_and_b32 v{t2}, 31, v1")
    q(f"v_lshlrev_b32 v{t2}, 4, v{t2}")
    q(f"v_lshl_add_u32 v{t2}, v{vHF}, 2, v{t2}")
    m = Prog()
    NDEF2 = OPT.get("ndef2", 5)
    for k in range(16):
        mfma(m, ACC + 16, WOF + 8 * k + 4, B + 4 * k, None if k == 0 else ACC + 16, ak="a")
        if k < 16 - NDEF2:
            mfma(m, ACC, WOF + 8 * k, B + 4 * k, XF if k == 0 else ACC, ak="a")
    o, rest = paced(m.items, bgP2, 2)
    assert not rest
    o, rest = weave(o, q.items, 24)
    p.add(o + rest)
    stamp(p, "p2mfma")
    for i_, k in enumerate(range(16 - NDEF2, 16)):
        mfma(p, ACC, WOF + 8 * k, B + 4 * k, ACC, ak="a")
        if i_ >= NDEF2 - 4:
            gg = i_ - (NDEF2 - 4)
            p(f"ds_write_b128 v{t0}, {q4(ACC+16+4*gg)} offset:{gg*1024}")
    p.barrier()
    for gg in range(4):
        p(f"ds_read_b128 {q4(RD+4*gg)}, v{t1} offset:{gg*1024}")
    for t in range(2):
        for j in range(8 * t, 8 * t + 8, 2):
            p(f"v_pk_add_f32 {pr(RD,j)}, {pr(RD,j)}, {pr(ACC,j)}")
        for j in range(8 * t, 8 * t + 8, 2):
            p(f"v_cvt_pk_bf16_f32 v{HRES+j//2}, v{RD+j}, v{RD+j+1}")
        p(f"buffer_store_dwordx4 {q4(HRES+4*t)}, v{vL16}, {R(RWS)}, s{sA} offen offset:{t*1024} sc1")
    for j in range(8):
        p(f"v_dot2c_f32_bf16 v{vSt}, v{HRES+j}, v{vOnes}")
        p(f"v_dot2c_f32_bf16 v{vSt+1}, v{HRES+j}, v{HRES+j}")
    p(f"v_permlane32_swap_b32 v{vSt}, v{vSt+1}")
    p(f"v_add_f32 v{vSt}, v{vSt}, v{vSt+1}")
    p(f"buffer_store_dword v{vSt}, v{t2}, {R(RWS)}, s{sC} offen sc1", tag="stC")
    stamp(p, "hstored")

    ra.release(base_mark)
    vAi = [ra() for _ in range(4)]
    vSo = [ra(), ra()]
    vK = ra(6, 2)
    YM = ra(4, 4)
    CM = ra(16, 4)
    ACC3 = ra(64, 4)
    AFR = ra(32, 4)
    G1 = ra(16, 4)
    STR = G1
    OB3 = ra(16, 4)
    CSP = OB3
    B2R = ra(8, 4)
    HA = 144
    p.add(w2_move(0, 4))
    p(f"v_and_b32 v{t0}, 31, v1")
    p(f"v_mov_b32 v{vAi[0]}, v{vAi0}")
    p(f"v_xor_b32 v{vAi[1]}, 64, v{vAi0}")
    p(f"v_add_u32 v{vAi[2]}, {L_I[1]}, v{vAi[0]}")
    p(f"v_add_u32 v{vAi[3]}, {L_I[1]}, v{vAi[1]}")
    p(f"v_lshlrev_b32 v{t0}, 4, v{t0}")
    p(f"v_lshl_add_u32 v{vSo[0]}, v{vHF}, 9, v{t0}")
    p(f"v_lshl_add_u32 v{vSo[1]}, v{vHF}, 31, v{t0}")
    for T in range(4):
        p(f"v_accvgpr_read_b32 v{CM+4*T+2}, a{A_B1+T}")
    for j in range(8):
        p(f"v_accvgpr_read_b32 v{B2R+j}, a{A_B2+j}")
    p.wait_lgkm0()
    nc1 = OPT.get("nc1", 4)
    w2b_ = w2g(4, 8)
    p.add(flat(w2b_[:nc1]))
    if t2pos == 3:
        p.add(t2g)
    publish(p, g, 2, "stC")
    stamp(p, "pubC")
    p.add(sprinkle(colsum(1, AFR), w2b_[nc1:], 50, hide=0))
    p(f"s_lshl_b32 s{sA}, s{sW}, 9")
    p(f"s_add_u32 s{sA}, s{sA}, {L_MISC}")
    p(f"v_lshl_add_u32 v{t1}, v1, 3, s{sA}")
    p(f"ds_write_b64 v{t1}, {pr(vCs)}")
    if OPT.get("pc_early", 1):
        spoll_issue(p, 2)
    for T in range(4):
        p(f"v_mov_b32 v{CM+4*T+3}, v{CM+4*T+2}")
        p(f"v_lshl_or_b32 v{CM+4*T+2}, v{CM+4*T+2}, 16, v{CM+4*T+2}")
    p(f"s_mul_i32 s{sC}, s{sRT3}, {28*1024}")
    p(f"s_add_u32 s{sC}, s{sC}, {WS_HF}")
    p(f"s_add_u32 s{sE}, s{sC}, {28*1024}")
    p(f"s_lshl_b32 s{sC2}, s{sR3}, 12")
    p(f"s_add_u32 s{sC2}, s{sC2}, s{sC}")
    p(f"s_lshl_b32 s{sD}, s{sRT3}, 12")
    p(f"s_add_u32 s{sD}, s{sD}, {WS_ST}")
    p(f"s_mul_i32 s{sH1a}, s{sRT3}, {112*1024}")
    p(f"s_lshl_b32 s{sA}, s{sFT}, 13")
    p(f"s_add_u32 s{sH1a}, s{sH1a}, s{sA}")
    p(f"s_add_u32 s{sH1a}, s{sH1a}, {WS_H1F}")
    p(f"s_add_u32 s{sH1b}, s{sH1a}, 4096")
    p(f"v_lshlrev_b32 v{t2}, 3, v1")
    p(f"v_add_u32 v{t2}, {L_MISC}, v{t2}")

    def trd(dst, T, ks, u):
        return Ins(f"ds_read_b64_tr_b16 {pr(dst)}, v{vAi[T]} offset:{(16*ks+8*u)*128}")

    def corr(T, first=False):
        q = Prog()
        mfma(q, ACC3 + 16 * T, CM + 4 * T, YM, None if first else ACC3 + 16 * T)
        return q.items

    def pass_parts(tiles, init):
        n = len(tiles)
        depth = 32 // (4 * n)
        pre = min(depth - 1, 3)

        def reads(ks):
            a = AFR + 4 * n * (ks % depth)
            return [trd(a + 4 * i + 2 * u, T, ks, u) for i, T in enumerate(tiles) for u in range(2)]
        head = [x for ks in range(pre) for x in reads(ks)]
        items = []
        for ks in range(28):
            nxt = reads(ks + pre) if ks + pre < 28 else []
            a = AFR + 4 * n * (ks % depth)
            for i, T in enumerate(tiles):
                acc = ACC3 + 16 * T
                cc = "0" if (ks == 0 and init) else q16(acc)
                items.append(Ins(f"v_mfma_f32_32x32x16_bf16 {q16(acc)}, {q4(a+4*i)}, a[{HA+4*ks}:{HA+4*ks+3}], {cc}"))
                items += nxt[2 * i:2 * i + 2]
        return head, items

    h1, b1_ = pass_parts([0, 1], True)
    p.add(h1)
    stamp(p, "cs1")
    if not OPT.get("pc_early", 1):
        spoll_issue(p, 2)
    p.barrier()
    spoll_check(p, 2, 14)
    stamp(p, "syncC")

    ldh = []
    for ks in range(28):
        q = Prog()
        q(f"buffer_load_dwordx4 a[{HA+4*ks}:{HA+4*ks+3}], v{vL16}, {R(RWS)}, s{sC2} offen offset:{(ks&3)*1024} sc1")
        if (ks & 3) == 3 and ks < 27:
            q(f"s_add_u32 s{sC2}, s{sC2}, 4096")
            q(f"s_cmp_eq_u32 s{sC2}, s{sE}")
            q(f"s_cselect_b32 s{sC2}, s{sC}, s{sC2}")
        ldh.append(q.items)
    NH0 = OPT.get("nh0", 14)
    p.add(flat(ldh[:4]))
    for n_ in range(4):
        p(f"buffer_load_dwordx4 {q4(STR+4*n_)}, v{vSo[n_ == 3]}, {R(RWS)}, s{sD} offen offset:{n_*1024} sc1")
    x = Prog()
    for w2 in range(4):
        x(f"ds_read_b64 {pr(CSP,2*w2)}, v{t2} offset:{w2*512}")
    x.add(w2_move(4, 8))
    for T in range(4):
        x(f"v_add_f32 v{CSP+8+T}, v{CSP+2*(T&1)+(T>>1)}, v{CSP+4+2*(T&1)+(T>>1)}")
    for T in range(4):
        split_pair(x, CM + 4 * T, CSP + 8 + T, t1)
        x(f"v_mov_b32 v{CM+4*T+1}, v{CM+4*T}")
    p.add(sprinkle(x.items, ldh[4:NH0], 20, hide=0))
    st = Prog()
    for o_ in range(2):
        for n_ in range(4):
            st(f"v_add_f32 v{STR+4*n_+o_}, v{STR+4*n_+o_}, v{STR+4*n_+2+o_}")
        st(f"v_add_f32 v{STR+o_}, v{STR+o_}, v{STR+4+o_}")
        st(f"v_add_f32 v{STR+8+o_}, v{STR+8+o_}, v{STR+12+o_}")
        st(f"v_add_f32 v{STR+o_}, v{STR+o_}, v{STR+8+o_}")
    xhalf(st, "v_add_f32", STR, t0)
    xhalf(st, "v_add_f32", STR + 1, t1)
    st(f"v_mul_f32 v{STR}, {f32(-1.0/D)}, v{STR}")
    split_dup(st, YM, YM + 1, STR, t0)
    st(f"v_mul_f32 v{t2}, {f32(1.0/D)}, v{STR+1}")
    st(f"v_fma_f32 v{t2}, -v{STR}, v{STR}, v{t2}")
    st(f"v_max_f32 v{t2}, 0, v{t2}")
    st(f"v_add_f32 v{t3}, {f32(1e-5)}, v{t2}")
    st(f"v_fmac_f32 v{t2}, {f32(1e-5)}, v{t3}")
    st(f"v_rsq_f32 v{t3}, v{t2}")
    st(f"v_cvt_f32_u32 v{t0}, v{vHF}")
    st(f"v_mul_f32 v{vK+4}, v{t2}, v{t3}")
    K0 = math.sqrt(2.0 / math.pi)
    c1 = -2.0 * K0 * LOG2E
    c2 = c1 * 0.044715
    st(f"v_fma_f32 v{t0}, -v{t0}, v{vK+4}, v{vK+4}")
    st(f"v_cvt_pk_bf16_f32 v{t1}, v{t0}, v{t0}")
    st(f"v_and_b32 v{t1}, 0xffff0000, v{t1}")
    st(f"v_sub_f32 v{t1}, v{t0}, v{t1}")
    st(f"v_cvt_pk_bf16_f32 v{YM+2}, v{t0}, v{t1}")
    st(f"v_and_b32 v{t2}, 0xffff0000, v{YM+2}")
    st(f"v_sub_f32 v{t1}, v{t1}, v{t2}")
    st(f"v_cvt_pk_bf16_f32 v{YM+3}, v{t1}, v{t1}")
    st(f"v_mul_f32 v{vK}, {f32(c1)}, v{t3}")
    st(f"v_mul_f32 v{t2}, v{t3}, v{t3}")
    st(f"v_mul_f32 v{t2}, v{t2}, v{t3}")
    st(f"v_mul_f32 v{vK+2}, {f32(c2)}, v{t2}")
    vH1 = vW1
    st(f"s_mul_i32 s{sA}, s{sRTf}, {112*1024}")
    st(f"s_add_u32 s{sA}, s{sA}, {WS_H1F}")
    st(f"s_xor_b32 s{sD2}, s{sRTf}, 1")
    st(f"s_mul_i32 s{sD2}, s{sD2}, {112*1024}")
    st(f"s_add_u32 s{sD2}, s{sD2}, {WS_H1F}")
    st(f"v_add_u32 v{vH1[0]}, s{sA}, v{vL16}")
    st(f"v_add_u32 v{vH1[1]}, s{sD2}, v{vL16}")
    st(f"v_add_u32 v{vH1[0]}, s{sWo2}, v{vH1[0]}")
    st(f"v_add_u32 v{vH1[1]}, s{sWo2}, v{vH1[1]}")
    st(f"v_add_u32 v{vH1[2]}, 4096, v{vH1[0]}")
    st(f"v_add_u32 v{vH1[3]}, 4096, v{vH1[1]}")
    nl = 28 - NH0
    part1 = b1_[:6 * nl]
    o1 = []
    for i_ in range(nl):
        o1 += part1[6 * i_:6 * i_ + 3] + [ldh[NH0 + i_]] + part1[6 * i_ + 3:6 * i_ + 6]
    o, rest = weave(o1, st.items, 24)
    p.add(o)
    o, rest = weave(b1_[6 * nl:-12], rest + ([t2g] if t2pos == 4 else []) + w2g(8, 12), 28)
    p.add(o + rest)
    p.add(corr(0) + corr(1))
    p.add(b1_[-12:])
    h2, b2_ = pass_parts([2], False)
    h3, b3_ = pass_parts([3], False)
    p.add(corr(2, True))
    p.add(h2)
    p.add(corr(3, True))
    p("s_barrier")
    stamp(p, "p3pass1")

    def gelu(T):
        q = Prog()
        acc = ACC3 + 16 * T
        ob = OB3 + 8 * (T & 1)
        for half in range(2):
            js = range(8 * half, 8 * half + 8)
            for j in js[::2]:
                q(f"v_pk_mul_f32 {pr(G1,j)}, {pr(acc,j)}, {pr(acc,j)}")
            for j in js[::2]:
                q(f"v_pk_fma_f32 {pr(G1,j)}, {pr(G1,j)}, {pr(vK+2)}, {pr(vK)} op_sel_hi:[1,0,0]")
            for j in js[::2]:
                q(f"v_pk_mul_f32 {pr(G1,j)}, {pr(G1,j)}, {pr(acc,j)}")
            for j in js:
                q(f"v_exp_f32 v{G1+j}, v{G1+j}")
            for j in js[::2]:
                q(f"v_pk_fma_f32 {pr(G1,j)}, {pr(G1,j)}, {pr(vK+4)}, {pr(vK+4)} op_sel_hi:[1,0,0]")
            for j in js:
                q(f"v_rcp_f32 v{G1+j}, v{G1+j}")
            for j in js[::2]:
                q(f"v_pk_mul_f32 {pr(G1,j)}, {pr(G1,j)}, {pr(acc,j)}")
            for j in js[::2]:
                q(f"v_cvt_pk_bf16_f32 v{ob+j//2}, v{G1+j}, v{G1+j+1}")
            q(f"buffer_store_dwordx4 {q4(ob+4*half)}, v{vL16}, {R(RWS)}, s{sH1a if T < 2 else sH1b} offen offset:{((2*T+half)&3)*1024} sc1", tag=f"stD{T}")
        return q.items

    def pub(sync, tag):
        q = Prog()
        q.wait_vm(tag)
        q("s_barrier")
        flag(q, g, sync)
        return q.items

    def bslot(j):
        return 64 + 8 * j if j < 24 else 64 + 8 * (j - 24)

    def ldB(j0, j1):
        gs = []
        for j in range(j0, j1):
            for jn in range(2):
                r = bslot(j) + 4 * jn
                gs.append([Ins(f"buffer_load_dwordx4 a[{r}:{r+3}], v{vH1[jn + (2 if j >= 14 else 0)]}, {R(RWS)}, s{TBL[j % 7]} offen offset:{2048 * ((j // 7) & 1)} sc1")])
        return gs

    def mf_split(items, n):
        idx = [i for i, it in enumerate(items) if isinstance(it, Ins) and it.kind == "mfma"]
        return items[:idx[n]], items[idx[n]:]

    wA = w2g(12, 21)
    ng01 = OPT.get("ng01", 4)
    gi = sprinkle(gelu(0) + gelu(1), wA[:ng01], OPT.get("sg01", 100), start=OPT.get("st01", 20), hide=0)
    p.add(gi)
    p.add(pub(3, "stD0"))
    stamp(p, "g01")
    o, rest = paced(b2_ + h3, wA[ng01:], 2, OPT.get("f2", 0))
    oa, ob_ = mf_split(o, OPT.get("pd1", 24))
    p.add(oa + pub(4, "stD1") + ob_)
    stamp(p, "p3pass2")
    g2 = sprinkle(gelu(2), rest, 64, hide=0)
    pi0 = len(g2) * OPT.get("pi0", 0) // 100
    p.add(g2[:pi0])
    poll_issue(p, g, 3, 14)
    p.add(g2[pi0:])
    stamp(p, "g2")
    hb = Prog()
    HB = ACC3
    for j in range(8):
        hb(f"v_lshlrev_b32 v{t0}, 16, v{HRES+j}")
        hb(f"v_and_b32 v{t1}, 0xffff0000, v{HRES+j}")
        hb(f"v_lshlrev_b32 v{t2}, 16, v{B2R+j}")
        hb(f"v_and_b32 v{HB+2*j+1}, 0xffff0000, v{B2R+j}")
        hb(f"v_add_f32 v{HB+2*j}, v{t0}, v{t2}")
        hb(f"v_add_f32 v{HB+2*j+1}, v{t1}, v{HB+2*j+1}")
    def pissue(sync):
        q = Prog()
        poll_issue(q, g, sync, 14)
        return q.items

    def pcheck(sync, nm):
        q = Prog()
        poll_check(q, g, sync)
        stamp(q, nm)
        return q.items
    pc0 = OPT.get("pc0", 2)
    s0, s1 = mf_split(b3_, pc0)
    p.add(s0 + pcheck(3, "syncD0"))
    L0, L1, L2, L3 = ldB(0, 7), ldB(7, 14), ldB(14, 21), ldB(21, 28)
    lead = OPT.get("lead", 6)
    vq = L0[:14 - lead] + [pissue(4)] + L0[14 - lead:] + [pcheck(4, "syncD1") + L1[0]] + L1[1:6]
    nb3 = OPT.get("nb3", 0)
    p.add(flat(vq[:nb3]))
    o, rest1 = paced(s1, vq[nb3:], 2, 1)
    o, rest = weave(o, hb.items, 24)
    oa, ob_ = mf_split(o, OPT.get("pd2", 22) - pc0)
    p.add(oa + pub(5, "stD2") + ob_ + rest)
    p("s_barrier")
    stamp(p, "p3pass3")
    wC = w2g(21, 28)
    nC1 = OPT.get("nC1", 4)
    mid = L1[6:] + wC[:nC1]
    bgq = rest1 + mid[:max(0, len(mid) - lead)] + [pissue(5)] + mid[max(0, len(mid) - lead):] + [pcheck(5, "syncD2") + L2[0]] + L2[1:] + wC[nC1:]
    ng3 = OPT.get("ng3", 8)
    p.add(sprinkle(gelu(3), bgq[:ng3], 64, hide=0))
    bgq = bgq[ng3:]
    stamp(p, "h1stored")

    AF4 = AFR
    ACC4 = ACC3
    AKEEP = [CM, CM + 4, CM + 8, CM + 12, B2R, B2R + 4, YM]
    vOo = vAi[0]
    RD4 = [AFR, AFR + 16, G1]
    OB4 = OB3

    def a_regs(j):
        if j < 8:
            return "a", 8 * j, 8 * j + 4
        a = AF4 + 8 * (j & 3)
        return "v", (AKEEP[j - 21] if j >= 21 else a), a + 4

    pd3, pi3, pc3 = OPT.get("pd3", 5), OPT.get("pi3", 12), OPT.get("pc3", 16)
    for j in range(28):
        if j == pd3:
            p.add(pub(6, "stD3"))
        if j == pi3:
            poll_issue(p, g, 6, 14)
        if j == pc3:
            p.add(flat(bgq))
            p.add(pcheck(6, "syncD3"))
            bgq = list(L3)
        if j == 21:
            p("s_barrier")
        kind, a0, a1 = a_regs(j)
        rd = []
        if 8 <= j + 3 < 28:
            _, r0, r1 = a_regs(j + 3)
            rd = w2_read(j + 3, [r0, r1], "v")
        k = 0
        for jn in range(2):
            for jm in range(2):
                if j >= 21 and jm == 0 and jn == 0:
                    continue
                acc = ACC4 + 16 * (jm + 2 * jn)
                cin = acc if (j > 0 or (jm == 0 and jn == 0)) else None
                mfma(p, acc, [a0, a1][jm], bslot(j) + 4 * jn, cin, ak=kind, bk="a")
                take = (0, 2) if j < pc3 else (0, 1, 2)
                if OPT.get("p4take", 2) == 3:
                    take = (0, 1, 2)
                if k in take and bgq:
                    p.add(bgq.pop(0))
                if jm == 1 and jn == 1:
                    p.add(rd)
                k += 1
        if j in (13, 20):
            stamp(p, f"p4j{j}")
    assert not bgq
    stamp(p, "p4mfma")
    wr = Prog()
    for j in range(1, 4):
        wr(f"s_xor_b32 s{sA}, s{sW}, {j}")
        wr(f"s_mul_i32 s{sA}, s{sA}, 12288")
        wr(f"v_add_u32 v{[t0, t1, t2][j-1]}, s{sA}, v{vL16}")
    wr(f"s_mul_i32 s{sA}, s{sW}, 12288")
    wr(f"v_add_u32 v{t3}, s{sA}, v{vL16}")
    for j in range(1, 4):
        for gg in range(4):
            wr(f"ds_write_b128 v{[t0, t1, t2][j-1]}, {q4(ACC4+16*j+4*gg)} offset:{(j-1)*4096+gg*1024}")
    m = Prog()
    for j in range(21, 28):
        mfma(m, ACC4, AKEEP[j - 21], bslot(j), ACC4, bk="a")
    wi = wr.items
    p.add(m.items[:1] + wi[:6] + m.items[1:2] + wi[6:11])
    for i_ in range(5):
        p.add(m.items[2 + i_:3 + i_] + wi[11 + i_:12 + i_])
    p.add(wi[16:])
    p(f"v_and_b32 v{t0}, 31, v1")
    p(f"v_mul_u32_u24 v{t0}, 896, v{t0}")
    p(f"v_lshl_add_u32 v{vOo}, v{vHF}, 4, v{t0}")
    p(f"s_mul_i32 s{sA}, s{sRTf}, {32*896}")
    p(f"s_lshl_b32 s{sB}, s{sTf}, 6")
    p(f"s_add_u32 s{sA}, s{sA}, s{sB}")
    p.barrier()
    stamp(p, "p4ex")
    for half in range(2):
        for gg in range(2 * half, 2 * half + 2):
            for j in range(3):
                p(f"ds_read_b128 {q4(RD4[j]+4*gg)}, v{t3} offset:{j*4096+gg*1024}")
    for half in range(2):
        js = range(8 * half, 8 * half + 8, 2)
        for j in js:
            p(f"v_pk_add_f32 {pr(ACC4,j)}, {pr(ACC4,j)}, {pr(RD4[0],j)}")
            p(f"v_pk_add_f32 {pr(RD4[1],j)}, {pr(RD4[1],j)}, {pr(RD4[2],j)}")
        for j in js:
            p(f"v_pk_add_f32 {pr(ACC4,j)}, {pr(ACC4,j)}, {pr(RD4[1],j)}")
        for j in js:
            p(f"v_cvt_pk_bf16_f32 v{OB4+j//2}, v{ACC4+j}, v{ACC4+j+1}")
        p(f"v_permlane32_swap_b32 v{OB4+4*half}, v{OB4+4*half+2}")
        p(f"v_permlane32_swap_b32 v{OB4+4*half+1}, v{OB4+4*half+3}")
        p(f"buffer_store_dwordx4 {q4(OB4+4*half)}, v{vOo}, {R(ROUT)}, s{sA} offen offset:{32*half}")
    p("s_branch L_fin")
    p("L_idle:")
    p(f"s_sub_u32 s{sA}, s{sI}, 28")
    p(f"s_lshl_b32 s{sA}, s{sA}, 2")
    p(f"s_add_u32 s{sA}, s{sA}, s{sW}")
    idle = OPT.get("idle", 2)
    if idle == 1:
        p(f"s_lshl_b32 s{sA}, s{sA}, 13")
        p(f"v_lshl_add_u32 v{vTch}, v1, 7, s{sA}")
        for k in range(13):
            p(f"s_mov_b32 s{sA}, {k << 17}")
            p(f"buffer_load_dword a116, v{vTch}, {R(RW2)}, s{sA} offen")
    elif idle == 2:
        p(f"s_mul_i32 s{sA}, s{sA}, {128*896}")
        p(f"v_lshl_add_u32 v{vTch}, v1, 7, s{sA}")
        for k in range(OPT.get("nidle", 14)):
            p(f"s_mov_b32 s{sA}, {k*8192}")
            p(f"buffer_load_dword a116, v{vTch}, {R(RW2)}, s{sA} offen")
    p("L_fin:")
    p("s_waitcnt vmcnt(0)")
    stamp_flush(p)
    if PROBE:
        stamp(p, "end")
        p.raw("""
    v_readlane_b32 s12, v255, 1
    s_nop 4
    s_add_u32 s12, s12, 4000
L_pad:
    s_sleep 2
    s_memrealtime s[100:101]
    s_waitcnt lgkmcnt(0)
    s_sub_u32 s13, s100, s12
    s_cmp_lt_i32 s13, 0
    s_cbranch_scc1 L_pad
""")
    body = finalize(flat(p.items), name)
    txt = [f".globl {name}_kernel", ".p2align 8", f".type {name}_kernel,@function", f"{name}_kernel:"]
    txt += body
    txt += ["    s_endpgm"] + SLOW + ["L_end:", "    s_endpgm"]
    kd = f""".amdhsa_kernel {name}_kernel
  .amdhsa_next_free_vgpr 512
  .amdhsa_next_free_sgpr 102
  .amdhsa_accum_offset 256
  .amdhsa_group_segment_fixed_size 0
  .amdhsa_kernarg_size 96
  .amdhsa_user_sgpr_count 2
  .amdhsa_user_sgpr_kernarg_segment_ptr 1
  .amdhsa_system_sgpr_workgroup_id_x 1
.end_amdhsa_kernel"""
    return "\n".join(txt), kd


def main(out):
    body, kd = gen()
    hdr = open("cdna_kernels/" + NAME + ".s.ref").read().split("; Override launch")[0]
    txt = hdr
    txt += f"; @launch grid=(256,1,1) block=(256,1,1) lds={LDS_BYTES}\n"
    if DIAG:
        txt += "; stamps: " + ",".join(STNAMES) + "\n"
    txt += '.amdgcn_target "amdgcn-amd-amdhsa--gfx950"\n.text\n'
    txt += body + "\n"
    txt += '.section .rodata,"a"\n.p2align 6\n' + kd + "\n"
    open(out, "w").write(txt)


if __name__ == "__main__":
    for a in sys.argv[2:]:
        if a == "diag":
            DIAG = True
        elif a.startswith("probe="):
            PROBE = a[6:]
        elif "=" in a:
            k, v = a.split("=")
            OPT[k] = int(v)
    main(sys.argv[1])
```

```python
import sys, math, struct
from dsl import *

NAME = "sequential_preLN__linear_kernel_hedgehog__mixer_channel_mlp__prompt"
S, D, H, DH, F = 2048, 448, 16, 28, 1792

WS_KVP = 0
WS_FLAG = 1 << 20
WS_ST = (1 << 20) + (512 << 10)
WS_OF = 2 << 20
WS_HF = 4 << 20
WS_H1F = 6 << 20
H1S = 64 * 28672
WS_TS = 32 << 20
WS_SIZE = 256 << 20

LOG2E = 1.4426950408889634
DIAG = False
OPT = {}


def f32(x):
    return "0x%08x" % struct.unpack("<I", struct.pack("<f", x))[0]


SX, SWQKV, SWPHI, SWO, SBX, SW1, SB1, SW2, SB2, SOUT, SDBG, SWS = [16 + 2 * i for i in range(12)]
RX, RWQKV, RWPHI, RWO, RB1, RWS, RW1, RW2, RB2, ROUT, RDBG = 40, 44, 48, 52, 56, 60, 64, 68, 72, 76, 80
SPOLL = 44
sI, sW = 3, 4
sH, sRB, sRT = 5, 6, 7
sCT, sRB64 = 8, 9
sFT, sRB3 = 10, 11
sA, sB, sC, sD = 12, 13, 14, 15
sK1, sK2, sWOl, sRTf, sTf, sRT3 = 16, 17, 18, 19, 20, 21
sTag = 22
sW2src, sWOsrc, sK4, sT1 = 24, 25, 26, 27
sPo, sW2src2, sWo2, sC2, sD2, sH1a, sH1b = 28, 29, 30, 31, 32, 33, 34
sW1a, sW1c = 35, 36
sFo = [37, 38, 39, 24]
sPi = [27, 28, 31]
sCx, sCw, sRot, sSh, sXRb, sXbeg, sXend, sWbeg = 84, 85, 86, 87, 88, 89, 90, 91
TBL = [84, 85, 86, 87, 88, 89, 90, 91, 93, 94, 95, 96, 97, 98]
sBG, sE = 92, 99
sCw2, sWend = 93, 94
sMk = 96

L_WK, L_WV, L_WQ, L_XR, L_WPHI, L_MISC = 0, 28672, 57344, 86016, 151552, 155648
L_PK, L_VF, L_WO = 0, 155648, 86016
L_I = [0, 57344]
L_EX2 = 147456
L_CSX = 147456
LDS_BYTES = 163840
A_XRES, A_B2, A_B1 = 96, 104, 112


def R(r):
    return f"s[{r}:{r+3}]"


def srd(p, d, src, nbytes):
    p(f"s_mov_b32 s{d}, s{src}")
    p(f"s_mov_b32 s{d+1}, s{src+1}")
    p(f"s_mov_b32 s{d+2}, {nbytes}")
    p(f"s_mov_b32 s{d+3}, 0x00020000")


NST = [0]
STNAMES = []


PROBE = None


def stamp(p, label=""):
    if PROBE and label == PROBE:
        p("s_memrealtime s[100:101]")
        p("v_writelane_b32 v255, s100, 1")
    if not DIAG:
        return
    if OPT.get("cnt") and label not in ("start", "end"):
        if label.startswith("sync"):
            i = NST[0]
            NST[0] += 1
            STNAMES.append(label)
            p(f"v_writelane_b32 v255, s{sB}, {i}")
        return
    i = NST[0]
    NST[0] += 1
    STNAMES.append(label)
    assert i < 64
    p("s_memtime s[100:101]" if OPT.get("cyc") else "s_memrealtime s[100:101]")
    p(f"v_writelane_b32 v255, s100, {i}")


def stamp_flush(p):
    if not DIAG:
        return
    stamp(p, "end")
    p(f"s_lshl_b32 s{sA}, s2, 2")
    p(f"s_add_u32 s{sA}, s{sA}, s{sW}")
    p(f"s_lshl_b32 s{sA}, s{sA}, 8")
    p(f"s_add_u32 s{sA}, s{sA}, {WS_TS}")
    p("v_lshlrev_b32 v2, 2, v1")
    p(f"buffer_store_dword v255, v2, {R(RWS)}, s{sA} offen")


def xhalf(p, op, a, t):
    p(f"v_mov_b32 v{t}, v{a}")
    p(f"v_permlane32_swap_b32 v{a}, v{t}")
    p(f"{op} v{a}, v{a}, v{t}")


def pr(r, j=0, k="v"):
    return f"{k}[{r+j}:{r+j+1}]"


def q4(r, k="v"):
    return f"{k}[{r}:{r+3}]"


def q16(r):
    return f"v[{r}:{r+15}]"


def mfma(p, d, a, b, c=None, ak="v", bk="v"):
    cc = "0" if c is None else q16(c)
    p(f"v_mfma_f32_32x32x16_bf16 {q16(d)}, {q4(a, ak)}, {q4(b, bk)}, {cc}")


def dma_group(voff, srdreg, sbase, soff, slds, ldsoff, tag):
    return [Ins(f"s_add_u32 m0, s{slds}, {ldsoff}"),
            Ins(f"s_add_u32 s{sBG}, s{sbase}, {soff}"),
            Ins(f"buffer_load_dwordx4 v{voff}, {R(srdreg)}, s{sBG} offen lds", tag)]


def dma_run(voffs, srdreg, sbase, soff0, sstep, slds, lds0, a, b, tag):
    gs = []
    for j in range(a, b):
        grp = []
        if (j & 3) == 0 or j == a:
            grp.append(Ins(f"s_add_u32 m0, s{slds}, {lds0 + (j & ~3)*1024}"))
            grp.append(Ins(f"s_add_u32 s{sBG}, s{sbase}, {soff0 + (j & ~3)*sstep}"))
        grp.append(Ins(f"buffer_load_dwordx4 v{voffs[j & 3]}, {R(srdreg)}, s{sBG} offen offset:{(j & 3)*1024} lds", tag))
        gs.append(grp)
    return gs


def weave(mf, fill, budget=24):
    out, pos = [], 0
    n = len(mf)
    cost = lambda f: sum(est_cost(x) for x in f) if isinstance(f, list) else est_cost(f)
    spent = 0
    for i, it in enumerate(mf):
        out.append(it)
        if isinstance(it, Ins) and it.kind == "mfma":
            spent = 0
        else:
            spent += cost(it)
        nxt_is_mfma = (i + 1 == n) or (isinstance(mf[i + 1], Ins) and mf[i + 1].kind == "mfma")
        if nxt_is_mfma:
            b = budget - spent
            took = False
            while pos < len(fill) and (cost(fill[pos]) <= b or (not took and spent == 0)):
                b -= cost(fill[pos])
                out.append(fill[pos])
                pos += 1
                took = True
    return out, fill[pos:]


def paced(mf, groups, every, first=0):
    out, k, n = [], 0, 0
    for i, it in enumerate(mf):
        out.append(it)
        last = (i + 1 == len(mf)) or (isinstance(mf[i + 1], Ins) and mf[i + 1].kind == "mfma")
        if last:
            if n >= first and (n - first) % every == 0 and k < len(groups):
                out.append(groups[k])
                k += 1
            n += 1
    return out, groups[k:]


def split_pair(p, dst, x, t):
    p(f"v_cvt_pk_bf16_f32 v{t}, v{x}, v{x}")
    p(f"v_and_b32 v{t}, 0xffff0000, v{t}")
    p(f"v_sub_f32 v{t}, v{x}, v{t}")
    p(f"v_cvt_pk_bf16_f32 v{dst}, v{x}, v{t}")


def split_dup(p, dhi, dlo, x, t):
    p(f"v_cvt_pk_bf16_f32 v{dhi}, v{x}, v{x}")
    p(f"v_and_b32 v{t}, 0xffff0000, v{dhi}")
    p(f"v_sub_f32 v{t}, v{x}, v{t}")
    p(f"v_cvt_pk_bf16_f32 v{dlo}, v{t}, v{t}")


def masked(lo, hi, lines):
    q = Prog()
    q(f"s_mov_b32 exec_lo, {lo}")
    q(f"s_mov_b32 exec_hi, {hi}")
    for l in lines:
        q(l)
    q("s_mov_b64 exec, -1")
    return q.items


def sm_parts(P, E, OUT, vsc, T):
    mx, mn, t0, t1 = T, T + 1, T + 2, T + 4
    r = {}
    q = Prog()
    q(f"v_max3_f32 v{mx}, v{P}, v{P+1}, v{P+2}")
    q(f"v_min3_f32 v{mn}, v{P}, v{P+1}, v{P+2}")
    for j in range(3, 13, 2):
        q(f"v_max3_f32 v{mx}, v{mx}, v{P+j}, v{P+j+1}")
        q(f"v_min3_f32 v{mn}, v{mn}, v{P+j}, v{P+j+1}")
    q(f"v_max_f32 v{mx}, v{mx}, v{P+13}")
    q(f"v_max_f32 v{mn}, -v{mn}, -v{P+13}")
    q(f"v_mov_b32 v{OUT+7}, 0")
    q(f"v_mov_b32 v{OUT+15}, 0")
    q(f"v_permlane32_swap_b32 v{mx}, v{mn}")
    q(f"v_max_f32 v{mx}, v{mx}, v{mn}")
    q(f"v_mul_f32 v{t0}, v{mx}, v{vsc}")
    q(f"v_mul_f32 v{t1}, v{mx}, v{vsc}")
    q("s_nop 1")
    q(f"v_permlane32_swap_b32 v{t0}, v{t1}")
    r["max"] = q.items
    q = Prog()
    for j in range(0, 14, 2):
        q(f"v_pk_fma_f32 {pr(E,j)}, {pr(P,j)}, {pr(vsc)}, {pr(t0)} op_sel_hi:[1,0,0] neg_lo:[0,0,1] neg_hi:[0,0,1]")
        q(f"v_pk_fma_f32 {pr(E+14,j)}, {pr(P,j)}, {pr(vsc)}, {pr(t1)} op_sel_hi:[1,0,0] neg_lo:[1,0,1] neg_hi:[1,0,1]")
    r["fma"] = q.items
    r["exp"] = [Ins(f"v_exp_f32 v{E+j}, v{E+j}") for j in range(28)]
    q = Prog()
    q(f"v_pk_add_f32 {pr(t0)}, {pr(E)}, {pr(E,2)}")
    q(f"v_pk_add_f32 {pr(t1)}, {pr(E+14)}, {pr(E+14,2)}")
    for j in range(4, 14, 2):
        q(f"v_pk_add_f32 {pr(t0)}, {pr(t0)}, {pr(E,j)}")
        q(f"v_pk_add_f32 {pr(t1)}, {pr(t1)}, {pr(E+14,j)}")
    r["add"] = q.items
    q = Prog()
    q(f"v_add_f32 v{mx}, v{t0}, v{t0+1}")
    q(f"v_add_f32 v{mn}, v{t1}, v{t1+1}")
    q("s_nop 1")
    q(f"v_permlane32_swap_b32 v{mx}, v{mn}")
    q(f"v_add_f32 v{mx}, v{mx}, v{mn}")
    q(f"v_rcp_f32 v{t0}, v{mx}")
    q(f"v_rcp_f32 v{t1}, v{mx}")
    q("s_nop 1")
    q(f"v_permlane32_swap_b32 v{t0}, v{t1}")
    r["rcp"] = q.items
    r["mul"] = [Ins(f"v_pk_mul_f32 {pr(E+14*sg,j)}, {pr(E+14*sg,j)}, {pr([t0, t1][sg])} op_sel_hi:[1,0]") for sg in range(2) for j in range(0, 14, 2)]
    r["cvt"] = [Ins(f"v_cvt_pk_bf16_f32 v{OUT+8*sg+j//2}, v{E+14*sg+j}, v{E+14*sg+j+1}") for sg in range(2) for j in range(0, 14, 2)]
    return r


class G:
    pass


def flag(p, g, sync):
    if sync > 3:
        p(f"s_add_u32 s{sFo[3]}, s{sFo[3]}, 32768")
    p(f"buffer_store_dword v{g.vTag}, v{g.vFl}, {R(RWS)}, s{sFo[min(sync, 3)]} offen sc1")


def publish(p, g, sync, store_tag):
    p.wait_vm(store_tag)
    p.barrier()
    flag(p, g, sync)


SLOW = []


def _scmp(n):
    np_ = n // 2
    x = "\n".join(f"s_xor_b64 s[{SPOLL+2*k}:{SPOLL+2*k+1}], s[{SPOLL+2*k}:{SPOLL+2*k+1}], s[{sTag}:{sTag+1}]" for k in range(np_))
    o = "\n".join(f"s_or_b64 s[{SPOLL}:{SPOLL+1}], s[{SPOLL}:{SPOLL+1}], s[{SPOLL+2*k}:{SPOLL+2*k+1}]" for k in range(1, np_))
    return x + "\n" + o


def spoll_issue(p, sync):
    p(f"s_load_dwordx16 s[{SPOLL}:{SPOLL+15}], s[0:1], s{sPi[sync]} glc")


def spoll_check(p, sync, n):
    p(f"s_mov_b32 s{sB}, 0")
    p.wait_lgkm0()
    p.raw(f"""
{_scmp(n)}
    s_cbranch_scc1 L_sp{sync}
L_sp{sync}_done:
""", pad=False)
    SLOW.append(f"""
L_sp{sync}:
    s_load_dwordx16 s[{SPOLL}:{SPOLL+15}], s[0:1], s{sPi[sync]} glc
    s_add_u32 s{sB}, s{sB}, 1
    s_waitcnt lgkmcnt(0)
{_scmp(n)}
    s_cbranch_scc0 L_sp{sync}_done
    s_cmp_lt_u32 s{sB}, 0x10000
    s_cbranch_scc1 L_sp{sync}
    s_branch L_sp{sync}_done
""")


def poll_issue(p, g, sync, n):
    p(f"s_add_u32 s{sPi[1]}, s{sPi[1]}, {65536 if sync == 3 else 32768}")
    p(f"buffer_load_dword v{g.vPT}, v{g.vPo}, {R(RWS)}, s{sPi[1]} offen sc1")


def poll_check(p, g, sync):
    t = g.vPT
    p.raw(f"""
    v_cmp_ne_u32 vcc, v{t}, v{g.vTag}
    s_mov_b32 s{sB}, 0
    s_cbranch_vccnz L_poll{sync}
L_poll{sync}_done:
""", uses=[f"v{g.vPo}", f"v{g.vTag}", f"v{t}"], defs=[f"v{t}"], pad=False)
    SLOW.append(f"""
L_poll{sync}:
    buffer_load_dword v{t}, v{g.vPo}, {R(RWS)}, s{sPi[1]} offen sc1
    s_waitcnt vmcnt(0)
    v_cmp_ne_u32 vcc, v{t}, v{g.vTag}
    s_add_u32 s{sB}, s{sB}, 1
    s_cbranch_vccz L_poll{sync}_done
    s_cmp_lt_u32 s{sB}, 0x10000
    s_cbranch_scc1 L_poll{sync}
    s_branch L_poll{sync}_done
""")


def mod7(q, r, tmp):
    q.items.append([Ins(f"s_sub_u32 s{tmp}, s{r}, 7"), Ins(f"s_cmp_ge_u32 s{r}, 7"), Ins(f"s_cselect_b32 s{r}, s{tmp}, s{r}")])


def gen():
    p = Prog()
    g = G()
    name = NAME
    p("s_cmp_ge_u32 s2, 256")
    p(f"s_cbranch_scc1 L_end")
    if PROBE:
        p("s_memrealtime s[100:101]")
        p("v_writelane_b32 v255, s100, 0")
        p("v_writelane_b32 v255, s100, 1")
    p("s_load_dwordx16 s[16:31], s[0:1], 0")
    p("s_load_dwordx8 s[32:39], s[0:1], 64")
    p("s_getpc_b64 s[96:97]")
    p("L_pc:")
    p("v_lshrrev_b32 v1, 6, v0")
    p(f"s_lshr_b32 s{sI}, s2, 3")
    p(f"v_readfirstlane_b32 s{sW}, v1")
    p("v_and_b32 v1, 63, v0")
    ra = RegAlloc(2, 255)
    t0, t1, t2, t3 = ra(), ra(), ra(), ra()
    vL16 = ra()
    g.vTag, g.vPT, g.vPo = ra(), ra(), ra()
    g.vFl = ra()
    vR, vMC, vHF, vOnes = ra(), ra(), ra(), ra()
    vW64 = [ra() for _ in range(4)]
    vW1 = [ra() for _ in range(4)]
    vEp, vTch = ra(), ra()
    PHQ = ra(16, 4)
    HRES = PHQ + 8
    p1_mark = ra.mark()
    vCs = ra(2, 2)
    vAw, vAi0 = ra(), ra()
    vB4 = [[ra(), ra()] for _ in range(3)]
    base_mark = ra.mark()
    assert base_mark - p1_mark <= 11
    ra.release(p1_mark)
    vX = [ra() for _ in range(4)]
    vWk, vWv, vWq = ra(), ra(), ra()
    vXr = [ra() for _ in range(4)]
    vAw4 = [ra() for _ in range(4)]
    vAq4 = vAw4
    vAphi, vApk, vBv, vPkw, vMisc, vMr, vCx, vCr = [ra() for _ in range(8)]
    vS, vQ, vCk, vCv, vCq = [ra() for _ in range(5)]
    vSelL, vSelH = vS, vQ
    vRS, vSC = ra(2, 2), ra(2, 2)
    T = ra(6, 2)
    XM, CMk, CMv = ra(4, 4), ra(4, 4), ra(4, 4)
    X = [ra(16, 4) for _ in range(4)]
    WF = ra(32, 4)
    AK, AV = ra(16, 4), ra(16, 4)
    E = ra(28, 4)
    PH = 48
    p(f"s_and_b32 s{sB}, s2, 3")
    p(f"s_lshl_b32 s{sB}, s{sB}, 2")
    p(f"s_and_b32 s{sRB}, s{sI}, 3")
    p(f"s_lshr_b32 s{sH}, s{sI}, 2")
    p(f"s_lshl_b32 s{sRot}, s{sRB}, 1")
    p(f"s_add_u32 s{sRot}, s{sRot}, s{sH}")
    mod7(p, sRot, sC)
    if not OPT.get("rot", 1):
        p(f"s_mov_b32 s{sRot}, 0")
    p(f"s_add_u32 s{sRB}, s{sRB}, s{sB}")
    p(f"s_and_b32 s{sB}, s2, 4")
    p(f"s_lshl_b32 s{sB}, s{sB}, 1")
    p(f"s_add_u32 s{sH}, s{sH}, s{sB}")
    p(f"s_lshl_b32 s{sRT}, s{sRB}, 2")
    p(f"s_add_u32 s{sRT}, s{sRT}, s{sW}")
    p(f"v_lshrrev_b32 v{t0}, 3, v1")
    p(f"v_mul_u32_u24 v{t3}, 896, v{t0}")
    p(f"v_and_b32 v{t1}, 7, v1")
    p(f"v_lshrrev_b32 v{t2}, 4, v1")
    p(f"v_xor_b32 v{t1}, v{t1}, v{t2}")
    p(f"v_lshl_add_u32 v{vX[0]}, v{t1}, 4, v{t3}")
    p(f"v_xor_b32 v{vX[1]}, 64, v{vX[0]}")
    p(f"v_add_u32 v{vX[1]}, {8*896-1024}, v{vX[1]}")
    p(f"v_add_u32 v{vX[2]}, {16*896-2048}, v{vX[0]}")
    p(f"v_add_u32 v{vX[3]}, {16*896-2048}, v{vX[1]}")
    p(f"v_lshrrev_b32 v{t0}, 2, v1")
    p(f"v_mul_u32_u24 v{t0}, 2688, v{t0}")
    p(f"v_and_b32 v{t1}, 3, v1")
    p(f"v_lshl_add_u32 v{vWq}, v{t1}, 4, v{t0}")
    p(f"v_add_u32 v{vWk}, 896, v{vWq}")
    p(f"s_mul_i32 s{sXbeg}, s{sRT}, {32*896}")
    p(f"s_add_u32 s{sXend}, s{sXbeg}, 896")
    p(f"s_lshl_b32 s{sA}, s{sRot}, 7")
    p(f"s_add_u32 s{sCx}, s{sXbeg}, s{sA}")
    p(f"s_mul_i32 s{sC}, s{sH}, 56")
    p(f"s_cmp_eq_u32 s{sH}, 15")
    p(f"s_cselect_b32 s{sSh}, 8, 0")
    p(f"s_sub_u32 s{sC}, s{sC}, s{sSh}")
    p(f"s_mul_i32 s{sWbeg}, s{sW}, {16*2688}")
    p(f"s_add_u32 s{sWbeg}, s{sWbeg}, s{sC}")
    p(f"s_mul_i32 s{sA}, s{sRot}, {64*2688}")
    p(f"s_add_u32 s{sCw}, s{sWbeg}, s{sA}")
    p(f"s_mov_b32 s{sCw2}, s{sCw}")
    p(f"s_add_u32 s{sWend}, s{sWbeg}, {448*2688}")
    p(f"s_lshl_b32 s{sXRb}, s{sW}, 14")
    p(f"s_add_u32 s{sXRb}, s{sXRb}, {L_XR}")
    p(f"s_lshl_b32 s{sD}, s{sW}, 10")
    p(f"s_mov_b32 s{RX+2}, {S*D*2}")
    p(f"s_mov_b32 s{RX+3}, 0x00020000")
    p(f"s_mov_b32 s{RWQKV+2}, {D*3*D*2}")
    p(f"s_mov_b32 s{RWQKV+3}, 0x00020000")
    p(f"s_and_b32 s{sB}, s{sI}, 7")
    p(f"s_lshl_b32 s{sB}, s{sB}, 2")
    p(f"s_add_u32 s{sB}, s{sB}, s{sW}")
    p(f"s_lshl_b32 s{sB}, s{sB}, 10")
    p(f"v_and_b32 v{t0}, 7, v1")
    p(f"v_lshl_add_u32 v{t0}, v{t0}, 7, s{sB}")
    p(f"v_min_u32 v{t0}, L_end-L_pc, v{t0}")
    p(f"global_load_dword a116, v{t0}, s[96:97]")
    stamp(p, "start")
    p(f"s_mov_b64 s[{RX}:{RX+1}], s[{SX}:{SX+1}]")
    p(f"s_mov_b64 s[{RWQKV}:{RWQKV+1}], s[{SWQKV}:{SWQKV+1}]")
    p(f"s_mov_b32 s{sK1}, s{sD}")

    def adv():
        return [Ins(f"s_add_u32 s{sCw}, s{sCw}, {64*2688}"), Ins(f"s_add_u32 s{sCx}, s{sCx}, 128"),
                Ins(f"s_cmp_eq_u32 s{sCx}, s{sXend}"), Ins(f"s_cselect_b32 s{sCx}, s{sXbeg}, s{sCx}"),
                Ins(f"s_cselect_b32 s{sCw}, s{sWbeg}, s{sCw}")]

    def wpiece(voff, base, pos, tag):
        return [Ins(f"s_add_u32 m0, s{sK1}, {base + pos*4096}"), Ins("s_nop 0"),
                Ins(f"buffer_load_dwordx4 v{voff}, {R(RWQKV)}, s{sCw} offen lds", tag)]

    def pos_groups(pos):
        gs = [wpiece(vWk, L_WK, pos, f"p{pos}")]
        for j in range(4):
            gs.append(([Ins(f"s_add_u32 m0, s{sXRb}, {(pos & 3)*4096}"), Ins("s_nop 0")] if j == 0 else []) +
                      [Ins(f"buffer_load_dwordx4 v{vX[j]}, {R(RX)}, s{sCx} offen offset:{j*1024} lds", f"p{pos}")] + (adv() if j == 3 else []))
        return gs

    def wstream(voff, base, tag):
        return [[Ins(f"s_add_u32 m0, s{sK1}, {base + pos*4096}"), Ins("s_nop 0"),
                 Ins(f"buffer_load_dwordx4 v{voff}, {R(RWQKV)}, s{sCw2} offen lds", tag),
                 Ins(f"s_add_u32 s{sCw2}, s{sCw2}, {64*2688}"), Ins(f"s_cmp_eq_u32 s{sCw2}, s{sWend}"),
                 Ins(f"s_cselect_b32 s{sCw2}, s{sWbeg}, s{sCw2}")] for pos in range(7)]

    NP0 = OPT.get("np0", 2)
    for pos in range(NP0):
        p.add(flat(pos_groups(pos)))
    stamp(p, "iss0")
    q = Prog()
    q(f"s_lshl_b32 s{sK2}, s{sW}, 11")
    q(f"v_bfe_u32 v{vR}, v1, 2, 2")
    q(f"v_and_b32 v{vMC}, 3, v1")
    q(f"v_lshlrev_b32 v{vMC}, 3, v{vMC}")
    q(f"v_bfe_u32 v{vHF}, v1, 4, 1")
    q(f"v_lshl_add_u32 v{vMC}, v{vHF}, 5, v{vMC}")
    q(f"v_lshrrev_b32 v{vHF}, 5, v1")
    q(f"v_lshl_add_u32 v{t3}, v{vHF}, 3, v{vR}")
    q(f"v_add_u32 v{t0}, s{sSh}, v{vMC}")
    q(f"v_and_b32 v{t0}, 63, v{t0}")
    q(f"v_lshl_add_u32 v{t0}, v{t3}, 6, v{t0}")
    q(f"v_add_u32 v{vAw4[0]}, s{sK1}, v{t0}")
    for s in range(1, 4):
        q(f"v_xor_b32 v{vAw4[s]}, {s*1024}, v{vAw4[0]}")
    q(f"v_and_b32 v{t0}, 31, v1")
    q(f"v_bfe_u32 v{t1}, v1, 1, 3")
    q(f"v_xor_b32 v{t1}, v{t1}, v{vHF}")
    q(f"s_lshl_b32 s{sA}, s{sW}, 1")
    q(f"v_xor_b32 v{t1}, s{sA}, v{t1}")
    q(f"v_lshlrev_b32 v{t0}, 7, v{t0}")
    q(f"v_add_u32 v{t0}, s{sXRb}, v{t0}")
    q(f"v_lshl_add_u32 v{vXr[0]}, v{t1}, 4, v{t0}")
    for s in range(1, 4):
        q(f"v_xor_b32 v{vXr[s]}, {32*s}, v{vXr[0]}")
    q(f"v_mov_b32 v{vOnes}, 0x3f803f80")
    for r in (vS, vQ, vCk, vCv, vCq):
        q(f"v_mov_b32 v{r}, 0")
    q(f"v_add_u32 v{vWv}, 1792, v{vWq}")
    q("s_memrealtime s[98:99]")
    srd(q, RDBG, SDBG, 256)
    q(f"v_lshlrev_b32 v{vL16}, 4, v1")
    q(f"s_or_b32 s{sA}, s2, s{sW}")
    q(f"v_or_b32 v{vEp}, s{sA}, v1")
    q(f"v_lshlrev_b32 v{vEp}, 12, v{vEp}")
    srd(q, RWPHI, SWPHI, H * DH * DH * 2)
    srd(q, RWS, SWS, WS_SIZE)
    nobg = OPT.get("nobg", 0)
    srd(q, RWO, SWO, 0 if nobg & 1 else D * D * 2)
    srd(q, RW1, SW1, 0 if nobg & 2 else D * F * 2)
    srd(q, RW2, SW2, 0 if nobg & 4 else F * D * 2)
    srd(q, RB1, SB1, F * 2)
    srd(q, RB2, SB2, D * 2)
    srd(q, ROUT, SOUT, S * D * 2)
    q(f"s_or_b32 s98, s98, 1")
    q(f"v_mov_b32 v{g.vPT}, s98")
    epst = [Ins(f"buffer_store_dword v{g.vPT}, v{vEp}, {R(RDBG)}, 0 offen sc1")]
    q(f"s_mov_b32 s{sMk}, 0xf0000000")
    q(f"s_mov_b32 s{sMk+1}, 0xf0000000")
    q(f"s_mov_b64 s[0:1], s[{SWS}:{SWS+1}]")
    for r in (XM, CMk, CMv):
        q(f"v_mov_b32 v{r+2}, 0")
        q(f"v_mov_b32 v{r+3}, 0")
    q(f"v_lshl_add_u32 v{t3}, v{vHF}, 2, v{vR}")
    q(f"v_mul_u32_u24 v{vAphi}, 56, v{t3}")
    q(f"v_add_u32 v{vAphi}, v{vAphi}, v{vMC}")
    q(f"v_add_u32 v{vAphi}, {L_WPHI}, v{vAphi}")
    q(f"v_cmp_eq_u32 vcc, 56, v{vMC}")
    q(f"v_add_u32 v{t0}, {2048 - 8}, v{vAphi}")
    q(f"v_bfe_u32 v{t1}, v1, 4, 1")
    q(f"v_cndmask_b32 v{vAphi}, v{vAphi}, v{t0}, vcc")
    q(f"v_lshl_add_u32 v{t0}, v{t1}, 2, v{vR}")
    q(f"v_lshl_add_u32 v{t0}, v{vHF}, 4, v{t0}")
    q(f"v_mul_u32_u24 v{t0}, 136, v{t0}")
    q(f"v_and_b32 v{t2}, 3, v1")
    q(f"v_lshl_add_u32 v{t0}, v{t2}, 3, v{t0}")
    q(f"s_lshl_b32 s{sB}, s{sW}, 5")
    q(f"v_add_u32 v{vApk}, s{sB}, v{t0}")
    q(f"v_and_b32 v{t0}, 15, v1")
    q(f"v_lshlrev_b32 v{t0}, 4, v{t0}")
    q(f"v_lshl_add_u32 v{t0}, v{t1}, 9, v{t0}")
    q(f"v_lshl_add_u32 v{vBv}, v{vHF}, 10, v{t0}")
    q(f"v_add_u32 v{vBv}, {L_VF}, v{vBv}")
    q(f"v_and_b32 v{t0}, 31, v1")
    q(f"s_add_u32 s{sB}, s{sK2}, {L_VF}")
    q(f"v_lshl_add_u32 v{vMisc}, v{t0}, 2, s{sB}")
    q(f"v_lshl_add_u32 v{vMr}, v{vHF}, 4, s{sB}")
    q(f"v_mul_u32_u24 v{t0}, 136, v{t0}")
    q(f"v_lshl_add_u32 v{t0}, v{vHF}, 3, v{t0}")
    q(f"s_mul_i32 s{sB}, s{sW}, {32*136}")
    q(f"v_add_u32 v{vPkw}, s{sB}, v{t0}")
    q(f"v_lshlrev_b32 v{vCr}, 2, v1")
    q(f"v_add_u32 v{vCr}, {L_CSX}, v{vCr}")
    q(f"s_lshl_b32 s{sB}, s{sW}, 8")
    q(f"v_add_u32 v{vCx}, s{sB}, v{vCr}")
    q(f"s_and_b32 s{sC}, s{sW}, 1")
    q(f"s_lshl_b32 s{sC}, s{sC}, 10")
    q(f"s_lshr_b32 s{sB}, s{sW}, 1")
    q(f"s_lshl_b32 s{sB}, s{sB}, 2")
    q(f"s_add_u32 s{sC}, s{sC}, s{sB}")
    q(f"s_mul_i32 s{sB}, s{sH}, {DH*DH*2}")
    q(f"s_add_u32 s{sC}, s{sC}, s{sB}")
    q(f"s_lshl_b32 s{sB}, s{sI}, 2")
    q(f"s_add_u32 s{sB}, s{sB}, s{sW}")
    q(f"s_lshl_b32 s{sB}, s{sB}, 7")
    q(f"v_lshl_add_u32 v{vTch}, v1, 14, s{sB}")
    p.add(sprinkle(q.items, sum([pos_groups(k) for k in range(NP0, 3)], []), OPT.get("sp0", 90), start=OPT.get("st0", 200), hide=0))
    p.add(epst)
    stamp(p, "setup")

    s3 = Prog()
    s3(f"s_and_b32 s{sA}, s2, 7")
    s3(f"s_lshr_b32 s{sCT}, s{sI}, 2")
    s3(f"s_lshl_b32 s{sB}, s{sCT}, 7")
    s3(f"s_mul_i32 s{sWOsrc}, s{sW}, {15*8*896}")
    s3(f"s_add_u32 s{sWOsrc}, s{sWOsrc}, s{sB}")
    s3(f"s_mul_i32 s{sWOl}, s{sW}, {15*1024}")
    s3(f"v_lshrrev_b32 v{t0}, 2, v1")
    s3(f"v_lshrrev_b32 v{t1}, 4, v1")
    s3(f"v_xor_b32 v{t0}, v{t0}, v{t1}")
    s3(f"v_and_b32 v{t0}, 1, v{t0}")
    s3(f"v_and_b32 v{t1}, 3, v1")
    s3(f"v_lshlrev_b32 v{t1}, 4, v{t1}")
    s3(f"v_lshl_add_u32 v{vW1[0]}, v{t0}, 6, v{t1}")
    s3(f"v_lshrrev_b32 v{t0}, 3, v1")
    s3(f"v_mul_u32_u24 v{t0}, 896, v{t0}")
    s3(f"v_add_u32 v{vW64[0]}, v{t0}, v{vW1[0]}")
    s3(f"v_lshl_add_u32 v{vW1[0]}, v{t0}, 2, v{vW1[0]}")
    for j in range(1, 4):
        s3(f"v_add_u32 v{vW64[j]}, {j*(8*896-1024)}, v{vW64[0]}")
    n_s3a = len(s3.items)
    s3(f"s_lshl_b32 s{sK4}, s{sW}, 12")
    s3(f"s_lshl_b32 s{sB}, s{sW}, 9")
    s3(f"v_lshl_add_u32 v{t0}, v1, 7, s{sB}")
    s3(f"v_lshrrev_b32 v{t1}, 2, v1")
    s3(f"v_lshl_add_u32 v{g.vFl}, v{t1}, 28, v{t0}")
    s3(f"s_lshl_b32 s{sB}, s{sH}, 11")
    s3(f"s_add_u32 s{sB}, s{sB}, {WS_FLAG}")
    s3(f"s_lshl_b32 s{sE}, s{sRB}, 2")
    s3(f"s_add_u32 s{sFo[0]}, s{sB}, s{sE}")
    s3(f"s_lshl_b32 s{sE}, s{sRB}, 7")
    s3(f"s_add_u32 s{sPi[0]}, s{sB}, s{sE}")
    n_s3b = len(s3.items)
    s3(f"s_and_b32 s{sRB64}, s{sI}, 3")
    s3(f"s_lshl_b32 s{sB}, s{sA}, 2")
    s3(f"s_add_u32 s{sRB64}, s{sRB64}, s{sB}")
    s3(f"s_lshr_b32 s{sFT}, s{sI}, 1")
    s3(f"s_lshr_b32 s{sB}, s{sW}, 1")
    s3(f"s_lshl_b32 s{sRTf}, s{sRB64}, 1")
    s3(f"s_add_u32 s{sRTf}, s{sRTf}, s{sB}")
    s3(f"s_and_b32 s{sB}, s{sW}, 1")
    s3(f"s_lshl_b32 s{sTf}, s{sCT}, 1")
    s3(f"s_add_u32 s{sTf}, s{sTf}, s{sB}")
    s3(f"v_and_b32 v{t0}, 31, v1")
    s3(f"v_lshlrev_b32 v{t2}, 1, v{t0}")
    s3(f"s_lshl_b32 s{sE}, s{sFT}, 8")
    small = [[Ins(f"buffer_load_ushort a{A_B1+T_}, v{t2}, {R(RB1)}, s{sE} offen offset:{64*T_}")] for T_ in range(4)]

    s4 = Prog()
    s4(f"s_and_b32 s{sD}, s2, 7")
    s4(f"s_and_b32 s{sRB3}, s{sI}, 1")
    s4(f"s_lshl_b32 s{sB}, s{sD}, 1")
    s4(f"s_add_u32 s{sRB3}, s{sRB3}, s{sB}")
    s4(f"s_lshl_b32 s{sRT3}, s{sRB3}, 2")
    s4(f"s_add_u32 s{sRT3}, s{sRT3}, s{sW}")
    for j in range(1, 4):
        s4(f"v_add_u32 v{vW1[j]}, {j*(8*3584-1024)}, v{vW1[0]}")
    s4(f"s_lshl_b32 s{sB}, s{sFT}, 8")
    s4(f"s_mul_i32 s{sW1a}, s{sW}, {32*3584}")
    s4(f"s_add_u32 s{sW1a}, s{sW1a}, s{sB}")
    s4(f"s_mul_i32 s{sW1c}, s{sW}, {16*3584}")
    s4(f"s_add_u32 s{sW1c}, s{sW1c}, s{sB}")
    s4(f"s_lshl_b32 s{sB}, s{sRB}, 11")
    s4(f"s_lshl_b32 s{sE}, s{sH}, 2")
    s4(f"s_add_u32 s{sB}, s{sB}, s{sE}")
    s4(f"s_add_u32 s{sFo[1]}, s{sB}, {WS_FLAG + 32768}")
    s4(f"s_lshl_b32 s{sB}, s{sRB64}, 10")
    s4(f"s_lshl_b32 s{sE}, s{sCT}, 7")
    s4(f"s_add_u32 s{sB}, s{sB}, s{sE}")
    s4(f"s_add_u32 s{sPi[1]}, s{sB}, {WS_FLAG + 32768}")
    s4(f"s_lshr_b32 s{sB}, s{sRB64}, 1")
    s4(f"s_lshl_b32 s{sB}, s{sB}, 11")
    s4(f"s_and_b32 s{sE}, s{sRB64}, 1")
    s4(f"s_mul_i32 s{sE}, s{sE}, 7")
    s4(f"s_add_u32 s{sE}, s{sE}, s{sCT}")
    s4(f"s_lshl_b32 s{sE}, s{sE}, 2")
    s4(f"s_add_u32 s{sB}, s{sB}, s{sE}")
    s4(f"s_add_u32 s{sFo[2]}, s{sB}, {WS_FLAG + 65536}")
    s4(f"s_lshl_b32 s{sB}, s{sRB3}, 11")
    s4(f"s_add_u32 s{sB}, s{sB}, {WS_FLAG + 65536}")
    s4(f"s_lshl_b32 s{sE}, s{sFT}, 2")
    s4(f"s_add_u32 s{sE}, s{sE}, 32768")
    s4(f"s_add_u32 s{sFo[3]}, s{sB}, s{sE}")
    s4(f"s_lshl_b32 s{sE}, s{sFT}, 7")
    s4(f"s_add_u32 s{sPi[2]}, s{sB}, s{sE}")
    s4(f"v_min_u32 v{g.vPo}, 13, v1")
    s4(f"v_lshlrev_b32 v{g.vPo}, 2, v{g.vPo}")

    def touch(srdreg, k):
        return [Ins(f"s_mov_b32 s{sBG}, {k << 20}"), Ins(f"buffer_load_dword a116, v{vTch}, {R(srdreg)}, s{sBG} offen")]

    def wo_groups(a, b):
        return dma_run(vW64, RWO, sWOsrc, 0, 8 * 896, sWOl, L_WO, a, b, "wo")

    def w1r(a, b):
        gs = []
        for im in range(2):
            for blk in range(4):
                k0, n = 14 * im + 4 * blk, (4 if blk < 3 else 2)
                lo, hi = max(a, k0), min(b, k0 + n)
                if lo < hi:
                    gs += dma_run(vW1, RW1, sW1a if blk < 3 else sW1c, 128 * im + blk * 128 * 3584, 8 * 3584, sK4 if blk < 3 else sK2, L_I[im] + blk * 16384, lo - k0, hi - k0, f"w1{im}")
        return gs

    def xop(pos, s):
        return ("a", 16 * pos + 4 * s) if pos < 3 else ("v", X[pos & 3] + 4 * s)

    def k_reads(pos):
        xr = [Ins(f"ds_read_b128 {q4(X[pos & 3]+4*s)}, v{vXr[s]} offset:{(pos & 3) * 4096}") for s in range(4)]
        wr = [Ins(f"ds_read_b64_tr_b16 {pr(WF+16*(pos & 1)+4*s,2*u)}, v{vAw4[s]} offset:{L_WK+pos*4096+u*256}") for s in range(4) for u in range(2)]
        return xr, wr

    def a_reads(pos):
        return [Ins(f"ds_read_b128 a[{16*pos+4*s}:{16*pos+4*s+3}], v{vXr[s]} offset:{(pos & 3) * 4096}") for s in range(4)] if pos < 3 else []

    def dots(pos):
        x = X[pos & 3]
        out = [Ins(l) for j in range(16) for l in (f"v_dot2c_f32_bf16 v{vS}, v{x+j}, v{vOnes}", f"v_dot2c_f32_bf16 v{vQ}, v{x+j}, v{x+j}")]
        return out + [Ins(f"v_dot2c_f32_bf16 v{vCk}, v{WF+16*(pos & 1)+j}, v{vOnes}") for j in range(4)]

    wphi_g = [Ins(f"s_add_u32 m0, s{sK1}, {L_WPHI}"), Ins("s_nop 0"), Ins(f"buffer_load_dwordx4 v{vL16}, {R(RWPHI)}, s{sC} offen lds", "wphi")]
    ep_g = [Ins(f"v_mov_b32 v{t0}, 0"), Ins(f"buffer_load_dword v{g.vTag}, v{t0}, {R(RDBG)}, 0 offen sc1")]
    tsel = OPT.get("tsel", 3)
    side = [wphi_g] + wstream(vWv, L_WV, "wv") + [ep_g] + wstream(vWq, L_WQ, "wq") + \
        [t_ for i_, t_ in enumerate([touch(RWO, 0), touch(RW1, 0), touch(RW1, 1)]) if tsel >> i_ & 1]
    sq = [int(c_) for c_ in "%06d" % OPT.get("sq", 264)]
    assert sum(sq) >= 8

    p.wait_vm("p0")
    p("s_barrier")
    stamp(p, "pos0")
    xr, wr = k_reads(0)
    p.add([xr[0]] + wr[:2] + [xr[1]] + wr[2:4] + [xr[2]] + wr[4:6] + [xr[3]] + wr[6:])
    for pos in range(7):
        if pos < 6:
            p.wait_vm(f"p{pos+1}")
            p.barrier(lgkm=(pos > 0))
        else:
            p.wait_vm("wphi")
            p.barrier()
        if pos in (2, 4, 6):
            stamp(p, f"it{pos}")
        m = Prog()
        for s in range(4):
            mfma(m, AK, WF + 16 * (pos & 1) + 4 * s, X[pos & 3] + 4 * s, None if (pos == 0 and s == 0) else AK)
        if pos == 6:
            break
        xr, wr = k_reads(pos + 1)
        bg = (pos_groups(pos + 3) if pos + 3 < 7 else []) + side[:sq[pos]]
        side = side[sq[pos]:]
        seq = xr[:2] + wr[:2] + xr[2:] + wr[2:] + a_reads(pos)
        o = []
        for i_, mm in enumerate(m.items):
            o += [mm] + seq[3 * i_:3 * i_ + 3]
            if bg and i_ < OPT.get("nbm", 4):
                o.append(bg.pop(0))
        p.add(o + seq[12:])
        p.add((dots(0) if pos == 0 else []) + dots(pos + 1))
        if pos == 5:
            p(f"ds_write_b32 v{vCx}, v{vCk}")
        p.add(flat(bg))
    order = [(pos, 0) for pos in range(7)] + [(pos, s) for pos in range(7) for s in range(1, 4)]
    def pass_stream(acc, addr, base, regs, transposed, PRE):
        def rd(n):
            pos, s = order[n]
            k_, r_ = regs(n)
            return [Ins(f"ds_read_b64_tr_b16 {pr(r_,2*u,k_)}, v{addr[s]} offset:{base+pos*4096+u*256}") for u in range(2)]
        head = [x for n in range(PRE) for x in rd(n)]
        body = []
        for n in range(28):
            k_, xr_ = xop(*order[n])
            wk_, wr_ = regs(n)
            q = Prog()
            if n % 2 == 0 and n + 1 < 28:
                q.items.append(Need(f"{regs(n+1)[0]}[{regs(n+1)[1]}:{regs(n+1)[1]+3}]"))
            if transposed:
                mfma(q, acc, wr_, xr_, None if n == 0 else acc, ak=wk_, bk=k_)
            else:
                mfma(q, acc, xr_, wr_, None if n == 0 else acc, ak=k_, bk=wk_)
            body.append(q.items)
        for n in range(PRE, 28):
            body[n - PRE] += rd(n)
        return head, body

    KEEP = [WF + 4 * n for n in range(7)]
    wregs = lambda n: ("v", KEEP[n]) if n < 7 else ("a", 64 + 4 * (n & 7))
    vhead, vb = pass_stream(AV, vAw4, L_WV, wregs, False, 6)
    CP, KB, OUT = T, PHQ, PHQ
    CS, VB = AK, WF
    st = Prog()
    for w2 in range(4):
        st(f"ds_read_b32 v{CP+w2}, v{vCr} offset:{w2*256}")
    xhalf(st, "v_add_f32", vS, t0)
    st(f"v_mul_f32 v{vS}, {f32(-1.0/D)}, v{vS}")
    split_dup(st, XM, XM + 1, vS, t0)
    st(f"v_add_f32 v{CP}, v{CP}, v{CP+1}")
    st(f"v_add_f32 v{CP+2}, v{CP+2}, v{CP+3}")
    st(f"v_add_f32 v{CP}, v{CP}, v{CP+2}")
    split_pair(st, CMk, CP, t1)
    st(f"v_mov_b32 v{CMk+1}, v{CMk}")
    ph = [Ins(f"ds_read_b64_tr_b16 {pr(PH,4*t+2*u,'a')}, v{vAphi} offset:{(16*t+8*u)*56}") for t in range(2) for u in range(2)]
    o, rest = weave(m.items, st.items[:4] + ph + st.items[4:], 28)
    p.add(o + rest)
    mfma(p, AK, CMk, XM, AK)
    stamp(p, "kmfma")
    fs = (lambda n_: stamp(p, n_)) if OPT.get("fine") else (lambda n_: None)
    xhalf(p, "v_add_f32", vQ, t1)
    p(f"v_mul_f32 v{t3}, {f32(1.0/D)}, v{vQ}")
    p(f"v_fma_f32 v{t3}, -v{vS}, v{vS}, v{t3}")
    p.add(masked(0, -1, [f"v_accvgpr_write_b32 a{PH+6}, 0", f"v_accvgpr_write_b32 a{PH+7}, 0"]))
    for j in range(0, 16, 2):
        p(f"v_cvt_pk_bf16_f32 v{KB+j//2}, v{AK+j}, v{AK+j+1}")
    mfma(p, AK, PH, KB, ak="a")
    p(f"v_max_f32 v{t3}, 0, v{t3}")
    p(f"v_add_f32 v{t3}, {f32(1e-5)}, v{t3}")
    p(f"v_rsq_f32 v{vRS}, v{t3}")
    mfma(p, AK, PH + 4, KB + 4, AK, ak="a")
    ne1, ne2 = OPT.get("ne1", 2), OPT.get("ne2", 2)
    p.add(flat(side[:ne1]))
    side = side[ne1:]
    p(f"v_mul_f32 v{vSC}, {f32(LOG2E)}, v{vRS}")
    p(f"ds_write_b32 v{vMisc}, v{vRS}")
    fs("e_phi")
    sm = sm_parts(AK, E, OUT, vSC, T)
    p.add(sm["max"][:-2])
    p.add(flat(side[:ne2]))
    side = side[ne2:]
    p.add(sm["max"][-1:])
    fs("e_max")
    p.wait_vm("wv")
    p.add(vhead)
    p.add(sm["fma"])
    p.add(flat(side))
    p("s_barrier")
    fs("e_fma")
    o, rest = weave(flat(vb[0:14]), sm["exp"], 24)
    p.add(o + rest)
    fs("e_exp")
    p.add(sm["add"])
    for n in range(7):
        for j in range(4):
            p(f"v_dot2c_f32_bf16 v{vCv}, v{KEEP[n]+j}, v{vOnes}")
    cv = Prog()
    cv(f"ds_write_b32 v{vCx}, v{vCv} offset:1024")
    for gg in range(4):
        cv(f"ds_read_b128 {q4(CS+4*gg)}, v{vMr} offset:{32*gg}")
    o, rest = weave(flat(vb[14:18]), sm["rcp"][:2] + cv.items + sm["rcp"][3:], 26)
    p.add(o + rest)
    fs("e_rcp")
    p.add(sm["mul"])
    p.barrier()
    cv = Prog()
    for w2, r_ in enumerate((t0, t1, t2, t3)):
        cv(f"ds_read_b32 v{r_}, v{vCr} offset:{1024+w2*256}")
    pkw = [Ins(f"ds_write_b64 v{vPkw}, {pr(OUT, 8*sg+2*gg)} offset:{L_PK+64*sg+16*gg}") for sg in range(2) for gg in range(4)]
    cv.add(sm["cvt"][:7] + pkw[:4])
    cv(f"v_add_f32 v{t0}, v{t0}, v{t1}")
    cv(f"v_add_f32 v{t2}, v{t2}, v{t3}")
    cv(f"v_add_f32 v{t0}, v{t0}, v{t2}")
    split_pair(cv, CMv, t0, t1)
    cv(f"v_mov_b32 v{CMv+1}, v{CMv}")
    cv.add(sm["cvt"][7:] + pkw[4:])
    cv(f"s_add_u32 s{sA}, s{sK2}, {L_VF}")
    cv(f"v_add_u32 v{t2}, s{sA}, v{vL16}")
    o, rest = weave(flat(vb[18:28]), cv.items, 24)
    p.add(o + rest)
    mfma(p, AV, XM, CMv, AV)
    fs("e_cvt")
    for s in range(4):
        p(f"v_add_u32 v{vAw4[s]}, {L_WQ}, v{vAw4[s]}")
    p(f"s_lshl_b32 s{sA}, s{sH}, 4")
    p(f"s_add_u32 s{sA}, s{sA}, s{sRB}")
    p(f"s_lshl_b32 s{sA}, s{sA}, 12")
    p(f"s_add_u32 s{sA}, s{sA}, s{sK1}")
    for t in range(2):
        for j in range(8 * t, 8 * t + 8, 2):
            p(f"v_pk_mul_f32 {pr(AV,j)}, {pr(AV,j)}, {pr(CS,j)}")
        for j in range(8 * t, 8 * t + 8, 2):
            p(f"v_cvt_pk_bf16_f32 v{VB+j//2}, v{AV+j}, v{AV+j+1}")
        for j in range(4 * t, 4 * t + 4):
            p(f"v_cndmask_b32 v{VB+j}, v{VB+j}, v{vOnes}, s[{sMk}:{sMk+1}]")
        p(f"ds_write_b128 v{t2}, {q4(VB+4*t)} offset:{t*1024}")
    p.barrier()
    stamp(p, "pkbar")
    AFk, BFv = AK, E - 4
    for ws in range(4):
        for u in range(2):
            p(f"ds_read_b64_tr_b16 {pr(AFk, 4*ws+2*u)}, v{vApk} offset:{L_PK+(32*ws+8*u)*136}")
        for nt in range(2):
            p(f"ds_read_b128 {q4(BFv+8*ws+4*nt)}, v{vBv} offset:{ws*2048 + nt*256}")
    DK, PKD = PHQ, PHQ + 8
    AQ = AV
    qhead, qb = pass_stream(AQ, vAq4, 0, wregs, True, 6)
    for ws in range(4):
        for nt in range(2):
            c = "0" if ws == 0 else q4(DK + 4 * nt)
            p(f"v_mfma_f32_16x16x32_bf16 {q4(DK+4*nt)}, {q4(AFk+4*ws)}, {q4(BFv+8*ws+4*nt)}, {c}")
    for j in range(4):
        p(f"v_cvt_pk_bf16_f32 v{PKD+j}, v{DK+2*j}, v{DK+2*j+1}")
    p(f"v_permlane32_swap_b32 v{PKD}, v{PKD+2}")
    p(f"v_permlane32_swap_b32 v{PKD+1}, v{PKD+3}")
    p(f"buffer_store_dwordx4 {q4(PKD)}, v{vL16}, {R(RWS)}, s{sA} offen sc1", tag="stA")
    stamp(p, "kvstored")
    p.wait_vm("wq")
    p.add(qhead)
    p("s_barrier")
    p.add(s3.items[:12])
    o, rest = weave(flat(qb[:7]), s3.items[12:n_s3b], 26)
    p.add(o)
    for n in range(7):
        for j in range(4):
            p(f"v_dot2c_f32_bf16 v{vCq}, v{KEEP[n]+j}, v{vOnes}")
    p(f"ds_write_b32 v{vCx}, v{vCq} offset:2048")
    NQ1 = OPT.get("nq1", 13)
    o, rest = weave(flat(qb[7:10]), rest, 26)
    p.add(o + rest)
    wog = wo_groups(0, 15)
    o, wog = paced(flat(qb[10:NQ1]), wog, 2)
    p.add(o)
    p.raw(f"""
    v_cmp_eq_u32 vcc, 0, v{g.vTag}
    s_mov_b32 s{sB}, 0
    s_cbranch_vccnz L_epoch
L_epoch_done:
""", uses=[f"v{g.vTag}"], defs=[f"v{g.vTag}", f"v{t0}"], pad=False)
    SLOW.append(f"""
L_epoch:
    v_mov_b32 v{t0}, 0
    buffer_load_dword v{g.vTag}, v{t0}, {R(RDBG)}, 0 offen sc1
    s_waitcnt vmcnt(0)
    v_cmp_eq_u32 vcc, 0, v{g.vTag}
    s_add_u32 s{sB}, s{sB}, 1
    s_cbranch_vccz L_epoch_done
    s_cmp_lt_u32 s{sB}, 0x10000
    s_cbranch_scc1 L_epoch
    s_branch L_epoch_done
""")
    p.wait_vm("stA")
    p("s_barrier")
    flag(p, g, 0)
    stamp(p, "pubA")
    fb = Prog()
    for w2 in range(4):
        fb(f"ds_read_b32 v{CP+w2}, v{vCr} offset:{2048+w2*256}")
    fb(f"v_readfirstlane_b32 s{sTag}, v{g.vTag}")
    fb(f"v_readfirstlane_b32 s{sTag+1}, v{g.vTag}")
    fb(f"v_add_f32 v{CP}, v{CP}, v{CP+1}")
    fb(f"v_add_f32 v{CP+2}, v{CP+2}, v{CP+3}")
    fb(f"v_add_f32 v{CP}, v{CP}, v{CP+2}")
    split_pair(fb, CMk, CP, CP + 1)
    fb(f"v_mov_b32 v{CMk+1}, v{CMk}")
    o, wog = paced(flat(qb[NQ1:]), wog, 2)
    o, rest = weave(o, fb.items + s3.items[n_s3b:], 28)
    p.add(o + rest)
    mfma(p, AQ, CMk, XM, AQ)
    KB = WF
    bgs = wog + small
    p.add(flat(bgs[:2]))
    for j in range(0, 16, 2):
        p(f"v_cvt_pk_bf16_f32 v{KB+j//2}, v{AQ+j}, v{AQ+j+1}")
    mfma(p, AK, PH, KB, ak="a")
    p.add(flat(bgs[2:3]))
    mfma(p, AK, PH + 4, KB + 4, AK, ak="a")
    p.add(flat(bgs[3:5]))
    stamp(p, "qmfma")
    SUM = XM
    sm = sm_parts(AK, E, PHQ, vSC, T)
    z = Prog()
    for j in range(8):
        z(f"v_mov_b32 v{SUM+j}, 0")
    z(f"v_mov_b32 v{vSelL}, 0x00003f80")
    z(f"v_mov_b32 v{vSelH}, 0x3f800000")
    z(f"s_lshl_b32 s{sC}, s{sH}, 16")
    z(f"s_add_u32 s{sC}, s{sC}, s{sK1}")
    smq = z.items + sm["max"] + sm["fma"] + sm["exp"] + sm["add"] + sm["rcp"] + sm["mul"] + sm["cvt"]
    na, nb = len(smq) * OPT.get("pa1", 30) // 100, len(smq) * OPT.get("pa2", 100) // 100
    p("s_barrier")
    p.add(sprinkle(smq[:na], bgs[5:], OPT.get("spq", 40), hide=0))
    spoll_issue(p, 0)
    p.add(smq[na:nb])
    stamp(p, "qdone")
    spoll_check(p, 0, 16)
    stamp(p, "syncA")

    PARTS = [X[j >> 2] + 4 * (j & 3) for j in range(16)]
    ld = []
    for pp in range(16):
        ld.append([Ins(f"s_add_u32 s{sA}, s{sC}, {pp*4096}"),
                   Ins(f"buffer_load_dwordx4 {q4(PARTS[pp])}, v{vL16}, {R(RWS)}, s{sA} offen sc1")])
    wb, wc, wd = OPT.get("wb", 0), OPT.get("wc", 14), OPT.get("wd", 12)
    assert wd <= 18
    vA0, vA1, vRc = vAw4[0], vAw4[1], vRS
    vEx0, vEx1 = vAw4[2], vAw4[3]
    q = Prog()
    q(f"v_and_b32 v{t0}, 15, v1")
    q(f"v_lshl_add_u32 v{t0}, v{vHF}, 4, v{t0}")
    q(f"v_bfe_u32 v{t1}, v1, 4, 1")
    q(f"v_lshl_add_u32 v{t0}, v{t1}, 5, v{t0}")
    q(f"s_add_u32 s{sB}, s{sK1}, {L_MISC}")
    q(f"v_lshl_add_u32 v{vEx0}, v{t0}, 4, s{sB}")
    q(f"v_add_u32 v{vEx1}, {L_MISC}, v{vL16}")
    q(f"v_lshl_add_u32 v{t3}, v{vHF}, 2, v{vR}")
    q(f"v_lshl_add_u32 v{vAi0}, v{t3}, 7, v{vMC}")
    q(f"v_lshrrev_b32 v{t3}, 1, v{vR}")
    q(f"v_lshl_add_u32 v{vAi0}, v{t3}, 6, v{vAi0}")
    q(f"s_and_b32 s{sB}, s{sW}, 1")
    q(f"s_lshl_b32 s{sE}, s{sB}, 6")
    q(f"v_xor_b32 v{vAw}, s{sE}, v{vAi0}")
    q(f"v_xor_b32 v{vA1}, 64, v{vAw}")
    q(f"s_mul_i32 s{sB}, s{sB}, {224*128}")
    q(f"s_add_u32 s{sB}, s{sB}, {L_WO}")
    q(f"v_add_u32 v{vA0}, s{sB}, v{vAw}")
    q(f"v_add_u32 v{vA1}, s{sB}, v{vA1}")
    q(f"s_lshl_b32 s{sD}, s{sRT}, 4")
    q(f"s_add_u32 s{sD}, s{sD}, s{sH}")
    q(f"s_lshl_b32 s{sD}, s{sD}, 11")
    q(f"s_add_u32 s{sD}, s{sD}, {WS_OF}")
    p.add(flat(ld[:5]))
    p.add(sprinkle(smq[nb:] + s4.items + q.items, ld[5:], 56, hide=0))
    p(f"v_and_b32 v{t0}, 31, v1")
    p(f"v_mul_u32_u24 v{t0}, 896, v{t0}")
    p(f"v_lshl_add_u32 v{t0}, v{vHF}, 4, v{t0}")
    p(f"v_lshlrev_b32 v{t3}, 3, v{vHF}")
    p(f"s_mul_i32 s{sA}, s{sRTf}, {32*896}")
    p(f"s_lshl_b32 s{sB}, s{sTf}, 6")
    p(f"s_add_u32 s{sA}, s{sA}, s{sB}")
    small2 = [[Ins(f"buffer_load_dwordx4 {q4(A_XRES+4*q_,'a')}, v{t0}, {R(RX)}, s{sA} offen offset:{32*q_}")] for q_ in range(2)] + \
             [[Ins(f"buffer_load_dwordx2 {pr(A_B2,2*gg,'a')}, v{t3}, {R(RB2)}, s{sB} offen offset:{16*gg}")] for gg in range(4)]
    p.add(flat(small2))
    p.add(flat(w1r(0, wb)))
    dq = Prog()
    for pp in range(16):
        for j in range(4):
            dq(f"v_dot2c_f32_bf16 v{SUM+2*j}, v{PARTS[pp]+j}, v{vSelL}")
            dq(f"v_dot2c_f32_bf16 v{SUM+2*j+1}, v{PARTS[pp]+j}, v{vSelH}")
    p.add(dq.items)
    AF, ACC1, OB = WF, AV, WF + 16
    for j in range(4):
        p(f"v_cvt_pk_bf16_f32 v{OB+j}, v{SUM+2*j}, v{SUM+2*j+1}")
    p(f"ds_write_b128 v{vEx0}, {q4(OB)}")
    stamp(p, "kvsum")
    p.barrier()
    for kk in range(4):
        p(f"ds_read_b128 {q4(AF+4*kk)}, v{vEx1} offset:{kk*1024}")
    WOF = 128
    wof = []
    for k in range(16):
        row0 = 28 * (k >> 1) + 16 * (k & 1)
        for mt in range(2):
            for u in range(2):
                wof.append(Ins(f"ds_read_b64_tr_b16 {pr(WOF, 8*k+4*mt+2*u, 'a')}, v{[vA0, vA1][mt]} offset:{(row0+8*u)*128}"))
    m = Prog()
    for kk in range(4):
        mfma(m, ACC1, AF + 4 * kk, PHQ + 4 * kk, None if kk == 0 else ACC1)
    wm = OPT.get("wm", 0)
    o, w1b_ = paced(m.items, w1r(wb, wb + wm), 1)
    p.add(o + flat(w1b_))
    p(f"v_mov_b32 v{t0}, v{ACC1+12}")
    p(f"v_mov_b32 v{t1}, v{ACC1+12}")
    p(f"v_permlane32_swap_b32 v{t0}, v{t1}")
    p(f"v_add_f32 v{t1}, {f32(1e-6)}, v{t1}")
    p(f"v_rcp_f32 v{vRc}, v{t1}")
    for j in range(0, 16, 2):
        p(f"v_pk_mul_f32 {pr(ACC1,j)}, {pr(ACC1,j)}, {pr(vRc)} op_sel_hi:[1,0]")
    for j in range(0, 8, 2):
        p(f"v_cvt_pk_bf16_f32 v{OB+j//2}, v{ACC1+j}, v{ACC1+j+1}")
    p(f"buffer_store_dwordx4 {q4(OB)}, v{vL16}, {R(RWS)}, s{sD} offen sc1")
    for j in range(8, 16, 2):
        p(f"v_cvt_pk_bf16_f32 v{OB+j//2}, v{ACC1+j}, v{ACC1+j+1}")
    p.add(masked(0, -1, [f"v_mov_b32 v{OB+6}, 0", f"v_mov_b32 v{OB+7}, 0"]))
    p(f"buffer_store_dwordx4 {q4(OB+4)}, v{vL16}, {R(RWS)}, s{sD} offen offset:1024 sc1", tag="stB")
    stamp(p, "ostored")
    p.add(sprinkle(wof, w1r(wb + wm, wd), 40, hide=0))
    publish(p, g, 1, "stB")
    stamp(p, "pubB")
    p(f"s_cmp_ge_u32 s{sI}, 28")
    p("s_cbranch_scc1 L_idle")

    def ksb(j):
        return 16 * (j % 7) + 2 * (j // 7)
    ROW = [14, 15, 16, 17] * 3 + [0, 1, 2, 3, 4, 5, 6, 18, 19] + [7, 8, 9, 10, 11, 12, 13]

    def w2g(j0, j1):
        gs = []
        for j in range(j0, j1):
            gs.append([Ins(f"s_add_u32 m0, s{sK2}, {ROW[j]*8192}"), Ins(f"s_mov_b32 s{sBG}, {0 if OPT.get('hot2') else 16*896*ksb(j)}"),
                       Ins(f"buffer_load_dwordx4 v{vW64[0]}, {R(RW2)}, s{sBG} offen lds", f"w2_{j}")])
            gs.append([Ins(f"buffer_load_dwordx4 v{vW64[1]}, {R(RW2)}, s{sBG} offen offset:1024 lds", f"w2_{j}")])
        return gs

    def w2_read(j, dst, k):
        off = ROW[j] * 8192
        out = [Wait("vmtag", f"w2_{j}")]
        for jm in range(2):
            for u in range(2):
                out.append(Ins(f"ds_read_b64_tr_b16 {pr(dst[jm],2*u,k)}, v{vB4[off >> 16][jm]} offset:{(off & 0xffff)+u*1024}"))
        return out

    def w2_move(j0, j1):
        return [x for j in range(j0, j1) for x in w2_read(j, [8 * j, 8 * j + 4], "a")]
    we = OPT.get("we", 18)
    s5 = Prog()
    s5(f"s_lshl_b32 s{sC}, s{sRTf}, 15")
    s5(f"s_and_b32 s{sA}, s{sW}, 1")
    s5(f"s_lshl_b32 s{sA}, s{sA}, 14")
    s5(f"s_add_u32 s{sC}, s{sC}, s{sA}")
    s5(f"s_add_u32 s{sC}, s{sC}, {WS_OF}")
    s5(f"s_lshl_b32 s{sB}, s{sCT}, 7")
    s5(f"s_lshr_b32 s{sWo2}, s{sW}, 1")
    s5(f"s_lshl_b32 s{sWo2}, s{sWo2}, 3")
    s5(f"s_and_b32 s{sW2src2}, s{sW}, 1")
    s5(f"s_add_u32 s{sWo2}, s{sWo2}, s{sW2src2}")
    s5(f"s_mul_i32 s{sW2src2}, s{sWo2}, {16*896}")
    s5(f"s_add_u32 s{sW2src2}, s{sW2src2}, s{sB}")
    s5(f"v_add_u32 v{vW64[0]}, s{sW2src2}, v{vW64[0]}")
    s5(f"v_add_u32 v{vW64[1]}, s{sW2src2}, v{vW64[1]}")
    s5(f"v_xor_b32 v{t1}, 64, v{vAw}")
    for b_ in range(3):
        s5(f"s_add_u32 s{sA}, s{sK2}, {b_*65536}")
        s5(f"v_add_u32 v{vB4[b_][0]}, s{sA}, v{vAw}")
        s5(f"v_add_u32 v{vB4[b_][1]}, s{sA}, v{t1}")
    s5(f"s_lshr_b32 s{sA}, s{sW}, 1")
    s5(f"s_mul_i32 s{sA}, s{sA}, {224*128}")
    s5(f"v_add_u32 v{vAw}, s{sA}, v{vAw}")
    s5(f"v_mov_b32 v{vCs}, 0")
    s5(f"v_mov_b32 v{vCs+1}, 0")
    ra.release(base_mark)
    B = ra(64, 4)
    ACC = ra(32, 4)
    RD = ra(16, 4)
    vSt = ra(2, 2)
    XF = ra(16, 4)
    for j in range(8):
        s5(f"v_accvgpr_read_b32 v{XF+2*j+1}, a{A_XRES+j}")
    for q_ in range(2):
        for e_ in range(2):
            s5(f"v_permlane32_swap_b32 v{XF+2*(4*q_+e_)+1}, v{XF+2*(4*q_+2+e_)+1}")
    for j in range(8):
        s5(f"v_lshlrev_b32 v{XF+2*j}, 16, v{XF+2*j+1}")
        s5(f"v_and_b32 v{XF+2*j+1}, 0xffff0000, v{XF+2*j+1}")
    s5i = sprinkle(s5.items, w1r(wd, we), 56, hide=0)
    nb1 = len(s5i) * OPT.get("pb1", 60) // 100
    p.add(s5i[:nb1])
    spoll_issue(p, 1)
    p.add(s5i[nb1:])

    def colsum(im, buf):
        q = Prog()
        for c4 in range(0, 14, 4):
            a = buf + 16 * ((c4 >> 2) & 1)
            for s in range(min(4, 14 - c4)):
                for u in range(2):
                    q(f"ds_read_b64_tr_b16 {pr(a,4*s+2*u)}, v{vAw} offset:{(16*(c4+s)+8*u)*128}")
            if c4 > 0:
                a = buf + 16 * (((c4 >> 2) - 1) & 1)
                for j in range(16):
                    q(f"v_dot2c_f32_bf16 v{vCs+im}, v{a+j}, v{vOnes}")
        for j in range(8):
            q(f"v_dot2c_f32_bf16 v{vCs+im}, v{buf+16+j}, v{vOnes}")
        return q.items
    p.wait_vm("w10")
    p("s_barrier")
    stamp(p, "winB")
    spoll_check(p, 1, 16)
    stamp(p, "syncB")
    SH = OPT.get("shift", 1)
    bgP2 = w1r(we, 28) + ([] if SH else w2g(0, 4))

    ldo = []
    for k in range(16):
        ldo.append(([Ins(f"s_add_u32 s{sA}, s{sC}, {k*1024}")] if (k & 3) == 0 else []) +
                   [Ins(f"buffer_load_dwordx4 {q4(B+4*k)}, v{vL16}, {R(RWS)}, s{sA} offen offset:{(k&3)*1024} sc1")])
    CSB = ra(32, 4)
    p.add(flat(ldo[:6]))
    p.add(sprinkle(colsum(0, CSB), ldo[6:], 50, hide=0))
    p(f"v_add_u32 v{vAw}, {L_I[1]}, v{vAw}")
    q = Prog()
    q(f"v_mov_b32 v{vSt}, 0")
    q(f"v_mov_b32 v{vSt+1}, 0")
    q(f"buffer_store_dword v{vSt}, v{vEp}, {R(RDBG)}, 0 offen sc1")
    q(f"s_add_u32 s{sA}, s{sK4}, {L_EX2}")
    q(f"v_add_u32 v{t0}, s{sA}, v{vL16}")
    q(f"v_xor_b32 v{t1}, 4096, v{t0}")
    q(f"s_mul_i32 s{sA}, s{sRTf}, {28*1024}")
    q(f"s_lshl_b32 s{sB}, s{sTf}, 11")
    q(f"s_add_u32 s{sA}, s{sA}, s{sB}")
    q(f"s_add_u32 s{sA}, s{sA}, {WS_HF}")
    q(f"s_lshl_b32 s{sC}, s{sRTf}, 12")
    q(f"s_lshl_b32 s{sB}, s{sCT}, 9")
    q(f"s_add_u32 s{sC}, s{sC}, s{sB}")
    q(f"s_and_b32 s{sB}, s{sW}, 1")
    q(f"s_lshl_b32 s{sB}, s{sB}, 3")
    q(f"s_add_u32 s{sC}, s{sC}, s{sB}")
    q(f"s_add_u32 s{sC}, s{sC}, {WS_ST}")
    q(f"v_and_b32 v{t2}, 31, v1")
    q(f"v_lshlrev_b32 v{t2}, 4, v{t2}")
    q(f"v_lshl_add_u32 v{t2}, v{vHF}, 2, v{t2}")
    m = Prog()
    NDEF2 = OPT.get("ndef2", 5)
    for k in range(16):
        mfma(m, ACC + 16, WOF + 8 * k + 4, B + 4 * k, None if k == 0 else ACC + 16, ak="a")
        if k < 16 - NDEF2:
            mfma(m, ACC, WOF + 8 * k, B + 4 * k, XF if k == 0 else ACC, ak="a")
    o, rest = paced(m.items, bgP2, 2)
    assert not rest
    o, rest = weave(o, q.items, 24)
    p.add(o + rest)
    stamp(p, "p2mfma")
    for i_, k in enumerate(range(16 - NDEF2, 16)):
        mfma(p, ACC, WOF + 8 * k, B + 4 * k, ACC, ak="a")
        if i_ >= NDEF2 - 4:
            gg = i_ - (NDEF2 - 4)
            p(f"ds_write_b128 v{t0}, {q4(ACC+16+4*gg)} offset:{gg*1024}")
    p.barrier()
    for gg in range(4):
        p(f"ds_read_b128 {q4(RD+4*gg)}, v{t1} offset:{gg*1024}")
    for t in range(2):
        for j in range(8 * t, 8 * t + 8, 2):
            p(f"v_pk_add_f32 {pr(RD,j)}, {pr(RD,j)}, {pr(ACC,j)}")
        for j in range(8 * t, 8 * t + 8, 2):
            p(f"v_cvt_pk_bf16_f32 v{HRES+j//2}, v{RD+j}, v{RD+j+1}")
        p(f"buffer_store_dwordx4 {q4(HRES+4*t)}, v{vL16}, {R(RWS)}, s{sA} offen offset:{t*1024} sc1")
    for j in range(8):
        p(f"v_dot2c_f32_bf16 v{vSt}, v{HRES+j}, v{vOnes}")
        p(f"v_dot2c_f32_bf16 v{vSt+1}, v{HRES+j}, v{HRES+j}")
    p(f"v_permlane32_swap_b32 v{vSt}, v{vSt+1}")
    p(f"v_add_f32 v{vSt}, v{vSt}, v{vSt+1}")
    p(f"buffer_store_dword v{vSt}, v{t2}, {R(RWS)}, s{sC} offen sc1", tag="stC")
    stamp(p, "hstored")

    ra.release(base_mark)
    vAi = [ra() for _ in range(4)]
    vSo = [ra(), ra()]
    vK = ra(6, 2)
    YM = ra(4, 4)
    CM = ra(16, 4)
    ACC3 = ra(64, 4)
    AFR = ra(32, 4)
    G1 = ra(16, 4)
    STR = G1
    OB3 = ra(16, 4)
    CSP = OB3
    B2R = ra(8, 4)
    HA = 144
    if not SH:
        p.add(w2_move(0, 4))
    p(f"v_and_b32 v{t0}, 31, v1")
    p(f"v_mov_b32 v{vAi[0]}, v{vAi0}")
    p(f"v_xor_b32 v{vAi[1]}, 64, v{vAi0}")
    p(f"v_add_u32 v{vAi[2]}, {L_I[1]}, v{vAi[0]}")
    p(f"v_add_u32 v{vAi[3]}, {L_I[1]}, v{vAi[1]}")
    p(f"v_lshlrev_b32 v{t0}, 4, v{t0}")
    p(f"v_lshl_add_u32 v{vSo[0]}, v{vHF}, 9, v{t0}")
    p(f"v_lshl_add_u32 v{vSo[1]}, v{vHF}, 31, v{t0}")
    for T in range(4):
        p(f"v_accvgpr_read_b32 v{CM+4*T+2}, a{A_B1+T}")
    for j in range(8):
        p(f"v_accvgpr_read_b32 v{B2R+j}, a{A_B2+j}")
    p.wait_lgkm0()
    nc1 = OPT.get("nc1", 4)
    w2b_ = w2g(0, 4) if SH else w2g(4, 8)
    p.add(flat(w2b_[:nc1]))
    publish(p, g, 2, "stC")
    stamp(p, "pubC")
    p.add(sprinkle(colsum(1, AFR), w2b_[nc1:], 50, hide=0))
    p(f"s_lshl_b32 s{sA}, s{sW}, 9")
    p(f"s_add_u32 s{sA}, s{sA}, {L_MISC}")
    p(f"v_lshl_add_u32 v{t1}, v1, 3, s{sA}")
    p(f"ds_write_b64 v{t1}, {pr(vCs)}")
    if OPT.get("pc_early", 1):
        spoll_issue(p, 2)
    for T in range(4):
        p(f"v_mov_b32 v{CM+4*T+3}, v{CM+4*T+2}")
        p(f"v_lshl_or_b32 v{CM+4*T+2}, v{CM+4*T+2}, 16, v{CM+4*T+2}")
    p(f"s_mul_i32 s{sC}, s{sRT3}, {28*1024}")
    p(f"s_add_u32 s{sC}, s{sC}, {WS_HF}")
    p(f"s_lshl_b32 s{sD}, s{sRT3}, 12")
    p(f"s_add_u32 s{sD}, s{sD}, {WS_ST}")
    p(f"s_mul_i32 s{sH1a}, s{sRT3}, 28672")
    p(f"s_lshl_b32 s{sA}, s{sFT}, 11")
    p(f"s_add_u32 s{sH1a}, s{sH1a}, s{sA}")
    p(f"s_add_u32 s{sH1a}, s{sH1a}, {WS_H1F}")
    p(f"v_lshlrev_b32 v{t2}, 3, v1")
    p(f"v_add_u32 v{t2}, {L_MISC}, v{t2}")

    def trd(dst, T, ks, u):
        return Ins(f"ds_read_b64_tr_b16 {pr(dst)}, v{vAi[T]} offset:{(16*ks+8*u)*128}")

    def corr(T, first=False):
        q = Prog()
        mfma(q, ACC3 + 16 * T, CM + 4 * T, YM, None if first else ACC3 + 16 * T)
        return q.items

    def pass_parts(tiles, init):
        n = len(tiles)
        depth = 32 // (4 * n)
        pre = min(depth - 1, 3)

        def reads(ks):
            a = AFR + 4 * n * (ks % depth)
            return [trd(a + 4 * i + 2 * u, T, ks, u) for i, T in enumerate(tiles) for u in range(2)]
        head = [x for ks in range(pre) for x in reads(ks)]
        items = []
        for ks in range(28):
            nxt = reads(ks + pre) if ks + pre < 28 else []
            a = AFR + 4 * n * (ks % depth)
            for i, T in enumerate(tiles):
                acc = ACC3 + 16 * T
                cc = "0" if (ks == 0 and init) else q16(acc)
                items.append(Ins(f"v_mfma_f32_32x32x16_bf16 {q16(acc)}, {q4(a+4*i)}, a[{HA+4*ks}:{HA+4*ks+3}], {cc}"))
                items += nxt[2 * i:2 * i + 2]
        return head, items

    h1, b1_ = pass_parts([0, 1], True)
    p.add(h1)
    stamp(p, "cs1")
    if not OPT.get("pc_early", 1):
        spoll_issue(p, 2)
    p.barrier()
    spoll_check(p, 2, 14)
    stamp(p, "syncC")

    ldh = []
    for ks in range(28):
        q = Prog()
        q(f"buffer_load_dwordx4 a[{HA+4*ks}:{HA+4*ks+3}], v{vL16}, {R(RWS)}, s{sC} offen offset:{(ks&3)*1024} sc1")
        if (ks & 3) == 3 and ks < 27:
            q(f"s_add_u32 s{sC}, s{sC}, 4096")
        ldh.append(q.items)
    NH0 = OPT.get("nh0", 14)
    p.add(flat(ldh[:4]))
    for n_ in range(4):
        p(f"buffer_load_dwordx4 {q4(STR+4*n_)}, v{vSo[n_ == 3]}, {R(RWS)}, s{sD} offen offset:{n_*1024} sc1")
    x = Prog()
    for w2 in range(4):
        x(f"ds_read_b64 {pr(CSP,2*w2)}, v{t2} offset:{w2*512}")
    x.add(w2_move(0, 4) if SH else w2_move(4, 8))
    for T in range(4):
        x(f"v_add_f32 v{CSP+8+T}, v{CSP+2*(T&1)+(T>>1)}, v{CSP+4+2*(T&1)+(T>>1)}")
    for T in range(4):
        split_pair(x, CM + 4 * T, CSP + 8 + T, t1)
        x(f"v_mov_b32 v{CM+4*T+1}, v{CM+4*T}")
    p.add(sprinkle(x.items, ldh[4:NH0], 20, hide=0))
    st = Prog()
    for o_ in range(2):
        for n_ in range(4):
            st(f"v_add_f32 v{STR+4*n_+o_}, v{STR+4*n_+o_}, v{STR+4*n_+2+o_}")
        st(f"v_add_f32 v{STR+o_}, v{STR+o_}, v{STR+4+o_}")
        st(f"v_add_f32 v{STR+8+o_}, v{STR+8+o_}, v{STR+12+o_}")
        st(f"v_add_f32 v{STR+o_}, v{STR+o_}, v{STR+8+o_}")
    xhalf(st, "v_add_f32", STR, t0)
    xhalf(st, "v_add_f32", STR + 1, t1)
    st(f"v_mul_f32 v{STR}, {f32(-1.0/D)}, v{STR}")
    split_dup(st, YM, YM + 1, STR, t0)
    st(f"v_mul_f32 v{t2}, {f32(1.0/D)}, v{STR+1}")
    st(f"v_fma_f32 v{t2}, -v{STR}, v{STR}, v{t2}")
    st(f"v_max_f32 v{t2}, 0, v{t2}")
    st(f"v_add_f32 v{t3}, {f32(1e-5)}, v{t2}")
    st(f"v_fmac_f32 v{t2}, {f32(1e-5)}, v{t3}")
    st(f"v_rsq_f32 v{t3}, v{t2}")
    st(f"v_cvt_f32_u32 v{t0}, v{vHF}")
    st(f"v_mul_f32 v{vK+4}, v{t2}, v{t3}")
    K0 = math.sqrt(2.0 / math.pi)
    c1 = -2.0 * K0 * LOG2E
    c2 = c1 * 0.044715
    st(f"v_fma_f32 v{t0}, -v{t0}, v{vK+4}, v{vK+4}")
    st(f"v_cvt_pk_bf16_f32 v{t1}, v{t0}, v{t0}")
    st(f"v_and_b32 v{t1}, 0xffff0000, v{t1}")
    st(f"v_sub_f32 v{t1}, v{t0}, v{t1}")
    st(f"v_cvt_pk_bf16_f32 v{YM+2}, v{t0}, v{t1}")
    st(f"v_and_b32 v{t2}, 0xffff0000, v{YM+2}")
    st(f"v_sub_f32 v{t1}, v{t1}, v{t2}")
    st(f"v_cvt_pk_bf16_f32 v{YM+3}, v{t1}, v{t1}")
    st(f"v_mul_f32 v{vK}, {f32(c1)}, v{t3}")
    st(f"v_mul_f32 v{t2}, v{t3}, v{t3}")
    st(f"v_mul_f32 v{t2}, v{t2}, v{t3}")
    st(f"v_mul_f32 v{vK+2}, {f32(c2)}, v{t2}")
    vH1 = vW1
    st(f"s_mul_i32 s{sA}, s{sRTf}, 28672")
    st(f"s_add_u32 s{sA}, s{sA}, {WS_H1F}")
    st(f"s_xor_b32 s{sD2}, s{sRTf}, 1")
    st(f"s_mul_i32 s{sD2}, s{sD2}, 28672")
    st(f"s_add_u32 s{sD2}, s{sD2}, {WS_H1F}")
    st(f"v_add_u32 v{vH1[0]}, s{sA}, v{vL16}")
    st(f"v_add_u32 v{vH1[1]}, s{sD2}, v{vL16}")
    st(f"v_add_u32 v{vH1[0]}, s{sK1}, v{vH1[0]}")
    st(f"v_add_u32 v{vH1[1]}, s{sK1}, v{vH1[1]}")
    nl = 28 - NH0
    part1 = b1_[:6 * nl]
    o1 = []
    for i_ in range(nl):
        o1 += part1[6 * i_:6 * i_ + 3] + [ldh[NH0 + i_]] + part1[6 * i_ + 3:6 * i_ + 6]
    o, rest = weave(o1, st.items, 24)
    p.add(o)
    o, rest = weave(b1_[6 * nl:-12], rest + (w2g(4, 8) if SH else w2g(8, 12)), 28)
    p.add(o + rest)
    p.add(corr(0) + corr(1))
    p.add(b1_[-12:])
    h2, b2_ = pass_parts([2], False)
    h3, b3_ = pass_parts([3], False)
    p.add(corr(2, True))
    p.add(h2)
    p.add(corr(3, True))
    p("s_barrier")
    stamp(p, "p3pass1")

    def gelu(T):
        q = Prog()
        acc = ACC3 + 16 * T
        ob = OB3 + 8 * (T & 1)
        for half in range(2):
            js = range(8 * half, 8 * half + 8)
            for j in js[::2]:
                q(f"v_pk_mul_f32 {pr(G1,j)}, {pr(acc,j)}, {pr(acc,j)}")
            for j in js[::2]:
                q(f"v_pk_fma_f32 {pr(G1,j)}, {pr(G1,j)}, {pr(vK+2)}, {pr(vK)} op_sel_hi:[1,0,0]")
            for j in js[::2]:
                q(f"v_pk_mul_f32 {pr(G1,j)}, {pr(G1,j)}, {pr(acc,j)}")
            for j in js:
                q(f"v_exp_f32 v{G1+j}, v{G1+j}")
            for j in js[::2]:
                q(f"v_pk_fma_f32 {pr(G1,j)}, {pr(G1,j)}, {pr(vK+4)}, {pr(vK+4)} op_sel_hi:[1,0,0]")
            for j in js:
                q(f"v_rcp_f32 v{G1+j}, v{G1+j}")
            for j in js[::2]:
                q(f"v_pk_mul_f32 {pr(G1,j)}, {pr(G1,j)}, {pr(acc,j)}")
            for j in js[::2]:
                q(f"v_cvt_pk_bf16_f32 v{ob+j//2}, v{G1+j}, v{G1+j+1}")
            q(f"buffer_store_dwordx4 {q4(ob+4*half)}, v{vL16}, {R(RWS)}, s{sH1a} offen offset:{half*1024} sc1", tag=f"stD{T}")
        q(f"s_add_u32 s{sH1a}, s{sH1a}, {H1S}")
        return q.items

    def pub(sync, tag):
        q = Prog()
        q.wait_vm(tag)
        q("s_barrier")
        flag(q, g, sync)
        return q.items

    def bslot(j):
        return 64 + 8 * j if j < 24 else 64 + 8 * (j - 24)

    def ldB(j0, j1):
        gs = []
        for j in range(j0, j1):
            for jn in range(2):
                r = bslot(j) + 4 * jn
                gs.append(([Ins(f"s_mov_b32 s{sH1b}, {(j // 7) * H1S + (j % 7) * 4096}")] if jn == 0 else []) +
                          [Ins(f"buffer_load_dwordx4 a[{r}:{r+3}], v{vH1[jn]}, {R(RWS)}, s{sH1b} offen sc1")])
        return gs

    def mf_split(items, n):
        idx = [i for i, it in enumerate(items) if isinstance(it, Ins) and it.kind == "mfma"]
        return items[:idx[n]], items[idx[n]:]

    wA = w2g(12, 21)
    ng01 = OPT.get("ng01", 4)
    gi = sprinkle(gelu(0) + gelu(1), wA[:ng01], OPT.get("sg01", 100), start=OPT.get("st01", 20), hide=0)
    p.add(gi)
    if SH:
        p.add(w2_move(4, 8))
        wA = wA + w2g(8, 12)
    p.add(pub(3, "stD0"))
    stamp(p, "g01")
    o, rest = paced(b2_ + h3, wA[ng01:], 2, OPT.get("f2", 0))
    oa, ob_ = mf_split(o, OPT.get("pd1", 24))
    p.add(oa + pub(4, "stD1") + ob_)
    stamp(p, "p3pass2")
    g2 = sprinkle(gelu(2), rest, 64, hide=0)
    pi0 = len(g2) * OPT.get("pi0", 0) // 100
    p.add(g2[:pi0])
    poll_issue(p, g, 3, 14)
    p.add(g2[pi0:])
    stamp(p, "g2")
    hb = Prog()
    HB = ACC3
    for j in range(8):
        hb(f"v_lshlrev_b32 v{t0}, 16, v{HRES+j}")
        hb(f"v_and_b32 v{t1}, 0xffff0000, v{HRES+j}")
        hb(f"v_lshlrev_b32 v{t2}, 16, v{B2R+j}")
        hb(f"v_and_b32 v{HB+2*j+1}, 0xffff0000, v{B2R+j}")
        hb(f"v_add_f32 v{HB+2*j}, v{t0}, v{t2}")
        hb(f"v_add_f32 v{HB+2*j+1}, v{t1}, v{HB+2*j+1}")
    def pissue(sync):
        q = Prog()
        poll_issue(q, g, sync, 14)
        return q.items

    def pcheck(sync, nm):
        q = Prog()
        poll_check(q, g, sync)
        stamp(q, nm)
        return q.items
    pc0 = OPT.get("pc0", 2)
    s0, s1 = mf_split(b3_, pc0)
    p.add(s0 + pcheck(3, "syncD0"))
    L0, L1, L2, L3 = ldB(0, 7), ldB(7, 14), ldB(14, 21), ldB(21, 28)
    lead = OPT.get("lead", 6)
    vq = L0[:14 - lead] + [pissue(4)] + L0[14 - lead:] + [pcheck(4, "syncD1") + L1[0]] + L1[1:6]
    nb3 = OPT.get("nb3", 0)
    p.add(flat(vq[:nb3]))
    o, rest1 = paced(s1, vq[nb3:], 2, 1)
    o, rest = weave(o, hb.items, 24)
    oa, ob_ = mf_split(o, OPT.get("pd2", 22) - pc0)
    p.add(oa + pub(5, "stD2") + ob_ + rest)
    p("s_barrier")
    stamp(p, "p3pass3")
    wC = w2g(21, 28)
    nC1 = OPT.get("nC1", 4)
    mid = L1[6:] + wC[:nC1]
    bgq = rest1 + mid[:max(0, len(mid) - lead)] + [pissue(5)] + mid[max(0, len(mid) - lead):] + [pcheck(5, "syncD2") + L2[0]] + L2[1:] + wC[nC1:]
    ng3 = OPT.get("ng3", 8)
    p.add(sprinkle(gelu(3), bgq[:ng3], 64, hide=0))
    bgq = bgq[ng3:]
    stamp(p, "h1stored")

    AF4 = AFR
    ACC4 = ACC3
    AKEEP = [CM, CM + 4, CM + 8, CM + 12, B2R, B2R + 4, YM]
    vOo = vAi[0]
    RD4 = [AFR, AFR + 16, G1]
    OB4 = OB3

    def a_regs(j):
        if j < 8:
            return "a", 8 * j, 8 * j + 4
        a = AF4 + 8 * (j & 3)
        return "v", (AKEEP[j - 21] if j >= 21 else a), a + 4

    pd3, pi3, pc3 = OPT.get("pd3", 5), OPT.get("pi3", 12), OPT.get("pc3", 16)
    for j in range(28):
        if j == pd3:
            p.add(pub(6, "stD3"))
        if j == pi3:
            poll_issue(p, g, 6, 14)
        if j == pc3:
            p.add(flat(bgq))
            p.add(pcheck(6, "syncD3"))
            bgq = list(L3)
        if j == 21:
            p("s_barrier")
        kind, a0, a1 = a_regs(j)
        rd = []
        if 8 <= j + 3 < 28:
            _, r0, r1 = a_regs(j + 3)
            rd = w2_read(j + 3, [r0, r1], "v")
        k = 0
        for jn in range(2):
            for jm in range(2):
                if j >= 21 and jm == 0 and jn == 0:
                    continue
                acc = ACC4 + 16 * (jm + 2 * jn)
                cin = acc if (j > 0 or (jm == 0 and jn == 0)) else None
                mfma(p, acc, [a0, a1][jm], bslot(j) + 4 * jn, cin, ak=kind, bk="a")
                take = (0, 2) if j < pc3 else (0, 1, 2)
                if OPT.get("p4take", 2) == 3:
                    take = (0, 1, 2)
                if k in take and bgq:
                    p.add(bgq.pop(0))
                if jm == 1 and jn == 1:
                    p.add(rd)
                k += 1
        if j in (13, 20):
            stamp(p, f"p4j{j}")
    assert not bgq
    stamp(p, "p4mfma")
    wr = Prog()
    for j in range(1, 4):
        wr(f"s_xor_b32 s{sA}, s{sW}, {j}")
        wr(f"s_mul_i32 s{sA}, s{sA}, 12288")
        wr(f"v_add_u32 v{[t0, t1, t2][j-1]}, s{sA}, v{vL16}")
    wr(f"s_mul_i32 s{sA}, s{sW}, 12288")
    wr(f"v_add_u32 v{t3}, s{sA}, v{vL16}")
    for j in range(1, 4):
        for gg in range(4):
            wr(f"ds_write_b128 v{[t0, t1, t2][j-1]}, {q4(ACC4+16*j+4*gg)} offset:{(j-1)*4096+gg*1024}")
    m = Prog()
    for j in range(21, 28):
        mfma(m, ACC4, AKEEP[j - 21], bslot(j), ACC4, bk="a")
    wi = wr.items
    p.add(m.items[:1] + wi[:6] + m.items[1:2] + wi[6:11])
    for i_ in range(5):
        p.add(m.items[2 + i_:3 + i_] + wi[11 + i_:12 + i_])
    p.add(wi[16:])
    p(f"v_and_b32 v{t0}, 31, v1")
    p(f"v_mul_u32_u24 v{t0}, 896, v{t0}")
    p(f"v_lshl_add_u32 v{vOo}, v{vHF}, 4, v{t0}")
    p(f"s_mul_i32 s{sA}, s{sRTf}, {32*896}")
    p(f"s_lshl_b32 s{sB}, s{sTf}, 6")
    p(f"s_add_u32 s{sA}, s{sA}, s{sB}")
    p.barrier()
    stamp(p, "p4ex")
    for half in range(2):
        for gg in range(2 * half, 2 * half + 2):
            for j in range(3):
                p(f"ds_read_b128 {q4(RD4[j]+4*gg)}, v{t3} offset:{j*4096+gg*1024}")
    for half in range(2):
        js = range(8 * half, 8 * half + 8, 2)
        for j in js:
            p(f"v_pk_add_f32 {pr(ACC4,j)}, {pr(ACC4,j)}, {pr(RD4[0],j)}")
            p(f"v_pk_add_f32 {pr(RD4[1],j)}, {pr(RD4[1],j)}, {pr(RD4[2],j)}")
        for j in js:
            p(f"v_pk_add_f32 {pr(ACC4,j)}, {pr(ACC4,j)}, {pr(RD4[1],j)}")
        for j in js:
            p(f"v_cvt_pk_bf16_f32 v{OB4+j//2}, v{ACC4+j}, v{ACC4+j+1}")
        p(f"v_permlane32_swap_b32 v{OB4+4*half}, v{OB4+4*half+2}")
        p(f"v_permlane32_swap_b32 v{OB4+4*half+1}, v{OB4+4*half+3}")
        p(f"buffer_store_dwordx4 {q4(OB4+4*half)}, v{vOo}, {R(ROUT)}, s{sA} offen offset:{32*half}")
    p("s_branch L_fin")
    p("L_idle:")
    p(f"s_sub_u32 s{sA}, s{sI}, 28")
    p(f"s_lshl_b32 s{sA}, s{sA}, 2")
    p(f"s_add_u32 s{sA}, s{sA}, s{sW}")
    idle = OPT.get("idle", 2)
    if idle == 1:
        p(f"s_lshl_b32 s{sA}, s{sA}, 13")
        p(f"v_lshl_add_u32 v{vTch}, v1, 7, s{sA}")
        for k in range(13):
            p(f"s_mov_b32 s{sA}, {k << 17}")
            p(f"buffer_load_dword a116, v{vTch}, {R(RW2)}, s{sA} offen")
    elif idle == 2:
        p(f"s_mul_i32 s{sA}, s{sA}, {128*896}")
        p(f"v_lshl_add_u32 v{vTch}, v1, 7, s{sA}")
        for k in range(OPT.get("nidle", 14)):
            p(f"s_mov_b32 s{sA}, {k*8192}")
            p(f"buffer_load_dword a116, v{vTch}, {R(RW2)}, s{sA} offen")
    p("L_fin:")
    p("s_waitcnt vmcnt(0)")
    stamp_flush(p)
    if PROBE:
        stamp(p, "end")
        p.raw("""
    v_readlane_b32 s12, v255, 1
    s_nop 4
    s_add_u32 s12, s12, 4000
L_pad:
    s_sleep 2
    s_memrealtime s[100:101]
    s_waitcnt lgkmcnt(0)
    s_sub_u32 s13, s100, s12
    s_cmp_lt_i32 s13, 0
    s_cbranch_scc1 L_pad
""")
    body = finalize(flat(p.items), name)
    txt = [f".globl {name}_kernel", ".p2align 8", f".type {name}_kernel,@function", f"{name}_kernel:"]
    txt += body
    txt += ["    s_endpgm"] + SLOW + ["L_end:", "    s_endpgm"]
    kd = f""".amdhsa_kernel {name}_kernel
  .amdhsa_next_free_vgpr 512
  .amdhsa_next_free_sgpr 102
  .amdhsa_accum_offset 256
  .amdhsa_group_segment_fixed_size 0
  .amdhsa_kernarg_size 96
  .amdhsa_user_sgpr_count 2
  .amdhsa_user_sgpr_kernarg_segment_ptr 1
  .amdhsa_system_sgpr_workgroup_id_x 1
.end_amdhsa_kernel"""
    return "\n".join(txt), kd


def main(out):
    body, kd = gen()
    hdr = open("cdna_kernels/" + NAME + ".s.ref").read().split("; Override launch")[0]
    txt = hdr
    txt += f"; @launch grid=(256,1,1) block=(256,1,1) lds={LDS_BYTES}\n"
    if DIAG:
        txt += "; stamps: " + ",".join(STNAMES) + "\n"
    txt += '.amdgcn_target "amdgcn-amd-amdhsa--gfx950"\n.text\n'
    txt += body + "\n"
    txt += '.section .rodata,"a"\n.p2align 6\n' + kd + "\n"
    open(out, "w").write(txt)


if __name__ == "__main__":
    for a in sys.argv[2:]:
        if a == "diag":
            DIAG = True
        elif a.startswith("probe="):
            PROBE = a[6:]
        elif "=" in a:
            k, v = a.split("=")
            OPT[k] = int(v)
    main(sys.argv[1])
```

```python
import sys, math, struct
from dsl import *

NAME = "sequential_preLN__linear_kernel_hedgehog__mixer_channel_mlp__prompt"
S, D, H, DH, F = 2048, 448, 16, 28, 1792

WS_KVP = 0
WS_FLAG = 1 << 20
WS_ST = (1 << 20) + (512 << 10)
WS_OF = 2 << 20
WS_HF = 4 << 20
WS_H1F = 6 << 20
H1S = 64 * 28672
WS_TS = 32 << 20
WS_SIZE = 256 << 20

LOG2E = 1.4426950408889634
DIAG = False
OPT = {}


def f32(x):
    return "0x%08x" % struct.unpack("<I", struct.pack("<f", x))[0]


SX, SWQKV, SWPHI, SWO, SBX, SW1, SB1, SW2, SB2, SOUT, SDBG, SWS = [16 + 2 * i for i in range(12)]
RX, RWQKV, RWPHI, RWO, RB1, RWS, RW1, RW2, RB2, ROUT, RDBG = 40, 44, 48, 52, 56, 60, 64, 68, 72, 76, 80
SPOLL = 44
sI, sW = 3, 4
sH, sRB, sRT = 5, 6, 7
sCT, sRB64 = 8, 9
sFT, sRB3 = 10, 11
sA, sB, sC, sD = 12, 13, 14, 15
sK1, sK2, sWOl, sRTf, sTf, sRT3 = 16, 17, 18, 19, 20, 21
sTag = 22
sW2src, sWOsrc, sK4, sT1 = 24, 25, 26, 27
sPo, sW2src2, sWo2, sC2, sD2, sH1a, sH1b = 28, 29, 30, 31, 32, 33, 34
sW1a, sW1c = 35, 36
sFo = [37, 38, 39, 24]
sPi = [27, 28, 31]
sCx, sCw, sRot, sSh, sXRb, sXbeg, sXend, sWbeg = 84, 85, 86, 87, 88, 89, 90, 91
TBL = [84, 85, 86, 87, 88, 89, 90, 91, 93, 94, 95, 96, 97, 98]
sBG, sE = 92, 99
sCw2, sWend = 93, 94
sMk = 96

L_WK, L_WV, L_WQ, L_XR, L_WPHI, L_MISC = 0, 28672, 57344, 86016, 151552, 155648
L_PK, L_VF, L_WO = 0, 155648, 86016
L_I = [0, 57344]
L_EX2 = 147456
L_CSX = 147456
LDS_BYTES = 163840
A_XRES, A_B2, A_B1 = 96, 104, 112


def R(r):
    return f"s[{r}:{r+3}]"


def srd(p, d, src, nbytes):
    p(f"s_mov_b32 s{d}, s{src}")
    p(f"s_mov_b32 s{d+1}, s{src+1}")
    p(f"s_mov_b32 s{d+2}, {nbytes}")
    p(f"s_mov_b32 s{d+3}, 0x00020000")


NST = [0]
STNAMES = []


PROBE = None


def stamp(p, label=""):
    if PROBE and label == PROBE:
        p("s_memrealtime s[100:101]")
        p("v_writelane_b32 v255, s100, 1")
    if not DIAG:
        return
    if OPT.get("cnt") and label not in ("start", "end"):
        if label.startswith("sync"):
            i = NST[0]
            NST[0] += 1
            STNAMES.append(label)
            p(f"v_writelane_b32 v255, s{sB}, {i}")
        return
    i = NST[0]
    NST[0] += 1
    STNAMES.append(label)
    assert i < 64
    p("s_memtime s[100:101]" if OPT.get("cyc") else "s_memrealtime s[100:101]")
    p(f"v_writelane_b32 v255, s100, {i}")


def stamp_flush(p):
    if not DIAG:
        return
    stamp(p, "end")
    p(f"s_lshl_b32 s{sA}, s2, 2")
    p(f"s_add_u32 s{sA}, s{sA}, s{sW}")
    p(f"s_lshl_b32 s{sA}, s{sA}, 8")
    p(f"s_add_u32 s{sA}, s{sA}, {WS_TS}")
    p("v_lshlrev_b32 v2, 2, v1")
    p(f"buffer_store_dword v255, v2, {R(RWS)}, s{sA} offen")


def xhalf(p, op, a, t):
    p(f"v_mov_b32 v{t}, v{a}")
    p(f"v_permlane32_swap_b32 v{a}, v{t}")
    p(f"{op} v{a}, v{a}, v{t}")


def pr(r, j=0, k="v"):
    return f"{k}[{r+j}:{r+j+1}]"


def q4(r, k="v"):
    return f"{k}[{r}:{r+3}]"


def q16(r):
    return f"v[{r}:{r+15}]"


def mfma(p, d, a, b, c=None, ak="v", bk="v"):
    cc = "0" if c is None else q16(c)
    p(f"v_mfma_f32_32x32x16_bf16 {q16(d)}, {q4(a, ak)}, {q4(b, bk)}, {cc}")


def dma_group(voff, srdreg, sbase, soff, slds, ldsoff, tag):
    return [Ins(f"s_add_u32 m0, s{slds}, {ldsoff}"),
            Ins(f"s_add_u32 s{sBG}, s{sbase}, {soff}"),
            Ins(f"buffer_load_dwordx4 v{voff}, {R(srdreg)}, s{sBG} offen lds", tag)]


def dma_run(voffs, srdreg, sbase, soff0, sstep, slds, lds0, a, b, tag):
    gs = []
    for j in range(a, b):
        grp = []
        if (j & 3) == 0 or j == a:
            grp.append(Ins(f"s_add_u32 m0, s{slds}, {lds0 + (j & ~3)*1024}"))
            grp.append(Ins(f"s_add_u32 s{sBG}, s{sbase}, {soff0 + (j & ~3)*sstep}"))
        grp.append(Ins(f"buffer_load_dwordx4 v{voffs[j & 3]}, {R(srdreg)}, s{sBG} offen offset:{(j & 3)*1024} lds", tag))
        gs.append(grp)
    return gs


def weave(mf, fill, budget=24):
    out, pos = [], 0
    n = len(mf)
    cost = lambda f: sum(est_cost(x) for x in f) if isinstance(f, list) else est_cost(f)
    spent = 0
    for i, it in enumerate(mf):
        out.append(it)
        if isinstance(it, Ins) and it.kind == "mfma":
            spent = 0
        else:
            spent += cost(it)
        nxt_is_mfma = (i + 1 == n) or (isinstance(mf[i + 1], Ins) and mf[i + 1].kind == "mfma")
        if nxt_is_mfma:
            b = budget - spent
            took = False
            while pos < len(fill) and (cost(fill[pos]) <= b or (not took and spent == 0)):
                b -= cost(fill[pos])
                out.append(fill[pos])
                pos += 1
                took = True
    return out, fill[pos:]


def paced(mf, groups, every, first=0):
    out, k, n = [], 0, 0
    for i, it in enumerate(mf):
        out.append(it)
        last = (i + 1 == len(mf)) or (isinstance(mf[i + 1], Ins) and mf[i + 1].kind == "mfma")
        if last:
            if n >= first and (n - first) % every == 0 and k < len(groups):
                out.append(groups[k])
                k += 1
            n += 1
    return out, groups[k:]


def split_pair(p, dst, x, t):
    p(f"v_cvt_pk_bf16_f32 v{t}, v{x}, v{x}")
    p(f"v_and_b32 v{t}, 0xffff0000, v{t}")
    p(f"v_sub_f32 v{t}, v{x}, v{t}")
    p(f"v_cvt_pk_bf16_f32 v{dst}, v{x}, v{t}")


def split_dup(p, dhi, dlo, x, t):
    p(f"v_cvt_pk_bf16_f32 v{dhi}, v{x}, v{x}")
    p(f"v_and_b32 v{t}, 0xffff0000, v{dhi}")
    p(f"v_sub_f32 v{t}, v{x}, v{t}")
    p(f"v_cvt_pk_bf16_f32 v{dlo}, v{t}, v{t}")


def masked(lo, hi, lines):
    q = Prog()
    q(f"s_mov_b32 exec_lo, {lo}")
    q(f"s_mov_b32 exec_hi, {hi}")
    for l in lines:
        q(l)
    q("s_mov_b64 exec, -1")
    return q.items


def sm_parts(P, E, OUT, vsc, T):
    mx, mn, t0, t1 = T, T + 1, T + 2, T + 4
    r = {}
    q = Prog()
    q(f"v_max3_f32 v{mx}, v{P}, v{P+1}, v{P+2}")
    q(f"v_min3_f32 v{mn}, v{P}, v{P+1}, v{P+2}")
    for j in range(3, 13, 2):
        q(f"v_max3_f32 v{mx}, v{mx}, v{P+j}, v{P+j+1}")
        q(f"v_min3_f32 v{mn}, v{mn}, v{P+j}, v{P+j+1}")
    q(f"v_max_f32 v{mx}, v{mx}, v{P+13}")
    q(f"v_max_f32 v{mn}, -v{mn}, -v{P+13}")
    q(f"v_mov_b32 v{OUT+7}, 0")
    q(f"v_mov_b32 v{OUT+15}, 0")
    q(f"v_permlane32_swap_b32 v{mx}, v{mn}")
    q(f"v_max_f32 v{mx}, v{mx}, v{mn}")
    q(f"v_mul_f32 v{t0}, v{mx}, v{vsc}")
    q(f"v_mul_f32 v{t1}, v{mx}, v{vsc}")
    q("s_nop 1")
    q(f"v_permlane32_swap_b32 v{t0}, v{t1}")
    r["max"] = q.items
    q = Prog()
    for j in range(0, 14, 2):
        q(f"v_pk_fma_f32 {pr(E,j)}, {pr(P,j)}, {pr(vsc)}, {pr(t0)} op_sel_hi:[1,0,0] neg_lo:[0,0,1] neg_hi:[0,0,1]")
        q(f"v_pk_fma_f32 {pr(E+14,j)}, {pr(P,j)}, {pr(vsc)}, {pr(t1)} op_sel_hi:[1,0,0] neg_lo:[1,0,1] neg_hi:[1,0,1]")
    r["fma"] = q.items
    r["exp"] = [Ins(f"v_exp_f32 v{E+j}, v{E+j}") for j in range(28)]
    q = Prog()
    q(f"v_pk_add_f32 {pr(t0)}, {pr(E)}, {pr(E,2)}")
    q(f"v_pk_add_f32 {pr(t1)}, {pr(E+14)}, {pr(E+14,2)}")
    for j in range(4, 14, 2):
        q(f"v_pk_add_f32 {pr(t0)}, {pr(t0)}, {pr(E,j)}")
        q(f"v_pk_add_f32 {pr(t1)}, {pr(t1)}, {pr(E+14,j)}")
    r["add"] = q.items
    q = Prog()
    q(f"v_add_f32 v{mx}, v{t0}, v{t0+1}")
    q(f"v_add_f32 v{mn}, v{t1}, v{t1+1}")
    q("s_nop 1")
    q(f"v_permlane32_swap_b32 v{mx}, v{mn}")
    q(f"v_add_f32 v{mx}, v{mx}, v{mn}")
    q(f"v_rcp_f32 v{t0}, v{mx}")
    q(f"v_rcp_f32 v{t1}, v{mx}")
    q("s_nop 1")
    q(f"v_permlane32_swap_b32 v{t0}, v{t1}")
    r["rcp"] = q.items
    r["mul"] = [Ins(f"v_pk_mul_f32 {pr(E+14*sg,j)}, {pr(E+14*sg,j)}, {pr([t0, t1][sg])} op_sel_hi:[1,0]") for sg in range(2) for j in range(0, 14, 2)]
    r["cvt"] = [Ins(f"v_cvt_pk_bf16_f32 v{OUT+8*sg+j//2}, v{E+14*sg+j}, v{E+14*sg+j+1}") for sg in range(2) for j in range(0, 14, 2)]
    return r


class G:
    pass


def flag(p, g, sync):
    if sync > 3:
        p(f"s_add_u32 s{sFo[3]}, s{sFo[3]}, 32768")
    p(f"buffer_store_dword v{g.vTag}, v{g.vFl}, {R(RWS)}, s{sFo[min(sync, 3)]} offen sc1")


def publish(p, g, sync, store_tag):
    p.wait_vm(store_tag)
    p.barrier()
    flag(p, g, sync)


SLOW = []


def _scmp(n):
    np_ = n // 2
    x = "\n".join(f"s_xor_b64 s[{SPOLL+2*k}:{SPOLL+2*k+1}], s[{SPOLL+2*k}:{SPOLL+2*k+1}], s[{sTag}:{sTag+1}]" for k in range(np_))
    o = "\n".join(f"s_or_b64 s[{SPOLL}:{SPOLL+1}], s[{SPOLL}:{SPOLL+1}], s[{SPOLL+2*k}:{SPOLL+2*k+1}]" for k in range(1, np_))
    return x + "\n" + o


def spoll_issue(p, sync):
    p(f"s_load_dwordx16 s[{SPOLL}:{SPOLL+15}], s[0:1], s{sPi[sync]} glc")


def spoll_check(p, sync, n):
    p(f"s_mov_b32 s{sB}, 0")
    p.wait_lgkm0()
    p.raw(f"""
{_scmp(n)}
    s_cbranch_scc1 L_sp{sync}
L_sp{sync}_done:
""", pad=False)
    SLOW.append(f"""
L_sp{sync}:
    s_load_dwordx16 s[{SPOLL}:{SPOLL+15}], s[0:1], s{sPi[sync]} glc
    s_add_u32 s{sB}, s{sB}, 1
    s_waitcnt lgkmcnt(0)
{_scmp(n)}
    s_cbranch_scc0 L_sp{sync}_done
    s_cmp_lt_u32 s{sB}, 0x10000
    s_cbranch_scc1 L_sp{sync}
    s_branch L_sp{sync}_done
""")


def poll_issue(p, g, sync, n):
    p(f"s_add_u32 s{sPi[1]}, s{sPi[1]}, {65536 if sync == 3 else 32768}")
    p(f"buffer_load_dword v{g.vPT}, v{g.vPo}, {R(RWS)}, s{sPi[1]} offen sc1")


def poll_check(p, g, sync):
    t = g.vPT
    p.raw(f"""
    v_cmp_ne_u32 vcc, v{t}, v{g.vTag}
    s_mov_b32 s{sB}, 0
    s_cbranch_vccnz L_poll{sync}
L_poll{sync}_done:
""", uses=[f"v{g.vPo}", f"v{g.vTag}", f"v{t}"], defs=[f"v{t}"], pad=False)
    SLOW.append(f"""
L_poll{sync}:
    buffer_load_dword v{t}, v{g.vPo}, {R(RWS)}, s{sPi[1]} offen sc1
    s_waitcnt vmcnt(0)
    v_cmp_ne_u32 vcc, v{t}, v{g.vTag}
    s_add_u32 s{sB}, s{sB}, 1
    s_cbranch_vccz L_poll{sync}_done
    s_cmp_lt_u32 s{sB}, 0x10000
    s_cbranch_scc1 L_poll{sync}
    s_branch L_poll{sync}_done
""")


def mod7(q, r, tmp):
    q.items.append([Ins(f"s_sub_u32 s{tmp}, s{r}, 7"), Ins(f"s_cmp_ge_u32 s{r}, 7"), Ins(f"s_cselect_b32 s{r}, s{tmp}, s{r}")])


def gen():
    p = Prog()
    g = G()
    name = NAME
    p("s_cmp_ge_u32 s2, 256")
    p(f"s_cbranch_scc1 L_end")
    if PROBE:
        p("s_memrealtime s[100:101]")
        p("v_writelane_b32 v255, s100, 0")
        p("v_writelane_b32 v255, s100, 1")
    p("s_load_dwordx16 s[16:31], s[0:1], 0")
    p("s_load_dwordx8 s[32:39], s[0:1], 64")
    p("s_getpc_b64 s[96:97]")
    p("L_pc:")
    p("v_lshrrev_b32 v1, 6, v0")
    p(f"s_lshr_b32 s{sI}, s2, 3")
    p(f"v_readfirstlane_b32 s{sW}, v1")
    p("v_and_b32 v1, 63, v0")
    ra = RegAlloc(2, 255)
    t0, t1, t2, t3 = ra(), ra(), ra(), ra()
    vL16 = ra()
    g.vTag, g.vPT, g.vPo = ra(), ra(), ra()
    g.vFl = ra()
    vR, vMC, vHF, vOnes = ra(), ra(), ra(), ra()
    vW64 = [ra() for _ in range(4)]
    vW1 = [ra() for _ in range(4)]
    vEp, vTch = ra(), ra()
    PHQ = ra(16, 4)
    HRES = PHQ + 8
    p1_mark = ra.mark()
    vCs = ra(2, 2)
    vAw, vAi0 = ra(), ra()
    vB4 = [[ra(), ra()] for _ in range(3)]
    base_mark = ra.mark()
    assert base_mark - p1_mark <= 11
    ra.release(p1_mark)
    vX = [ra() for _ in range(4)]
    vWk, vWv, vWq = ra(), ra(), ra()
    vXr = [ra() for _ in range(4)]
    vAw4 = [ra() for _ in range(4)]
    vAq4 = vAw4
    vAphi, vApk, vBv, vPkw, vMisc, vMr, vCx, vCr = [ra() for _ in range(8)]
    vS, vQ, vCk, vCv, vCq = [ra() for _ in range(5)]
    vSelL, vSelH = vS, vQ
    vRS, vSC = ra(2, 2), ra(2, 2)
    T = ra(6, 2)
    XM, CMk, CMv = ra(4, 4), ra(4, 4), ra(4, 4)
    X = [ra(16, 4) for _ in range(4)]
    WF = ra(32, 4)
    AK, AV = ra(16, 4), ra(16, 4)
    E = ra(28, 4)
    PH = 48
    p(f"s_and_b32 s{sB}, s2, 3")
    p(f"s_lshl_b32 s{sB}, s{sB}, 2")
    p(f"s_and_b32 s{sRB}, s{sI}, 3")
    p(f"s_lshr_b32 s{sH}, s{sI}, 2")
    p(f"s_lshl_b32 s{sRot}, s{sRB}, 1")
    p(f"s_add_u32 s{sRot}, s{sRot}, s{sH}")
    mod7(p, sRot, sC)
    if not OPT.get("rot", 1):
        p(f"s_mov_b32 s{sRot}, 0")
    p(f"s_add_u32 s{sRB}, s{sRB}, s{sB}")
    p(f"s_and_b32 s{sB}, s2, 4")
    p(f"s_lshl_b32 s{sB}, s{sB}, 1")
    p(f"s_add_u32 s{sH}, s{sH}, s{sB}")
    p(f"s_lshl_b32 s{sRT}, s{sRB}, 2")
    p(f"s_add_u32 s{sRT}, s{sRT}, s{sW}")
    p(f"v_lshrrev_b32 v{t0}, 3, v1")
    p(f"v_mul_u32_u24 v{t3}, 896, v{t0}")
    p(f"v_and_b32 v{t1}, 7, v1")
    p(f"v_lshrrev_b32 v{t2}, 4, v1")
    p(f"v_xor_b32 v{t1}, v{t1}, v{t2}")
    p(f"v_lshl_add_u32 v{vX[0]}, v{t1}, 4, v{t3}")
    p(f"v_xor_b32 v{vX[1]}, 64, v{vX[0]}")
    p(f"v_add_u32 v{vX[1]}, {8*896-1024}, v{vX[1]}")
    p(f"v_add_u32 v{vX[2]}, {16*896-2048}, v{vX[0]}")
    p(f"v_add_u32 v{vX[3]}, {16*896-2048}, v{vX[1]}")
    p(f"v_lshrrev_b32 v{t0}, 2, v1")
    p(f"v_mul_u32_u24 v{t0}, 2688, v{t0}")
    p(f"v_and_b32 v{t1}, 3, v1")
    p(f"v_lshl_add_u32 v{vWq}, v{t1}, 4, v{t0}")
    p(f"v_add_u32 v{vWk}, 896, v{vWq}")
    p(f"s_mul_i32 s{sXbeg}, s{sRT}, {32*896}")
    p(f"s_add_u32 s{sXend}, s{sXbeg}, 896")
    p(f"s_lshl_b32 s{sA}, s{sRot}, 7")
    p(f"s_add_u32 s{sCx}, s{sXbeg}, s{sA}")
    p(f"s_mul_i32 s{sC}, s{sH}, 56")
    p(f"s_cmp_eq_u32 s{sH}, 15")
    p(f"s_cselect_b32 s{sSh}, 8, 0")
    p(f"s_sub_u32 s{sC}, s{sC}, s{sSh}")
    p(f"s_mul_i32 s{sWbeg}, s{sW}, {16*2688}")
    p(f"s_add_u32 s{sWbeg}, s{sWbeg}, s{sC}")
    p(f"s_mul_i32 s{sA}, s{sRot}, {64*2688}")
    p(f"s_add_u32 s{sCw}, s{sWbeg}, s{sA}")
    p(f"s_mov_b32 s{sCw2}, s{sCw}")
    p(f"s_add_u32 s{sWend}, s{sWbeg}, {448*2688}")
    p(f"s_lshl_b32 s{sXRb}, s{sW}, 14")
    p(f"s_add_u32 s{sXRb}, s{sXRb}, {L_XR}")
    p(f"s_lshl_b32 s{sD}, s{sW}, 10")
    p(f"s_mov_b32 s{RX+2}, {S*D*2}")
    p(f"s_mov_b32 s{RX+3}, 0x00020000")
    p(f"s_mov_b32 s{RWQKV+2}, {D*3*D*2}")
    p(f"s_mov_b32 s{RWQKV+3}, 0x00020000")
    p(f"s_and_b32 s{sB}, s{sI}, 7")
    p(f"s_lshl_b32 s{sB}, s{sB}, 2")
    p(f"s_add_u32 s{sB}, s{sB}, s{sW}")
    p(f"s_lshl_b32 s{sB}, s{sB}, 10")
    p(f"v_and_b32 v{t0}, 7, v1")
    p(f"v_lshl_add_u32 v{t0}, v{t0}, 7, s{sB}")
    p(f"v_min_u32 v{t0}, L_end-L_pc, v{t0}")
    p(f"global_load_dword a116, v{t0}, s[96:97]")
    stamp(p, "start")
    p(f"s_mov_b64 s[{RX}:{RX+1}], s[{SX}:{SX+1}]")
    p(f"s_mov_b64 s[{RWQKV}:{RWQKV+1}], s[{SWQKV}:{SWQKV+1}]")
    p(f"s_mov_b32 s{sK1}, s{sD}")

    def adv():
        return [Ins(f"s_add_u32 s{sCw}, s{sCw}, {64*2688}"), Ins(f"s_add_u32 s{sCx}, s{sCx}, 128"),
                Ins(f"s_cmp_eq_u32 s{sCx}, s{sXend}"), Ins(f"s_cselect_b32 s{sCx}, s{sXbeg}, s{sCx}"),
                Ins(f"s_cselect_b32 s{sCw}, s{sWbeg}, s{sCw}")]

    def wpiece(voff, base, pos, tag):
        return [Ins(f"s_add_u32 m0, s{sK1}, {base + pos*4096}"), Ins("s_nop 0"),
                Ins(f"buffer_load_dwordx4 v{voff}, {R(RWQKV)}, s{sCw} offen lds", tag)]

    def pos_groups(pos):
        gs = [wpiece(vWk, L_WK, pos, f"p{pos}")]
        for j in range(4):
            gs.append(([Ins(f"s_add_u32 m0, s{sXRb}, {(pos & 3)*4096}"), Ins("s_nop 0")] if j == 0 else []) +
                      [Ins(f"buffer_load_dwordx4 v{vX[j]}, {R(RX)}, s{sCx} offen offset:{j*1024} lds", f"p{pos}")] + (adv() if j == 3 else []))
        return gs

    def wstream(voff, base, tag):
        return [[Ins(f"s_add_u32 m0, s{sK1}, {base + pos*4096}"), Ins("s_nop 0"),
                 Ins(f"buffer_load_dwordx4 v{voff}, {R(RWQKV)}, s{sCw2} offen lds", tag),
                 Ins(f"s_add_u32 s{sCw2}, s{sCw2}, {64*2688}"), Ins(f"s_cmp_eq_u32 s{sCw2}, s{sWend}"),
                 Ins(f"s_cselect_b32 s{sCw2}, s{sWbeg}, s{sCw2}")] for pos in range(7)]

    NP0 = OPT.get("np0", 2)
    for pos in range(NP0):
        p.add(flat(pos_groups(pos)))
    stamp(p, "iss0")
    q = Prog()
    q(f"s_lshl_b32 s{sK2}, s{sW}, 11")
    q(f"v_bfe_u32 v{vR}, v1, 2, 2")
    q(f"v_and_b32 v{vMC}, 3, v1")
    q(f"v_lshlrev_b32 v{vMC}, 3, v{vMC}")
    q(f"v_bfe_u32 v{vHF}, v1, 4, 1")
    q(f"v_lshl_add_u32 v{vMC}, v{vHF}, 5, v{vMC}")
    q(f"v_lshrrev_b32 v{vHF}, 5, v1")
    q(f"v_lshl_add_u32 v{t3}, v{vHF}, 3, v{vR}")
    q(f"v_add_u32 v{t0}, s{sSh}, v{vMC}")
    q(f"v_and_b32 v{t0}, 63, v{t0}")
    q(f"v_lshl_add_u32 v{t0}, v{t3}, 6, v{t0}")
    q(f"v_add_u32 v{vAw4[0]}, s{sK1}, v{t0}")
    for s in range(1, 4):
        q(f"v_xor_b32 v{vAw4[s]}, {s*1024}, v{vAw4[0]}")
    q(f"v_and_b32 v{t0}, 31, v1")
    q(f"v_bfe_u32 v{t1}, v1, 1, 3")
    q(f"v_xor_b32 v{t1}, v{t1}, v{vHF}")
    q(f"s_lshl_b32 s{sA}, s{sW}, 1")
    q(f"v_xor_b32 v{t1}, s{sA}, v{t1}")
    q(f"v_lshlrev_b32 v{t0}, 7, v{t0}")
    q(f"v_add_u32 v{t0}, s{sXRb}, v{t0}")
    q(f"v_lshl_add_u32 v{vXr[0]}, v{t1}, 4, v{t0}")
    for s in range(1, 4):
        q(f"v_xor_b32 v{vXr[s]}, {32*s}, v{vXr[0]}")
    q(f"v_mov_b32 v{vOnes}, 0x3f803f80")
    for r in (vS, vQ, vCk, vCv, vCq):
        q(f"v_mov_b32 v{r}, 0")
    q(f"v_add_u32 v{vWv}, 1792, v{vWq}")
    q("s_memrealtime s[98:99]")
    srd(q, RDBG, SDBG, 256)
    q(f"v_lshlrev_b32 v{vL16}, 4, v1")
    q(f"s_or_b32 s{sA}, s2, s{sW}")
    q(f"v_or_b32 v{vEp}, s{sA}, v1")
    q(f"v_lshlrev_b32 v{vEp}, 12, v{vEp}")
    srd(q, RWPHI, SWPHI, H * DH * DH * 2)
    srd(q, RWS, SWS, WS_SIZE)
    nobg = OPT.get("nobg", 0)
    srd(q, RWO, SWO, 0 if nobg & 1 else D * D * 2)
    srd(q, RW1, SW1, 0 if nobg & 2 else D * F * 2)
    srd(q, RW2, SW2, 0 if nobg & 4 else F * D * 2)
    srd(q, RB1, SB1, F * 2)
    srd(q, RB2, SB2, D * 2)
    srd(q, ROUT, SOUT, S * D * 2)
    q(f"s_or_b32 s98, s98, 1")
    q(f"v_mov_b32 v{g.vPT}, s98")
    epst = [Ins(f"buffer_store_dword v{g.vPT}, v{vEp}, {R(RDBG)}, 0 offen sc1")]
    q(f"s_mov_b32 s{sMk}, 0xf0000000")
    q(f"s_mov_b32 s{sMk+1}, 0xf0000000")
    q(f"s_mov_b64 s[0:1], s[{SWS}:{SWS+1}]")
    for r in (XM, CMk, CMv):
        q(f"v_mov_b32 v{r+2}, 0")
        q(f"v_mov_b32 v{r+3}, 0")
    q(f"v_lshl_add_u32 v{t3}, v{vHF}, 2, v{vR}")
    q(f"v_mul_u32_u24 v{vAphi}, 56, v{t3}")
    q(f"v_add_u32 v{vAphi}, v{vAphi}, v{vMC}")
    q(f"v_add_u32 v{vAphi}, {L_WPHI}, v{vAphi}")
    q(f"v_cmp_eq_u32 vcc, 56, v{vMC}")
    q(f"v_add_u32 v{t0}, {2048 - 8}, v{vAphi}")
    q(f"v_bfe_u32 v{t1}, v1, 4, 1")
    q(f"v_cndmask_b32 v{vAphi}, v{vAphi}, v{t0}, vcc")
    q(f"v_lshl_add_u32 v{t0}, v{t1}, 2, v{vR}")
    q(f"v_lshl_add_u32 v{t0}, v{vHF}, 4, v{t0}")
    q(f"v_mul_u32_u24 v{t0}, 136, v{t0}")
    q(f"v_and_b32 v{t2}, 3, v1")
    q(f"v_lshl_add_u32 v{t0}, v{t2}, 3, v{t0}")
    q(f"s_lshl_b32 s{sB}, s{sW}, 5")
    q(f"v_add_u32 v{vApk}, s{sB}, v{t0}")
    q(f"v_and_b32 v{t0}, 15, v1")
    q(f"v_lshlrev_b32 v{t0}, 4, v{t0}")
    q(f"v_lshl_add_u32 v{t0}, v{t1}, 9, v{t0}")
    q(f"v_lshl_add_u32 v{vBv}, v{vHF}, 10, v{t0}")
    q(f"v_add_u32 v{vBv}, {L_VF}, v{vBv}")
    q(f"v_and_b32 v{t0}, 31, v1")
    q(f"s_add_u32 s{sB}, s{sK2}, {L_VF}")
    q(f"v_lshl_add_u32 v{vMisc}, v{t0}, 2, s{sB}")
    q(f"v_lshl_add_u32 v{vMr}, v{vHF}, 4, s{sB}")
    q(f"v_mul_u32_u24 v{t0}, 136, v{t0}")
    q(f"v_lshl_add_u32 v{t0}, v{vHF}, 3, v{t0}")
    q(f"s_mul_i32 s{sB}, s{sW}, {32*136}")
    q(f"v_add_u32 v{vPkw}, s{sB}, v{t0}")
    q(f"v_lshlrev_b32 v{vCr}, 2, v1")
    q(f"v_add_u32 v{vCr}, {L_CSX}, v{vCr}")
    q(f"s_lshl_b32 s{sB}, s{sW}, 8")
    q(f"v_add_u32 v{vCx}, s{sB}, v{vCr}")
    q(f"s_and_b32 s{sC}, s{sW}, 1")
    q(f"s_lshl_b32 s{sC}, s{sC}, 10")
    q(f"s_lshr_b32 s{sB}, s{sW}, 1")
    q(f"s_lshl_b32 s{sB}, s{sB}, 2")
    q(f"s_add_u32 s{sC}, s{sC}, s{sB}")
    q(f"s_mul_i32 s{sB}, s{sH}, {DH*DH*2}")
    q(f"s_add_u32 s{sC}, s{sC}, s{sB}")
    q(f"s_lshl_b32 s{sB}, s{sI}, 2")
    q(f"s_add_u32 s{sB}, s{sB}, s{sW}")
    q(f"s_lshl_b32 s{sB}, s{sB}, 7")
    q(f"v_lshl_add_u32 v{vTch}, v1, 14, s{sB}")
    if OPT.get("map3", 1):
        q(f"s_mul_i32 s{sB}, s{sB}, {4*3584//128}")
        q(f"s_and_b32 s{sD}, s2, 1")
        q(f"s_mul_i32 s{sD}, s{sD}, 1792")
        q(f"s_add_u32 s{sB}, s{sB}, s{sD}")
        q(f"v_lshrrev_b32 v{t0}, 4, v1")
        q(f"v_mul_u32_u24 v{t0}, 3584, v{t0}")
        q(f"v_and_b32 v{t1}, 15, v1")
        q(f"v_min_u32 v{t1}, 13, v{t1}")
        q(f"v_lshl_add_u32 v{t0}, v{t1}, 7, v{t0}")
        q(f"v_add_u32 v{g.vPo}, s{sB}, v{t0}")
    p.add(sprinkle(q.items, sum([pos_groups(k) for k in range(NP0, 3)], []), OPT.get("sp0", 90), start=OPT.get("st0", 200), hide=0))
    p.add(epst)
    stamp(p, "setup")

    s3 = Prog()
    s3(f"s_and_b32 s{sA}, s2, 7")
    s3(f"s_lshr_b32 s{sCT}, s{sI}, 2")
    s3(f"s_lshl_b32 s{sB}, s{sCT}, 7")
    s3(f"s_mul_i32 s{sWOsrc}, s{sW}, {15*8*896}")
    s3(f"s_add_u32 s{sWOsrc}, s{sWOsrc}, s{sB}")
    s3(f"s_mul_i32 s{sWOl}, s{sW}, {15*1024}")
    s3(f"v_lshrrev_b32 v{t0}, 2, v1")
    s3(f"v_lshrrev_b32 v{t1}, 4, v1")
    s3(f"v_xor_b32 v{t0}, v{t0}, v{t1}")
    s3(f"v_and_b32 v{t0}, 1, v{t0}")
    s3(f"v_and_b32 v{t1}, 3, v1")
    s3(f"v_lshlrev_b32 v{t1}, 4, v{t1}")
    s3(f"v_lshl_add_u32 v{vW1[0]}, v{t0}, 6, v{t1}")
    s3(f"v_lshrrev_b32 v{t0}, 3, v1")
    s3(f"v_mul_u32_u24 v{t0}, 896, v{t0}")
    s3(f"v_add_u32 v{vW64[0]}, v{t0}, v{vW1[0]}")
    s3(f"v_lshl_add_u32 v{vW1[0]}, v{t0}, 2, v{vW1[0]}")
    for j in range(1, 4):
        s3(f"v_add_u32 v{vW64[j]}, {j*(8*896-1024)}, v{vW64[0]}")
    n_s3a = len(s3.items)
    s3(f"s_lshl_b32 s{sK4}, s{sW}, 12")
    s3(f"s_lshl_b32 s{sB}, s{sW}, 9")
    s3(f"v_lshl_add_u32 v{t0}, v1, 7, s{sB}")
    s3(f"v_lshrrev_b32 v{t1}, 2, v1")
    s3(f"v_lshl_add_u32 v{g.vFl}, v{t1}, 28, v{t0}")
    s3(f"s_lshl_b32 s{sB}, s{sH}, 11")
    s3(f"s_add_u32 s{sB}, s{sB}, {WS_FLAG}")
    s3(f"s_lshl_b32 s{sE}, s{sRB}, 2")
    s3(f"s_add_u32 s{sFo[0]}, s{sB}, s{sE}")
    s3(f"s_lshl_b32 s{sE}, s{sRB}, 7")
    s3(f"s_add_u32 s{sPi[0]}, s{sB}, s{sE}")
    n_s3b = len(s3.items)
    s3(f"s_and_b32 s{sRB64}, s{sI}, 3")
    s3(f"s_lshl_b32 s{sB}, s{sA}, 2")
    s3(f"s_add_u32 s{sRB64}, s{sRB64}, s{sB}")
    if OPT.get("map3", 1):
        s3(f"s_and_b32 s{sFT}, s2, 1")
        s3(f"s_mul_i32 s{sFT}, s{sFT}, 7")
        s3(f"s_add_u32 s{sFT}, s{sFT}, s{sCT}")
    else:
        s3(f"s_lshr_b32 s{sFT}, s{sI}, 1")
    s3(f"s_lshr_b32 s{sB}, s{sW}, 1")
    s3(f"s_lshl_b32 s{sRTf}, s{sRB64}, 1")
    s3(f"s_add_u32 s{sRTf}, s{sRTf}, s{sB}")
    s3(f"s_and_b32 s{sB}, s{sW}, 1")
    s3(f"s_lshl_b32 s{sTf}, s{sCT}, 1")
    s3(f"s_add_u32 s{sTf}, s{sTf}, s{sB}")
    s3(f"v_and_b32 v{t0}, 31, v1")
    s3(f"v_lshlrev_b32 v{t2}, 1, v{t0}")
    s3(f"s_lshl_b32 s{sE}, s{sFT}, 8")
    small = [[Ins(f"buffer_load_ushort a{A_B1+T_}, v{t2}, {R(RB1)}, s{sE} offen offset:{64*T_}")] for T_ in range(4)]

    s4 = Prog()
    s4(f"s_and_b32 s{sD}, s2, 7")
    if OPT.get("map3", 1):
        s4(f"s_and_b32 s{sRB3}, s{sI}, 3")
        s4(f"s_and_b32 s{sB}, s2, 6")
    else:
        s4(f"s_and_b32 s{sRB3}, s{sI}, 1")
        s4(f"s_mov_b32 s{sB}, s{sD}")
    s4(f"s_lshl_b32 s{sB}, s{sB}, 1")
    s4(f"s_add_u32 s{sRB3}, s{sRB3}, s{sB}")
    s4(f"s_lshl_b32 s{sRT3}, s{sRB3}, 2")
    s4(f"s_add_u32 s{sRT3}, s{sRT3}, s{sW}")
    for j in range(1, 4):
        s4(f"v_add_u32 v{vW1[j]}, {j*(8*3584-1024)}, v{vW1[0]}")
    s4(f"s_lshl_b32 s{sB}, s{sFT}, 8")
    s4(f"s_mul_i32 s{sW1a}, s{sW}, {32*3584}")
    s4(f"s_add_u32 s{sW1a}, s{sW1a}, s{sB}")
    s4(f"s_mul_i32 s{sW1c}, s{sW}, {16*3584}")
    s4(f"s_add_u32 s{sW1c}, s{sW1c}, s{sB}")
    s4(f"s_lshl_b32 s{sB}, s{sRB}, 11")
    s4(f"s_lshl_b32 s{sE}, s{sH}, 2")
    s4(f"s_add_u32 s{sB}, s{sB}, s{sE}")
    s4(f"s_add_u32 s{sFo[1]}, s{sB}, {WS_FLAG + 32768}")
    s4(f"s_lshl_b32 s{sB}, s{sRB64}, 10")
    s4(f"s_lshl_b32 s{sE}, s{sCT}, 7")
    s4(f"s_add_u32 s{sB}, s{sB}, s{sE}")
    s4(f"s_add_u32 s{sPi[1]}, s{sB}, {WS_FLAG + 32768}")
    s4(f"s_lshr_b32 s{sB}, s{sRB64}, 1")
    s4(f"s_lshl_b32 s{sB}, s{sB}, 11")
    s4(f"s_and_b32 s{sE}, s{sRB64}, 1")
    s4(f"s_mul_i32 s{sE}, s{sE}, 7")
    s4(f"s_add_u32 s{sE}, s{sE}, s{sCT}")
    s4(f"s_lshl_b32 s{sE}, s{sE}, 2")
    s4(f"s_add_u32 s{sB}, s{sB}, s{sE}")
    s4(f"s_add_u32 s{sFo[2]}, s{sB}, {WS_FLAG + 65536}")
    s4(f"s_lshl_b32 s{sB}, s{sRB3}, 11")
    s4(f"s_add_u32 s{sB}, s{sB}, {WS_FLAG + 65536}")
    s4(f"s_lshl_b32 s{sE}, s{sFT}, 2")
    s4(f"s_add_u32 s{sE}, s{sE}, 32768")
    s4(f"s_add_u32 s{sFo[3]}, s{sB}, s{sE}")
    s4(f"s_lshl_b32 s{sE}, s{sFT}, 7")
    s4(f"s_add_u32 s{sPi[2]}, s{sB}, s{sE}")
    s4(f"v_min_u32 v{g.vPo}, 13, v1")
    s4(f"v_lshlrev_b32 v{g.vPo}, 2, v{g.vPo}")

    def touch(srdreg, k):
        return [Ins(f"s_mov_b32 s{sBG}, {k << 20}"), Ins(f"buffer_load_dword a116, v{vTch}, {R(srdreg)}, s{sBG} offen")]

    def wo_groups(a, b):
        return dma_run(vW64, RWO, sWOsrc, 0, 8 * 896, sWOl, L_WO, a, b, "wo")

    def w1r(a, b):
        gs = []
        for im in range(2):
            for blk in range(4):
                k0, n = 14 * im + 4 * blk, (4 if blk < 3 else 2)
                lo, hi = max(a, k0), min(b, k0 + n)
                if lo < hi:
                    gs += dma_run(vW1, RW1, sW1a if blk < 3 else sW1c, 128 * im + blk * 128 * 3584, 8 * 3584, sK4 if blk < 3 else sK2, L_I[im] + blk * 16384, lo - k0, hi - k0, f"w1{im}")
        return gs

    def xop(pos, s):
        return ("a", 16 * pos + 4 * s) if pos < 3 else ("v", X[pos & 3] + 4 * s)

    def k_reads(pos):
        xr = [Ins(f"ds_read_b128 {q4(X[pos & 3]+4*s)}, v{vXr[s]} offset:{(pos & 3) * 4096}") for s in range(4)]
        wr = [Ins(f"ds_read_b64_tr_b16 {pr(WF+16*(pos & 1)+4*s,2*u)}, v{vAw4[s]} offset:{L_WK+pos*4096+u*256}") for s in range(4) for u in range(2)]
        return xr, wr

    def a_reads(pos):
        return [Ins(f"ds_read_b128 a[{16*pos+4*s}:{16*pos+4*s+3}], v{vXr[s]} offset:{(pos & 3) * 4096}") for s in range(4)] if pos < 3 else []

    def dots(pos):
        x = X[pos & 3]
        out = [Ins(l) for j in range(16) for l in (f"v_dot2c_f32_bf16 v{vS}, v{x+j}, v{vOnes}", f"v_dot2c_f32_bf16 v{vQ}, v{x+j}, v{x+j}")]
        return out + [Ins(f"v_dot2c_f32_bf16 v{vCk}, v{WF+16*(pos & 1)+j}, v{vOnes}") for j in range(4)]

    wphi_g = [Ins(f"s_add_u32 m0, s{sK1}, {L_WPHI}"), Ins("s_nop 0"), Ins(f"buffer_load_dwordx4 v{vL16}, {R(RWPHI)}, s{sC} offen lds", "wphi")]
    ep_g = [Ins(f"v_mov_b32 v{t0}, 0"), Ins(f"buffer_load_dword v{g.vTag}, v{t0}, {R(RDBG)}, 0 offen sc1")]
    tsel = OPT.get("tsel", 3)
    side = [wphi_g] + wstream(vWv, L_WV, "wv") + [ep_g] + wstream(vWq, L_WQ, "wq") + \
        [t_ for i_, t_ in enumerate([touch(RWO, 0), [Ins(f"buffer_load_dword a116, v{g.vPo}, {R(RW1)}, 0 offen")] if OPT.get("map3", 1) else touch(RW1, 0), touch(RW1, 1)]) if tsel >> i_ & 1]
    sq = [int(c_) for c_ in "%06d" % OPT.get("sq", 264)]
    assert sum(sq) >= 8

    p.wait_vm("p0")
    p("s_barrier")
    stamp(p, "pos0")
    xr, wr = k_reads(0)
    p.add([xr[0]] + wr[:2] + [xr[1]] + wr[2:4] + [xr[2]] + wr[4:6] + [xr[3]] + wr[6:])
    for pos in range(7):
        if pos < 6:
            p.wait_vm(f"p{pos+1}")
            p.barrier(lgkm=(pos > 0))
        else:
            p.wait_vm("wphi")
            p.barrier()
        if pos in (2, 4, 6):
            stamp(p, f"it{pos}")
        m = Prog()
        for s in range(4):
            mfma(m, AK, WF + 16 * (pos & 1) + 4 * s, X[pos & 3] + 4 * s, None if (pos == 0 and s == 0) else AK)
        if pos == 6:
            break
        xr, wr = k_reads(pos + 1)
        bg = (pos_groups(pos + 3) if pos + 3 < 7 else []) + side[:sq[pos]]
        side = side[sq[pos]:]
        seq = xr[:2] + wr[:2] + xr[2:] + wr[2:] + a_reads(pos)
        o = []
        for i_, mm in enumerate(m.items):
            o += [mm] + seq[3 * i_:3 * i_ + 3]
            if bg and i_ < OPT.get("nbm", 4):
                o.append(bg.pop(0))
        p.add(o + seq[12:])
        p.add((dots(0) if pos == 0 else []) + dots(pos + 1))
        if pos == 5:
            p(f"ds_write_b32 v{vCx}, v{vCk}")
        p.add(flat(bg))
    order = [(pos, 0) for pos in range(7)] + [(pos, s) for pos in range(7) for s in range(1, 4)]
    def pass_stream(acc, addr, base, regs, transposed, PRE):
        def rd(n):
            pos, s = order[n]
            k_, r_ = regs(n)
            return [Ins(f"ds_read_b64_tr_b16 {pr(r_,2*u,k_)}, v{addr[s]} offset:{base+pos*4096+u*256}") for u in range(2)]
        head = [x for n in range(PRE) for x in rd(n)]
        body = []
        for n in range(28):
            k_, xr_ = xop(*order[n])
            wk_, wr_ = regs(n)
            q = Prog()
            if n % 2 == 0 and n + 1 < 28:
                q.items.append(Need(f"{regs(n+1)[0]}[{regs(n+1)[1]}:{regs(n+1)[1]+3}]"))
            if transposed:
                mfma(q, acc, wr_, xr_, None if n == 0 else acc, ak=wk_, bk=k_)
            else:
                mfma(q, acc, xr_, wr_, None if n == 0 else acc, ak=k_, bk=wk_)
            body.append(q.items)
        for n in range(PRE, 28):
            body[n - PRE] += rd(n)
        return head, body

    KEEP = [WF + 4 * n for n in range(7)]
    wregs = lambda n: ("v", KEEP[n]) if n < 7 else ("a", 64 + 4 * (n & 7))
    vhead, vb = pass_stream(AV, vAw4, L_WV, wregs, False, 6)
    CP, KB, OUT = T, PHQ, PHQ
    CS, VB = AK, WF
    st = Prog()
    for w2 in range(4):
        st(f"ds_read_b32 v{CP+w2}, v{vCr} offset:{w2*256}")
    xhalf(st, "v_add_f32", vS, t0)
    st(f"v_mul_f32 v{vS}, {f32(-1.0/D)}, v{vS}")
    split_dup(st, XM, XM + 1, vS, t0)
    st(f"v_add_f32 v{CP}, v{CP}, v{CP+1}")
    st(f"v_add_f32 v{CP+2}, v{CP+2}, v{CP+3}")
    st(f"v_add_f32 v{CP}, v{CP}, v{CP+2}")
    split_pair(st, CMk, CP, t1)
    st(f"v_mov_b32 v{CMk+1}, v{CMk}")
    ph = [Ins(f"ds_read_b64_tr_b16 {pr(PH,4*t+2*u,'a')}, v{vAphi} offset:{(16*t+8*u)*56}") for t in range(2) for u in range(2)]
    o, rest = weave(m.items, st.items[:4] + ph + st.items[4:], 28)
    p.add(o + rest)
    mfma(p, AK, CMk, XM, AK)
    stamp(p, "kmfma")
    fs = (lambda n_: stamp(p, n_)) if OPT.get("fine") else (lambda n_: None)
    xhalf(p, "v_add_f32", vQ, t1)
    p(f"v_mul_f32 v{t3}, {f32(1.0/D)}, v{vQ}")
    p(f"v_fma_f32 v{t3}, -v{vS}, v{vS}, v{t3}")
    p.add(masked(0, -1, [f"v_accvgpr_write_b32 a{PH+6}, 0", f"v_accvgpr_write_b32 a{PH+7}, 0"]))
    for j in range(0, 16, 2):
        p(f"v_cvt_pk_bf16_f32 v{KB+j//2}, v{AK+j}, v{AK+j+1}")
    mfma(p, AK, PH, KB, ak="a")
    p(f"v_max_f32 v{t3}, 0, v{t3}")
    p(f"v_add_f32 v{t3}, {f32(1e-5)}, v{t3}")
    p(f"v_rsq_f32 v{vRS}, v{t3}")
    mfma(p, AK, PH + 4, KB + 4, AK, ak="a")
    ne1, ne2 = OPT.get("ne1", 2), OPT.get("ne2", 2)
    p.add(flat(side[:ne1]))
    side = side[ne1:]
    p(f"v_mul_f32 v{vSC}, {f32(LOG2E)}, v{vRS}")
    p(f"ds_write_b32 v{vMisc}, v{vRS}")
    fs("e_phi")
    sm = sm_parts(AK, E, OUT, vSC, T)
    p.add(sm["max"][:-2])
    p.add(flat(side[:ne2]))
    side = side[ne2:]
    p.add(sm["max"][-1:])
    fs("e_max")
    p.wait_vm("wv")
    p.add(vhead)
    p.add(sm["fma"])
    p.add(flat(side))
    p("s_barrier")
    fs("e_fma")
    o, rest = weave(flat(vb[0:14]), sm["exp"], 24)
    p.add(o + rest)
    fs("e_exp")
    p.add(sm["add"])
    for n in range(7):
        for j in range(4):
            p(f"v_dot2c_f32_bf16 v{vCv}, v{KEEP[n]+j}, v{vOnes}")
    cv = Prog()
    cv(f"ds_write_b32 v{vCx}, v{vCv} offset:1024")
    for gg in range(4):
        cv(f"ds_read_b128 {q4(CS+4*gg)}, v{vMr} offset:{32*gg}")
    o, rest = weave(flat(vb[14:18]), sm["rcp"][:2] + cv.items + sm["rcp"][3:], 26)
    p.add(o + rest)
    fs("e_rcp")
    p.add(sm["mul"])
    p.barrier()
    cv = Prog()
    for w2, r_ in enumerate((t0, t1, t2, t3)):
        cv(f"ds_read_b32 v{r_}, v{vCr} offset:{1024+w2*256}")
    pkw = [Ins(f"ds_write_b64 v{vPkw}, {pr(OUT, 8*sg+2*gg)} offset:{L_PK+64*sg+16*gg}") for sg in range(2) for gg in range(4)]
    cv.add(sm["cvt"][:7] + pkw[:4])
    cv(f"v_add_f32 v{t0}, v{t0}, v{t1}")
    cv(f"v_add_f32 v{t2}, v{t2}, v{t3}")
    cv(f"v_add_f32 v{t0}, v{t0}, v{t2}")
    split_pair(cv, CMv, t0, t1)
    cv(f"v_mov_b32 v{CMv+1}, v{CMv}")
    cv.add(sm["cvt"][7:] + pkw[4:])
    cv(f"s_add_u32 s{sA}, s{sK2}, {L_VF}")
    cv(f"v_add_u32 v{t2}, s{sA}, v{vL16}")
    o, rest = weave(flat(vb[18:28]), cv.items, 24)
    p.add(o + rest)
    mfma(p, AV, XM, CMv, AV)
    fs("e_cvt")
    for s in range(4):
        p(f"v_add_u32 v{vAw4[s]}, {L_WQ}, v{vAw4[s]}")
    p(f"s_lshl_b32 s{sA}, s{sH}, 4")
    p(f"s_add_u32 s{sA}, s{sA}, s{sRB}")
    p(f"s_lshl_b32 s{sA}, s{sA}, 12")
    p(f"s_add_u32 s{sA}, s{sA}, s{sK1}")
    for t in range(2):
        for j in range(8 * t, 8 * t + 8, 2):
            p(f"v_pk_mul_f32 {pr(AV,j)}, {pr(AV,j)}, {pr(CS,j)}")
        for j in range(8 * t, 8 * t + 8, 2):
            p(f"v_cvt_pk_bf16_f32 v{VB+j//2}, v{AV+j}, v{AV+j+1}")
        for j in range(4 * t, 4 * t + 4):
            p(f"v_cndmask_b32 v{VB+j}, v{VB+j}, v{vOnes}, s[{sMk}:{sMk+1}]")
        p(f"ds_write_b128 v{t2}, {q4(VB+4*t)} offset:{t*1024}")
    p.barrier()
    stamp(p, "pkbar")
    AFk, BFv = AK, E - 4
    for ws in range(4):
        for u in range(2):
            p(f"ds_read_b64_tr_b16 {pr(AFk, 4*ws+2*u)}, v{vApk} offset:{L_PK+(32*ws+8*u)*136}")
        for nt in range(2):
            p(f"ds_read_b128 {q4(BFv+8*ws+4*nt)}, v{vBv} offset:{ws*2048 + nt*256}")
    DK, PKD = PHQ, PHQ + 8
    AQ = AV
    qhead, qb = pass_stream(AQ, vAq4, 0, wregs, True, 6)
    for ws in range(4):
        for nt in range(2):
            c = "0" if ws == 0 else q4(DK + 4 * nt)
            p(f"v_mfma_f32_16x16x32_bf16 {q4(DK+4*nt)}, {q4(AFk+4*ws)}, {q4(BFv+8*ws+4*nt)}, {c}")
    for j in range(4):
        p(f"v_cvt_pk_bf16_f32 v{PKD+j}, v{DK+2*j}, v{DK+2*j+1}")
    p(f"v_permlane32_swap_b32 v{PKD}, v{PKD+2}")
    p(f"v_permlane32_swap_b32 v{PKD+1}, v{PKD+3}")
    p(f"buffer_store_dwordx4 {q4(PKD)}, v{vL16}, {R(RWS)}, s{sA} offen sc1", tag="stA")
    stamp(p, "kvstored")
    p.wait_vm("wq")
    p.add(qhead)
    p("s_barrier")
    p.add(s3.items[:12])
    o, rest = weave(flat(qb[:7]), s3.items[12:n_s3b], 26)
    p.add(o)
    for n in range(7):
        for j in range(4):
            p(f"v_dot2c_f32_bf16 v{vCq}, v{KEEP[n]+j}, v{vOnes}")
    p(f"ds_write_b32 v{vCx}, v{vCq} offset:2048")
    NQ1 = OPT.get("nq1", 13)
    o, rest = weave(flat(qb[7:10]), rest, 26)
    p.add(o + rest)
    wog = wo_groups(0, 15)
    o, wog = paced(flat(qb[10:NQ1]), wog, 2)
    p.add(o)
    p.raw(f"""
    v_cmp_eq_u32 vcc, 0, v{g.vTag}
    s_mov_b32 s{sB}, 0
    s_cbranch_vccnz L_epoch
L_epoch_done:
""", uses=[f"v{g.vTag}"], defs=[f"v{g.vTag}", f"v{t0}"], pad=False)
    SLOW.append(f"""
L_epoch:
    v_mov_b32 v{t0}, 0
    buffer_load_dword v{g.vTag}, v{t0}, {R(RDBG)}, 0 offen sc1
    s_waitcnt vmcnt(0)
    v_cmp_eq_u32 vcc, 0, v{g.vTag}
    s_add_u32 s{sB}, s{sB}, 1
    s_cbranch_vccz L_epoch_done
    s_cmp_lt_u32 s{sB}, 0x10000
    s_cbranch_scc1 L_epoch
    s_branch L_epoch_done
""")
    p.wait_vm("stA")
    p("s_barrier")
    flag(p, g, 0)
    stamp(p, "pubA")
    fb = Prog()
    for w2 in range(4):
        fb(f"ds_read_b32 v{CP+w2}, v{vCr} offset:{2048+w2*256}")
    fb(f"v_readfirstlane_b32 s{sTag}, v{g.vTag}")
    fb(f"v_readfirstlane_b32 s{sTag+1}, v{g.vTag}")
    fb(f"v_add_f32 v{CP}, v{CP}, v{CP+1}")
    fb(f"v_add_f32 v{CP+2}, v{CP+2}, v{CP+3}")
    fb(f"v_add_f32 v{CP}, v{CP}, v{CP+2}")
    split_pair(fb, CMk, CP, CP + 1)
    fb(f"v_mov_b32 v{CMk+1}, v{CMk}")
    o, wog = paced(flat(qb[NQ1:]), wog, 2)
    o, rest = weave(o, fb.items + s3.items[n_s3b:], 28)
    p.add(o + rest)
    mfma(p, AQ, CMk, XM, AQ)
    KB = WF
    bgs = wog + small
    p.add(flat(bgs[:2]))
    for j in range(0, 16, 2):
        p(f"v_cvt_pk_bf16_f32 v{KB+j//2}, v{AQ+j}, v{AQ+j+1}")
    mfma(p, AK, PH, KB, ak="a")
    p.add(flat(bgs[2:3]))
    mfma(p, AK, PH + 4, KB + 4, AK, ak="a")
    p.add(flat(bgs[3:5]))
    stamp(p, "qmfma")
    SUM = XM
    sm = sm_parts(AK, E, PHQ, vSC, T)
    z = Prog()
    for j in range(8):
        z(f"v_mov_b32 v{SUM+j}, 0")
    z(f"v_mov_b32 v{vSelL}, 0x00003f80")
    z(f"v_mov_b32 v{vSelH}, 0x3f800000")
    z(f"s_lshl_b32 s{sC}, s{sH}, 16")
    z(f"s_add_u32 s{sC}, s{sC}, s{sK1}")
    smq = z.items + sm["max"] + sm["fma"] + sm["exp"] + sm["add"] + sm["rcp"] + sm["mul"] + sm["cvt"]
    na, nb = len(smq) * OPT.get("pa1", 10) // 100, len(smq) * OPT.get("pa2", 50) // 100
    p("s_barrier")
    p.add(sprinkle(smq[:na], bgs[5:], OPT.get("spq", 40), hide=0))
    spoll_issue(p, 0)
    p.add(smq[na:nb])
    stamp(p, "qdone")
    spoll_check(p, 0, 16)
    stamp(p, "syncA")

    PARTS = [X[j >> 2] + 4 * (j & 3) for j in range(16)]
    ld = []
    for pp in range(16):
        ld.append([Ins(f"s_add_u32 s{sA}, s{sC}, {pp*4096}"),
                   Ins(f"buffer_load_dwordx4 {q4(PARTS[pp])}, v{vL16}, {R(RWS)}, s{sA} offen sc1")])
    wb, wc, wd = OPT.get("wb", 0), OPT.get("wc", 14), OPT.get("wd", 12)
    assert wd <= 18
    vA0, vA1, vRc = vAw4[0], vAw4[1], vRS
    vEx0, vEx1 = vAw4[2], vAw4[3]
    q = Prog()
    q(f"v_and_b32 v{t0}, 15, v1")
    q(f"v_lshl_add_u32 v{t0}, v{vHF}, 4, v{t0}")
    q(f"v_bfe_u32 v{t1}, v1, 4, 1")
    q(f"v_lshl_add_u32 v{t0}, v{t1}, 5, v{t0}")
    q(f"s_add_u32 s{sB}, s{sK1}, {L_MISC}")
    q(f"v_lshl_add_u32 v{vEx0}, v{t0}, 4, s{sB}")
    q(f"v_add_u32 v{vEx1}, {L_MISC}, v{vL16}")
    q(f"v_lshl_add_u32 v{t3}, v{vHF}, 2, v{vR}")
    q(f"v_lshl_add_u32 v{vAi0}, v{t3}, 7, v{vMC}")
    q(f"v_lshrrev_b32 v{t3}, 1, v{vR}")
    q(f"v_lshl_add_u32 v{vAi0}, v{t3}, 6, v{vAi0}")
    q(f"s_and_b32 s{sB}, s{sW}, 1")
    q(f"s_lshl_b32 s{sE}, s{sB}, 6")
    q(f"v_xor_b32 v{vAw}, s{sE}, v{vAi0}")
    q(f"v_xor_b32 v{vA1}, 64, v{vAw}")
    q(f"s_mul_i32 s{sB}, s{sB}, {224*128}")
    q(f"s_add_u32 s{sB}, s{sB}, {L_WO}")
    q(f"v_add_u32 v{vA0}, s{sB}, v{vAw}")
    q(f"v_add_u32 v{vA1}, s{sB}, v{vA1}")
    q(f"s_lshl_b32 s{sD}, s{sRT}, 4")
    q(f"s_add_u32 s{sD}, s{sD}, s{sH}")
    q(f"s_lshl_b32 s{sD}, s{sD}, 11")
    q(f"s_add_u32 s{sD}, s{sD}, {WS_OF}")
    p.add(flat(ld[:5]))
    p.add(sprinkle(smq[nb:] + s4.items + q.items, ld[5:], 56, hide=0))
    p(f"v_and_b32 v{t0}, 31, v1")
    p(f"v_mul_u32_u24 v{t0}, 896, v{t0}")
    p(f"v_lshl_add_u32 v{t0}, v{vHF}, 4, v{t0}")
    p(f"v_lshlrev_b32 v{t3}, 3, v{vHF}")
    p(f"s_mul_i32 s{sA}, s{sRTf}, {32*896}")
    p(f"s_lshl_b32 s{sB}, s{sTf}, 6")
    p(f"s_add_u32 s{sA}, s{sA}, s{sB}")
    small2 = [[Ins(f"buffer_load_dwordx4 {q4(A_XRES+4*q_,'a')}, v{t0}, {R(RX)}, s{sA} offen offset:{32*q_}")] for q_ in range(2)] + \
             [[Ins(f"buffer_load_dwordx2 {pr(A_B2,2*gg,'a')}, v{t3}, {R(RB2)}, s{sB} offen offset:{16*gg}")] for gg in range(4)]
    p.add(flat(small2))
    pw = OPT.get("pw", 0)
    pwq = Prog()
    pwq(f"s_mul_i32 s{sH1a}, s{sRT3}, 28672")
    pwq(f"s_lshl_b32 s{sB}, s{sFT}, 11")
    pwq(f"s_add_u32 s{sH1a}, s{sH1a}, s{sB}")
    pwq(f"s_add_u32 s{sH1a}, s{sH1a}, {WS_H1F}")
    pwq(f"s_mul_i32 s{sH1b}, s{sRTf}, {28*1024}")
    pwq(f"s_lshl_b32 s{sB}, s{sTf}, 11")
    pwq(f"s_add_u32 s{sH1b}, s{sH1b}, s{sB}")
    pwq(f"s_add_u32 s{sH1b}, s{sH1b}, {WS_HF}")
    pwq.items.append([Ins(f"s_cmp_ge_u32 s{sI}, 28"), Ins(f"s_cselect_b32 s{sH1a}, 0x20000000, s{sH1a}"), Ins(f"s_cselect_b32 s{sH1b}, 0x20000000, s{sH1b}")])
    pws = []
    if pw & 16:
        pws += [[Ins(f"buffer_store_dwordx4 {q4(E)}, v{vL16}, {R(RWS)}, s{sH1b} offen offset:{t_*1024} sc1")] for t_ in range(2)]
    for T_ in range(4):
        if pw >> T_ & 1:
            pws += [[Ins(f"s_add_u32 s{sH1b}, s{sH1a}, {T_*H1S}"), Ins(f"buffer_store_dwordx4 {q4(E)}, v{vL16}, {R(RWS)}, s{sH1b} offen sc1")],
                    [Ins(f"buffer_store_dwordx4 {q4(E)}, v{vL16}, {R(RWS)}, s{sH1b} offen offset:1024 sc1")]]
    if pw:
        p.add(pwq.items)
    if OPT.get("pwpos", 0) == 0:
        p.add(flat(pws))
        pws = []
    pre = OPT.get("pre", 0)
    if pre & 1:
        p(f"s_mul_i32 s{sA}, s{sRT3}, 28672")
        p(f"s_lshl_b32 s{sB}, s{sFT}, 11")
        p(f"s_add_u32 s{sA}, s{sA}, s{sB}")
        p(f"s_add_u32 s{sA}, s{sA}, {WS_H1F}")
        p(f"v_lshrrev_b32 v{t1}, 4, v1")
        p(f"s_mov_b32 s{sB}, {H1S}")
        p(f"v_mul_lo_u32 v{t1}, s{sB}, v{t1}")
        p(f"v_and_b32 v{t2}, 15, v1")
        p(f"v_lshl_add_u32 v{t1}, v{t2}, 7, v{t1}")
        p(f"buffer_load_dword a116, v{t1}, {R(RWS)}, s{sA} offen")
    if pre & 2:
        p(f"s_mul_i32 s{sA}, s{sRTf}, {28*1024}")
        p(f"s_lshl_b32 s{sB}, s{sTf}, 11")
        p(f"s_add_u32 s{sA}, s{sA}, s{sB}")
        p(f"s_add_u32 s{sA}, s{sA}, {WS_HF}")
        p(f"v_and_b32 v{t2}, 15, v1")
        p(f"v_lshlrev_b32 v{t2}, 7, v{t2}")
        p(f"buffer_load_dword a116, v{t2}, {R(RWS)}, s{sA} offen")
    if pre & 4:
        p(f"s_mul_i32 s{sA}, s{sRTf}, {32*896}")
        p(f"s_lshl_b32 s{sB}, s{sTf}, 6")
        p(f"s_add_u32 s{sA}, s{sA}, s{sB}")
        p(f"buffer_load_dword a116, v{t0}, {R(ROUT)}, s{sA} offen")
    p.add(flat(w1r(0, wb)))
    dq = Prog()
    for pp in range(16):
        for j in range(4):
            dq(f"v_dot2c_f32_bf16 v{SUM+2*j}, v{PARTS[pp]+j}, v{vSelL}")
            dq(f"v_dot2c_f32_bf16 v{SUM+2*j+1}, v{PARTS[pp]+j}, v{vSelH}")
    p.add(dq.items)
    AF, ACC1, OB = WF, AV, WF + 16
    for j in range(4):
        p(f"v_cvt_pk_bf16_f32 v{OB+j}, v{SUM+2*j}, v{SUM+2*j+1}")
    p(f"ds_write_b128 v{vEx0}, {q4(OB)}")
    stamp(p, "kvsum")
    p.barrier()
    for kk in range(4):
        p(f"ds_read_b128 {q4(AF+4*kk)}, v{vEx1} offset:{kk*1024}")
    WOF = 128
    wof = []
    for k in range(16):
        row0 = 28 * (k >> 1) + 16 * (k & 1)
        for mt in range(2):
            for u in range(2):
                wof.append(Ins(f"ds_read_b64_tr_b16 {pr(WOF, 8*k+4*mt+2*u, 'a')}, v{[vA0, vA1][mt]} offset:{(row0+8*u)*128}"))
    m = Prog()
    for kk in range(4):
        mfma(m, ACC1, AF + 4 * kk, PHQ + 4 * kk, None if kk == 0 else ACC1)
    wm = OPT.get("wm", 0)
    o, w1b_ = paced(m.items, w1r(wb, wb + wm), 1)
    p.add(o + flat(w1b_))
    p(f"v_mov_b32 v{t0}, v{ACC1+12}")
    p(f"v_mov_b32 v{t1}, v{ACC1+12}")
    p(f"v_permlane32_swap_b32 v{t0}, v{t1}")
    p(f"v_add_f32 v{t1}, {f32(1e-6)}, v{t1}")
    p(f"v_rcp_f32 v{vRc}, v{t1}")
    for j in range(0, 16, 2):
        p(f"v_pk_mul_f32 {pr(ACC1,j)}, {pr(ACC1,j)}, {pr(vRc)} op_sel_hi:[1,0]")
    for j in range(0, 8, 2):
        p(f"v_cvt_pk_bf16_f32 v{OB+j//2}, v{ACC1+j}, v{ACC1+j+1}")
    p(f"buffer_store_dwordx4 {q4(OB)}, v{vL16}, {R(RWS)}, s{sD} offen sc1")
    for j in range(8, 16, 2):
        p(f"v_cvt_pk_bf16_f32 v{OB+j//2}, v{ACC1+j}, v{ACC1+j+1}")
    p.add(masked(0, -1, [f"v_mov_b32 v{OB+6}, 0", f"v_mov_b32 v{OB+7}, 0"]))
    p(f"buffer_store_dwordx4 {q4(OB+4)}, v{vL16}, {R(RWS)}, s{sD} offen offset:1024 sc1", tag="stB")
    stamp(p, "ostored")
    p.add(sprinkle(wof, pws + w1r(wb + wm, wd), 40, hide=0))
    publish(p, g, 1, "stB")
    stamp(p, "pubB")
    p(f"s_cmp_ge_u32 s{sI}, 28")
    p("s_cbranch_scc1 L_idle")

    def ksb(j):
        return 16 * (j % 7) + 2 * (j // 7)
    ROW = [14, 15, 16, 17] * 3 + [0, 1, 2, 3, 4, 5, 6, 18, 19] + [7, 8, 9, 10, 11, 12, 13]

    def w2g(j0, j1):
        gs = []
        for j in range(j0, j1):
            gs.append([Ins(f"s_add_u32 m0, s{sK2}, {ROW[j]*8192}"), *([Ins(f"s_mul_i32 s{sBG}, s{TBL[j % 7]}, 56"), Ins(f"s_add_u32 s{sBG}, s{sBG}, {(j // 7) * 28672}")] if OPT.get("rot4")
                         else [Ins(f"s_mov_b32 s{sBG}, {0 if OPT.get('hot2') else 16*896*ksb(j)}")]),
                       Ins(f"buffer_load_dwordx4 v{vW64[0]}, {R(RW2)}, s{sBG} offen lds", f"w2_{j}")])
            gs.append([Ins(f"buffer_load_dwordx4 v{vW64[1]}, {R(RW2)}, s{sBG} offen offset:1024 lds", f"w2_{j}")])
        return gs

    def w2_read(j, dst, k):
        off = ROW[j] * 8192
        out = [Wait("vmtag", f"w2_{j}")]
        for jm in range(2):
            for u in range(2):
                out.append(Ins(f"ds_read_b64_tr_b16 {pr(dst[jm],2*u,k)}, v{vB4[off >> 16][jm]} offset:{(off & 0xffff)+u*1024}"))
        return out

    def w2_move(j0, j1):
        return [x for j in range(j0, j1) for x in w2_read(j, [8 * j, 8 * j + 4], "a")]
    we = OPT.get("we", 18)
    s5 = Prog()
    s5(f"s_lshl_b32 s{sC}, s{sRTf}, 15")
    s5(f"s_and_b32 s{sA}, s{sW}, 1")
    s5(f"s_lshl_b32 s{sA}, s{sA}, 14")
    s5(f"s_add_u32 s{sC}, s{sC}, s{sA}")
    s5(f"s_add_u32 s{sC}, s{sC}, {WS_OF}")
    if OPT.get("rot4"):
        s5(f"s_lshl_b32 s{TBL[0]}, s{sCT}, 12")
        for n_ in range(1, 7):
            s5.items.append([Ins(f"s_add_u32 s{TBL[n_]}, s{TBL[n_-1]}, 4096"), Ins(f"s_cmp_eq_u32 s{TBL[n_]}, 28672"), Ins(f"s_cselect_b32 s{TBL[n_]}, 0, s{TBL[n_]}")])
    s5(f"s_lshl_b32 s{sB}, s{sCT}, 7")
    s5(f"s_lshr_b32 s{sWo2}, s{sW}, 1")
    s5(f"s_lshl_b32 s{sWo2}, s{sWo2}, 3")
    s5(f"s_and_b32 s{sW2src2}, s{sW}, 1")
    s5(f"s_add_u32 s{sWo2}, s{sWo2}, s{sW2src2}")
    s5(f"s_mul_i32 s{sW2src2}, s{sWo2}, {16*896}")
    s5(f"s_add_u32 s{sW2src2}, s{sW2src2}, s{sB}")
    s5(f"v_add_u32 v{vW64[0]}, s{sW2src2}, v{vW64[0]}")
    s5(f"v_add_u32 v{vW64[1]}, s{sW2src2}, v{vW64[1]}")
    s5(f"v_xor_b32 v{t1}, 64, v{vAw}")
    for b_ in range(3):
        s5(f"s_add_u32 s{sA}, s{sK2}, {b_*65536}")
        s5(f"v_add_u32 v{vB4[b_][0]}, s{sA}, v{vAw}")
        s5(f"v_add_u32 v{vB4[b_][1]}, s{sA}, v{t1}")
    s5(f"s_lshr_b32 s{sA}, s{sW}, 1")
    s5(f"s_mul_i32 s{sA}, s{sA}, {224*128}")
    s5(f"v_add_u32 v{vAw}, s{sA}, v{vAw}")
    s5(f"v_mov_b32 v{vCs}, 0")
    s5(f"v_mov_b32 v{vCs+1}, 0")
    ra.release(base_mark)
    B = ra(64, 4)
    ACC = ra(32, 4)
    RD = ra(16, 4)
    vSt = ra(2, 2)
    XF = ra(16, 4)
    for j in range(8):
        s5(f"v_accvgpr_read_b32 v{XF+2*j+1}, a{A_XRES+j}")
    for q_ in range(2):
        for e_ in range(2):
            s5(f"v_permlane32_swap_b32 v{XF+2*(4*q_+e_)+1}, v{XF+2*(4*q_+2+e_)+1}")
    for j in range(8):
        s5(f"v_lshlrev_b32 v{XF+2*j}, 16, v{XF+2*j+1}")
        s5(f"v_and_b32 v{XF+2*j+1}, 0xffff0000, v{XF+2*j+1}")
    ns5 = OPT.get("ns5", 5)
    wB = w1r(wd, we)
    nb1 = OPT.get("nb1", 6)
    p.add(sprinkle(s5.items[:ns5], wB[:nb1], 56, hide=0))
    for _ in range(OPT.get("slb", 0)):
        p("s_sleep 1")
    spoll_issue(p, 1)
    p.add(flat(wB[nb1:]))

    def colsum(im, buf):
        q = Prog()
        for c4 in range(0, 14, 4):
            a = buf + 16 * ((c4 >> 2) & 1)
            for s in range(min(4, 14 - c4)):
                for u in range(2):
                    q(f"ds_read_b64_tr_b16 {pr(a,4*s+2*u)}, v{vAw} offset:{(16*(c4+s)+8*u)*128}")
            if c4 > 0:
                a = buf + 16 * (((c4 >> 2) - 1) & 1)
                for j in range(16):
                    q(f"v_dot2c_f32_bf16 v{vCs+im}, v{a+j}, v{vOnes}")
        for j in range(8):
            q(f"v_dot2c_f32_bf16 v{vCs+im}, v{buf+16+j}, v{vOnes}")
        return q.items
    stamp(p, "winB")
    spoll_check(p, 1, 16)
    stamp(p, "syncB")
    SH = OPT.get("shift", 1)
    bgP2 = w1r(we, 28) + ([] if SH else w2g(0, 4))

    ldo = []
    for k in range(16):
        ldo.append([Ins(f"buffer_load_dwordx4 {q4(B+4*k)}, v{vL16}, {R(RWS)}, s{sC} offen offset:{(k&3)*1024} sc1")] +
                   ([Ins(f"s_add_u32 s{sC}, s{sC}, 4096")] if (k & 3) == 3 else []))
    CSB = ra(32, 4)
    p.add(flat(ldo[:6]))
    p.add(sprinkle(s5.items[ns5:], ldo[6:], 50, hide=0))
    q = Prog()
    q(f"v_mov_b32 v{vSt}, 0")
    q(f"v_mov_b32 v{vSt+1}, 0")
    q(f"buffer_store_dword v{vSt}, v{vEp}, {R(RDBG)}, 0 offen sc1")
    q(f"s_add_u32 s{sA}, s{sK4}, {L_EX2}")
    q(f"v_add_u32 v{t0}, s{sA}, v{vL16}")
    q(f"v_xor_b32 v{t1}, 4096, v{t0}")
    q(f"s_mul_i32 s{sA}, s{sRTf}, {28*1024}")
    q(f"s_lshl_b32 s{sB}, s{sTf}, 11")
    q(f"s_add_u32 s{sA}, s{sA}, s{sB}")
    q(f"s_add_u32 s{sA}, s{sA}, {WS_HF}")
    q(f"s_lshl_b32 s{sC}, s{sRTf}, 12")
    q(f"s_lshl_b32 s{sB}, s{sCT}, 9")
    q(f"s_add_u32 s{sC}, s{sC}, s{sB}")
    q(f"s_and_b32 s{sB}, s{sW}, 1")
    q(f"s_lshl_b32 s{sB}, s{sB}, 3")
    q(f"s_add_u32 s{sC}, s{sC}, s{sB}")
    q(f"s_add_u32 s{sC}, s{sC}, {WS_ST}")
    q(f"v_and_b32 v{t2}, 31, v1")
    q(f"v_lshlrev_b32 v{t2}, 4, v{t2}")
    q(f"v_lshl_add_u32 v{t2}, v{vHF}, 2, v{t2}")
    m = Prog()
    NDEF2 = OPT.get("ndef2", 5)
    for k in range(16):
        mfma(m, ACC + 16, WOF + 8 * k + 4, B + 4 * k, None if k == 0 else ACC + 16, ak="a")
        if k < 16 - NDEF2:
            mfma(m, ACC, WOF + 8 * k, B + 4 * k, XF if k == 0 else ACC, ak="a")
    o, rest = paced(m.items, bgP2, 2)
    assert not rest
    o, rest = weave(o, q.items, 24)
    p.add(o + rest)
    stamp(p, "p2mfma")
    for i_, k in enumerate(range(16 - NDEF2, 16)):
        mfma(p, ACC, WOF + 8 * k, B + 4 * k, ACC, ak="a")
        if i_ >= NDEF2 - 4:
            gg = i_ - (NDEF2 - 4)
            p(f"ds_write_b128 v{t0}, {q4(ACC+16+4*gg)} offset:{gg*1024}")
    p.barrier()
    for gg in range(4):
        p(f"ds_read_b128 {q4(RD+4*gg)}, v{t1} offset:{gg*1024}")
    for t in range(2):
        for j in range(8 * t, 8 * t + 8, 2):
            p(f"v_pk_add_f32 {pr(RD,j)}, {pr(RD,j)}, {pr(ACC,j)}")
        for j in range(8 * t, 8 * t + 8, 2):
            p(f"v_cvt_pk_bf16_f32 v{HRES+j//2}, v{RD+j}, v{RD+j+1}")
        p(f"buffer_store_dwordx4 {q4(HRES+4*t)}, v{vL16}, {R(RWS)}, s{sA} offen offset:{t*1024} sc1")
    for j in range(8):
        p(f"v_dot2c_f32_bf16 v{vSt}, v{HRES+j}, v{vOnes}")
        p(f"v_dot2c_f32_bf16 v{vSt+1}, v{HRES+j}, v{HRES+j}")
    p(f"v_permlane32_swap_b32 v{vSt}, v{vSt+1}")
    p(f"v_add_f32 v{vSt}, v{vSt}, v{vSt+1}")
    p(f"buffer_store_dword v{vSt}, v{t2}, {R(RWS)}, s{sC} offen sc1", tag="stC")
    stamp(p, "hstored")

    ra.release(base_mark)
    vAi = [ra() for _ in range(4)]
    vSo = [ra(), ra()]
    vK = ra(6, 2)
    YM = ra(4, 4)
    CM = ra(16, 4)
    ACC3 = ra(64, 4)
    AFR = ra(32, 4)
    G1 = ra(16, 4)
    STR = G1
    OB3 = ra(16, 4)
    CSP = OB3
    B2R = ra(8, 4)
    HA = 144
    if not SH:
        p.add(w2_move(0, 4))
    p(f"v_and_b32 v{t0}, 31, v1")
    p(f"v_mov_b32 v{vAi[0]}, v{vAi0}")
    p(f"v_xor_b32 v{vAi[1]}, 64, v{vAi0}")
    p(f"v_add_u32 v{vAi[2]}, {L_I[1]}, v{vAi[0]}")
    p(f"v_add_u32 v{vAi[3]}, {L_I[1]}, v{vAi[1]}")
    p(f"v_lshlrev_b32 v{t0}, 4, v{t0}")
    p(f"v_lshl_add_u32 v{vSo[0]}, v{vHF}, 9, v{t0}")
    p(f"v_lshl_add_u32 v{vSo[1]}, v{vHF}, 31, v{t0}")
    for T in range(4):
        p(f"v_accvgpr_read_b32 v{CM+4*T+2}, a{A_B1+T}")
    for j in range(8):
        p(f"v_accvgpr_read_b32 v{B2R+j}, a{A_B2+j}")
    assert SH and we >= 14
    nc1 = OPT.get("nc1", 4)
    w2b_ = w2g(0, 4)
    p.add(sprinkle(colsum(0, AFR), w2b_[:nc1], 60, hide=0))
    p(f"v_add_u32 v{vAw}, {L_I[1]}, v{vAw}")
    publish(p, g, 2, "stC")
    stamp(p, "pubC")
    p.add(sprinkle(colsum(1, AFR), w2b_[nc1:], 50, hide=0))
    p(f"s_lshl_b32 s{sA}, s{sW}, 9")
    p(f"s_add_u32 s{sA}, s{sA}, {L_MISC}")
    p(f"v_lshl_add_u32 v{t1}, v1, 3, s{sA}")
    p(f"ds_write_b64 v{t1}, {pr(vCs)}")
    if OPT.get("pc_early", 1):
        spoll_issue(p, 2)
    for T in range(4):
        p(f"v_mov_b32 v{CM+4*T+3}, v{CM+4*T+2}")
        p(f"v_lshl_or_b32 v{CM+4*T+2}, v{CM+4*T+2}, 16, v{CM+4*T+2}")
    p(f"s_mul_i32 s{sC}, s{sRT3}, {28*1024}")
    p(f"s_add_u32 s{sC}, s{sC}, {WS_HF}")
    p(f"s_lshl_b32 s{sD}, s{sRT3}, 12")
    p(f"s_add_u32 s{sD}, s{sD}, {WS_ST}")
    p(f"s_mul_i32 s{sH1a}, s{sRT3}, 28672")
    p(f"s_lshl_b32 s{sA}, s{sFT}, 11")
    p(f"s_add_u32 s{sH1a}, s{sH1a}, s{sA}")
    p(f"s_add_u32 s{sH1a}, s{sH1a}, {WS_H1F}")
    p(f"v_lshlrev_b32 v{t2}, 3, v1")
    p(f"v_add_u32 v{t2}, {L_MISC}, v{t2}")

    def trd(dst, T, ks, u):
        return Ins(f"ds_read_b64_tr_b16 {pr(dst)}, v{vAi[T]} offset:{(16*ks+8*u)*128}")

    def corr(T, first=False):
        q = Prog()
        mfma(q, ACC3 + 16 * T, CM + 4 * T, YM, None if first else ACC3 + 16 * T)
        return q.items

    def pass_parts(tiles, init):
        n = len(tiles)
        depth = 32 // (4 * n)
        pre = min(depth - 1, 3)

        def reads(ks):
            a = AFR + 4 * n * (ks % depth)
            return [trd(a + 4 * i + 2 * u, T, ks, u) for i, T in enumerate(tiles) for u in range(2)]
        head = [x for ks in range(pre) for x in reads(ks)]
        items = []
        for ks in range(28):
            nxt = reads(ks + pre) if ks + pre < 28 else []
            a = AFR + 4 * n * (ks % depth)
            for i, T in enumerate(tiles):
                acc = ACC3 + 16 * T
                cc = "0" if (ks == 0 and init) else q16(acc)
                items.append(Ins(f"v_mfma_f32_32x32x16_bf16 {q16(acc)}, {q4(a+4*i)}, a[{HA+4*ks}:{HA+4*ks+3}], {cc}"))
                items += nxt[2 * i:2 * i + 2]
        return head, items

    h1, b1_ = pass_parts([0, 1], True)
    p.add(h1)
    stamp(p, "cs1")
    if not OPT.get("pc_early", 1):
        spoll_issue(p, 2)
    p.barrier()
    spoll_check(p, 2, 14)
    stamp(p, "syncC")

    ldh = []
    for ks in range(28):
        q = Prog()
        q(f"buffer_load_dwordx4 a[{HA+4*ks}:{HA+4*ks+3}], v{vL16}, {R(RWS)}, s{sC} offen offset:{(ks&3)*1024} sc1")
        if (ks & 3) == 3 and ks < 27:
            q(f"s_add_u32 s{sC}, s{sC}, 4096")
        ldh.append(q.items)
    NH0 = OPT.get("nh0", 14)
    p.add(flat(ldh[:4]))
    for n_ in range(4):
        p(f"buffer_load_dwordx4 {q4(STR+4*n_)}, v{vSo[n_ == 3]}, {R(RWS)}, s{sD} offen offset:{n_*1024} sc1")
    x = Prog()
    for w2 in range(4):
        x(f"ds_read_b64 {pr(CSP,2*w2)}, v{t2} offset:{w2*512}")
    x.add(w2_move(0, 4) if SH else w2_move(4, 8))
    for T in range(4):
        x(f"v_add_f32 v{CSP+8+T}, v{CSP+2*(T&1)+(T>>1)}, v{CSP+4+2*(T&1)+(T>>1)}")
    for T in range(4):
        split_pair(x, CM + 4 * T, CSP + 8 + T, t1)
        x(f"v_mov_b32 v{CM+4*T+1}, v{CM+4*T}")
    p.add(sprinkle(x.items, ldh[4:NH0], 20, hide=0))
    st = Prog()
    for o_ in range(2):
        for n_ in range(4):
            st(f"v_add_f32 v{STR+4*n_+o_}, v{STR+4*n_+o_}, v{STR+4*n_+2+o_}")
        st(f"v_add_f32 v{STR+o_}, v{STR+o_}, v{STR+4+o_}")
        st(f"v_add_f32 v{STR+8+o_}, v{STR+8+o_}, v{STR+12+o_}")
        st(f"v_add_f32 v{STR+o_}, v{STR+o_}, v{STR+8+o_}")
    xhalf(st, "v_add_f32", STR, t0)
    xhalf(st, "v_add_f32", STR + 1, t1)
    st(f"v_mul_f32 v{STR}, {f32(-1.0/D)}, v{STR}")
    split_dup(st, YM, YM + 1, STR, t0)
    st(f"v_mul_f32 v{t2}, {f32(1.0/D)}, v{STR+1}")
    st(f"v_fma_f32 v{t2}, -v{STR}, v{STR}, v{t2}")
    st(f"v_max_f32 v{t2}, 0, v{t2}")
    st(f"v_add_f32 v{t3}, {f32(1e-5)}, v{t2}")
    st(f"v_fmac_f32 v{t2}, {f32(1e-5)}, v{t3}")
    st(f"v_rsq_f32 v{t3}, v{t2}")
    st(f"v_cvt_f32_u32 v{t0}, v{vHF}")
    st(f"v_mul_f32 v{vK+4}, v{t2}, v{t3}")
    K0 = math.sqrt(2.0 / math.pi)
    c1 = -2.0 * K0 * LOG2E
    c2 = c1 * 0.044715
    st(f"v_fma_f32 v{t0}, -v{t0}, v{vK+4}, v{vK+4}")
    st(f"v_cvt_pk_bf16_f32 v{t1}, v{t0}, v{t0}")
    st(f"v_and_b32 v{t1}, 0xffff0000, v{t1}")
    st(f"v_sub_f32 v{t1}, v{t0}, v{t1}")
    st(f"v_cvt_pk_bf16_f32 v{YM+2}, v{t0}, v{t1}")
    st(f"v_and_b32 v{t2}, 0xffff0000, v{YM+2}")
    st(f"v_sub_f32 v{t1}, v{t1}, v{t2}")
    st(f"v_cvt_pk_bf16_f32 v{YM+3}, v{t1}, v{t1}")
    st(f"v_mul_f32 v{vK}, {f32(c1)}, v{t3}")
    st(f"v_mul_f32 v{t2}, v{t3}, v{t3}")
    st(f"v_mul_f32 v{t2}, v{t2}, v{t3}")
    st(f"v_mul_f32 v{vK+2}, {f32(c2)}, v{t2}")
    vH1 = vW1
    st(f"s_mul_i32 s{sA}, s{sRTf}, 28672")
    st(f"s_add_u32 s{sA}, s{sA}, {WS_H1F}")
    st(f"s_xor_b32 s{sD2}, s{sRTf}, 1")
    st(f"s_mul_i32 s{sD2}, s{sD2}, 28672")
    st(f"s_add_u32 s{sD2}, s{sD2}, {WS_H1F}")
    st(f"v_add_u32 v{vH1[0]}, s{sA}, v{vL16}")
    st(f"v_add_u32 v{vH1[1]}, s{sD2}, v{vL16}")
    st(f"v_add_u32 v{vH1[0]}, s{sK1}, v{vH1[0]}")
    st(f"v_add_u32 v{vH1[1]}, s{sK1}, v{vH1[1]}")
    nl = 28 - NH0
    part1 = b1_[:6 * nl]
    o1 = []
    for i_ in range(nl):
        o1 += part1[6 * i_:6 * i_ + 3] + [ldh[NH0 + i_]] + part1[6 * i_ + 3:6 * i_ + 6]
    o, rest = weave(o1, st.items, 24)
    p.add(o)
    o, rest = weave(b1_[6 * nl:-12], rest + (w2g(4, 8) if SH else w2g(8, 12)), 28)
    p.add(o + rest)
    p.add(corr(0) + corr(1))
    p.add(b1_[-12:])
    h2, b2_ = pass_parts([2], False)
    h3, b3_ = pass_parts([3], False)
    p.add(corr(2, True))
    p.add(h2)
    p.add(corr(3, True))
    p("s_barrier")
    stamp(p, "p3pass1")

    def gelu(T):
        q = Prog()
        acc = ACC3 + 16 * T
        ob = OB3 + 8 * (T & 1)
        for half in range(2):
            js = range(8 * half, 8 * half + 8)
            for j in js[::2]:
                q(f"v_pk_mul_f32 {pr(G1,j)}, {pr(acc,j)}, {pr(acc,j)}")
            for j in js[::2]:
                q(f"v_pk_fma_f32 {pr(G1,j)}, {pr(G1,j)}, {pr(vK+2)}, {pr(vK)} op_sel_hi:[1,0,0]")
            for j in js[::2]:
                q(f"v_pk_mul_f32 {pr(G1,j)}, {pr(G1,j)}, {pr(acc,j)}")
            for j in js:
                q(f"v_exp_f32 v{G1+j}, v{G1+j}")
            for j in js[::2]:
                q(f"v_pk_fma_f32 {pr(G1,j)}, {pr(G1,j)}, {pr(vK+4)}, {pr(vK+4)} op_sel_hi:[1,0,0]")
            for j in js:
                q(f"v_rcp_f32 v{G1+j}, v{G1+j}")
            for j in js[::2]:
                q(f"v_pk_mul_f32 {pr(G1,j)}, {pr(G1,j)}, {pr(acc,j)}")
            for j in js[::2]:
                q(f"v_cvt_pk_bf16_f32 v{ob+j//2}, v{G1+j}, v{G1+j+1}")
            q(f"buffer_store_dwordx4 {q4(ob+4*half)}, v{vL16}, {R(RWS)}, s{sH1a} offen offset:{half*1024} sc1", tag=f"stD{T}")
        q(f"s_add_u32 s{sH1a}, s{sH1a}, {H1S}")
        return q.items

    def pub(sync, tag):
        q = Prog()
        q.wait_vm(tag)
        q("s_barrier")
        flag(q, g, sync)
        return q.items

    def bslot(j):
        return 64 + 8 * j if j < 24 else 64 + 8 * (j - 24)

    def ldB(j0, j1):
        gs = []
        for j in range(j0, j1):
            for jn in range(2):
                r = bslot(j) + 4 * jn
                gs.append(([Ins(f"s_add_u32 s{sH1b}, s{TBL[j % 7]}, {(j // 7) * H1S}") if OPT.get("rot4") else Ins(f"s_mov_b32 s{sH1b}, {(j // 7) * H1S + (j % 7) * 4096}")] if jn == 0 else []) +
                          [Ins(f"buffer_load_dwordx4 a[{r}:{r+3}], v{vH1[jn]}, {R(RWS)}, s{sH1b} offen{'' if OPT.get('nosc1') else ' sc1'}")])
        return gs

    def mf_split(items, n):
        idx = [i for i, it in enumerate(items) if isinstance(it, Ins) and it.kind == "mfma"]
        return items[:idx[n]], items[idx[n]:]

    def pissue(sync):
        q = Prog()
        poll_issue(q, g, sync, 14)
        return q.items

    def pcheck(sync, nm):
        q = Prog()
        poll_check(q, g, sync)
        stamp(q, nm)
        return q.items
    wA = w2g(12, 21) + w2g(8, 12)
    ng0, ng1 = OPT.get("ng0", 6), OPT.get("ng1", 6)
    p.add(sprinkle(gelu(0), wA[:ng0], OPT.get("sg01", 80), start=20, hide=0))
    p.add(w2_move(4, 8))
    p.add(sprinkle(gelu(1), wA[ng0:ng0 + ng1], OPT.get("sg01", 80), start=20, hide=0))
    stamp(p, "g01")
    assert ng0 + ng1 <= 16
    o, rest = paced(b2_ + h3, wA[ng0 + ng1:], 2, 0)
    pd0, pi0m = OPT.get("pd0", 3), OPT.get("pi0m", 26)
    oa, ob_ = mf_split(o, pd0)
    if pi0m < 28:
        ob_, oc_ = mf_split(ob_, pi0m - pd0)
        ob_ = ob_ + pissue(3) + oc_
    p.add(oa + pub(3, "stD0") + ob_)
    L0, L1, L2, L3 = ldB(0, 7), ldB(7, 14), ldB(14, 21), ldB(21, 28)
    g2 = sprinkle(gelu(2), rest, 64, hide=0)
    pd1, pi0 = len(g2) * OPT.get("pd1", 0) // 100, len(g2) * OPT.get("pi0", 20) // 100
    assert pd1 <= pi0
    p.add(g2[:pd1] + pub(4, "stD1"))
    stamp(p, "p3pass2")
    p.add(g2[pd1:pi0] + (pissue(3) if pi0m >= 28 else []) + g2[pi0:])
    stamp(p, "g2")
    hb = Prog()
    HB = ACC3
    for j in range(8):
        hb(f"v_lshlrev_b32 v{t0}, 16, v{HRES+j}")
        hb(f"v_and_b32 v{t1}, 0xffff0000, v{HRES+j}")
        hb(f"v_lshlrev_b32 v{t2}, 16, v{B2R+j}")
        hb(f"v_and_b32 v{HB+2*j+1}, 0xffff0000, v{B2R+j}")
        hb(f"v_add_f32 v{HB+2*j}, v{t0}, v{t2}")
        hb(f"v_add_f32 v{HB+2*j+1}, v{t1}, v{HB+2*j+1}")
    s0, s1 = mf_split(b3_, OPT.get("pc0", 0))
    o, rest = weave(s0, hb.items, 24)
    p.add(o + pcheck(3, "syncD0"))
    pi1 = OPT.get("pi1", 8)
    vq = L0[:pi1] + [pissue(4)] + L0[pi1:]
    pc1e = OPT.get("pc1e", 0)
    if pc1e:
        vq += [pcheck(4, "syncD1") + L1[0]] + L1[1:6]
    nb3 = OPT.get("nb3", 3)
    p.add(flat(vq[:nb3]))
    o, vq = paced(s1, vq[nb3:], 2, 1)
    o, rest = weave(o, rest, 24)
    p.add(o + rest)
    p.add(pub(5, "stD2"))
    stamp(p, "p3pass3")
    wC = w2g(21, 28)
    nC0 = OPT.get("nC0", 0)
    if pc1e:
        bgq = vq + L1[6:] + wC
    else:
        bgq = vq + wC[:nC0] + [pcheck(4, "syncD1") + L1[0]] + L1[1:] + wC[nC0:]
    ng3 = OPT.get("ng3", 8)
    p.add(sprinkle(gelu(3), bgq[:ng3], 64, hide=0))
    bgq = bgq[ng3:]
    stamp(p, "h1stored")

    AF4 = AFR
    ACC4 = ACC3
    AKEEP = [CM, CM + 4, CM + 8, CM + 12, B2R, B2R + 4, YM]
    vOo = vAi[0]
    RD4 = [AFR, AFR + 16, G1]
    OB4 = OB3

    def a_regs(j):
        if j < 8:
            return "a", 8 * j, 8 * j + 4
        a = AF4 + 8 * (j & 3)
        return "v", (AKEEP[j - 21] if j >= 21 else a), a + 4

    pi2, pc2 = OPT.get("pi2", 2), OPT.get("pc2", 8)
    pd3, pi3, pc3 = OPT.get("pd3", 7), OPT.get("pi3", 14), OPT.get("pc3", 18)
    for j in range(28):
        if j == pi2:
            poll_issue(p, g, 5, 14)
        if j == pd3:
            p.add(pub(6, "stD3"))
        if j == pc2:
            p.add(pcheck(5, "syncD2"))
            k0 = 1 if (bgq and len(bgq[0]) == 1 and "lds" in bgq[0][0].text) else 0
            assert all("lds" in gr[-1].text for gr in bgq)
            bgq = bgq[:k0] + list(L2) + bgq[k0:]
        if j == pi3:
            poll_issue(p, g, 6, 14)
        if j == pc3:
            p.add(flat(bgq))
            p.add(pcheck(6, "syncD3"))
            p.add(flat(L3[:4]))
            bgq = list(L3[4:])
        if j == 21:
            p("s_barrier")
        kind, a0, a1 = a_regs(j)
        rd = []
        if 8 <= j + 3 < 28:
            _, r0, r1 = a_regs(j + 3)
            rd = w2_read(j + 3, [r0, r1], "v")
        k = 0
        for jn in range(2):
            for jm in range(2):
                if j >= 21 and jm == 0 and jn == 0:
                    continue
                acc = ACC4 + 16 * (jm + 2 * jn)
                cin = acc if (j > 0 or (jm == 0 and jn == 0)) else None
                mfma(p, acc, [a0, a1][jm], bslot(j) + 4 * jn, cin, ak=kind, bk="a")
                take = (0, 2) if j < pc2 else (0, 1, 2)
                if OPT.get("p4take", 2) == 3:
                    take = (0, 1, 2)
                if k in take and bgq:
                    p.add(bgq.pop(0))
                if jm == 1 and jn == 0:
                    p.add(rd[:3])
                if jm == 1 and jn == 1:
                    p.add(rd[3:])
                k += 1
        if j in (13, 20) or (OPT.get("fine4") and j % 2 == 1 and j < 27):
            stamp(p, f"p4j{j}")
    assert not bgq
    stamp(p, "p4mfma")
    wr = Prog()
    for j in range(1, 4):
        wr(f"s_xor_b32 s{sA}, s{sW}, {j}")
        wr(f"s_mul_i32 s{sA}, s{sA}, 12288")
        wr(f"v_add_u32 v{[t0, t1, t2][j-1]}, s{sA}, v{vL16}")
    wr(f"s_mul_i32 s{sA}, s{sW}, 12288")
    wr(f"v_add_u32 v{t3}, s{sA}, v{vL16}")
    for j in range(1, 4):
        for gg in range(4):
            wr(f"ds_write_b128 v{[t0, t1, t2][j-1]}, {q4(ACC4+16*j+4*gg)} offset:{(j-1)*4096+gg*1024}")
    m = Prog()
    for j in range(21, 28):
        mfma(m, ACC4, AKEEP[j - 21], bslot(j), ACC4, bk="a")
    wi = wr.items
    p.add(m.items[:1] + wi[:6] + m.items[1:2] + wi[6:11])
    for i_ in range(5):
        p.add(m.items[2 + i_:3 + i_] + wi[11 + i_:12 + i_])
    p.add(wi[16:])
    p(f"v_and_b32 v{t0}, 31, v1")
    p(f"v_mul_u32_u24 v{t0}, 896, v{t0}")
    p(f"v_lshl_add_u32 v{vOo}, v{vHF}, 4, v{t0}")
    p(f"s_mul_i32 s{sA}, s{sRTf}, {32*896}")
    p(f"s_lshl_b32 s{sB}, s{sTf}, 6")
    p(f"s_add_u32 s{sA}, s{sA}, s{sB}")
    p.barrier()
    stamp(p, "p4ex")
    for half in range(2):
        for gg in range(2 * half, 2 * half + 2):
            for j in range(3):
                p(f"ds_read_b128 {q4(RD4[j]+4*gg)}, v{t3} offset:{j*4096+gg*1024}")
    for half in range(2):
        js = range(8 * half, 8 * half + 8, 2)
        for j in js:
            p(f"v_pk_add_f32 {pr(ACC4,j)}, {pr(ACC4,j)}, {pr(RD4[0],j)}")
            p(f"v_pk_add_f32 {pr(RD4[1],j)}, {pr(RD4[1],j)}, {pr(RD4[2],j)}")
        for j in js:
            p(f"v_pk_add_f32 {pr(ACC4,j)}, {pr(ACC4,j)}, {pr(RD4[1],j)}")
        for j in js:
            p(f"v_cvt_pk_bf16_f32 v{OB4+j//2}, v{ACC4+j}, v{ACC4+j+1}")
        p(f"v_permlane32_swap_b32 v{OB4+4*half}, v{OB4+4*half+2}")
        p(f"v_permlane32_swap_b32 v{OB4+4*half+1}, v{OB4+4*half+3}")
        p(f"buffer_store_dwordx4 {q4(OB4+4*half)}, v{vOo}, {R(ROUT)}, s{sA} offen offset:{32*half}")
    p("s_branch L_fin")
    p("L_idle:")
    p(f"s_sub_u32 s{sA}, s{sI}, 28")
    p(f"s_lshl_b32 s{sA}, s{sA}, 2")
    p(f"s_add_u32 s{sA}, s{sA}, s{sW}")
    idle = OPT.get("idle", 2)
    if idle == 1:
        p(f"s_lshl_b32 s{sA}, s{sA}, 13")
        p(f"v_lshl_add_u32 v{vTch}, v1, 7, s{sA}")
        for k in range(13):
            p(f"s_mov_b32 s{sA}, {k << 17}")
            p(f"buffer_load_dword a116, v{vTch}, {R(RW2)}, s{sA} offen")
    elif idle == 2:
        p(f"s_mul_i32 s{sA}, s{sA}, {128*896}")
        p(f"v_lshl_add_u32 v{vTch}, v1, 7, s{sA}")
        for k in range(OPT.get("nidle", 14)):
            p(f"s_mov_b32 s{sA}, {k*8192}")
            p(f"buffer_load_dword a116, v{vTch}, {R(RW2)}, s{sA} offen")
    p("L_fin:")
    p("s_waitcnt vmcnt(0)")
    stamp_flush(p)
    if PROBE:
        stamp(p, "end")
        p.raw("""
    v_readlane_b32 s12, v255, 1
    s_nop 4
    s_add_u32 s12, s12, 4000
L_pad:
    s_sleep 2
    s_memrealtime s[100:101]
    s_waitcnt lgkmcnt(0)
    s_sub_u32 s13, s100, s12
    s_cmp_lt_i32 s13, 0
    s_cbranch_scc1 L_pad
""")
    body = finalize(flat(p.items), name)
    txt = [f".globl {name}_kernel", ".p2align 8", f".type {name}_kernel,@function", f"{name}_kernel:"]
    txt += body
    txt += ["    s_endpgm"] + SLOW + ["L_end:", "    s_endpgm"]
    kd = f""".amdhsa_kernel {name}_kernel
  .amdhsa_next_free_vgpr 512
  .amdhsa_next_free_sgpr 102
  .amdhsa_accum_offset 256
  .amdhsa_group_segment_fixed_size 0
  .amdhsa_kernarg_size 96
  .amdhsa_user_sgpr_count 2
  .amdhsa_user_sgpr_kernarg_segment_ptr 1
  .amdhsa_system_sgpr_workgroup_id_x 1
.end_amdhsa_kernel"""
    return "\n".join(txt), kd


def main(out):
    body, kd = gen()
    hdr = open("cdna_kernels/" + NAME + ".s.ref").read().split("; Override launch")[0]
    txt = hdr
    txt += f"; @launch grid=(256,1,1) block=(256,1,1) lds={LDS_BYTES}\n"
    if DIAG:
        txt += "; stamps: " + ",".join(STNAMES) + "\n"
    txt += '.amdgcn_target "amdgcn-amd-amdhsa--gfx950"\n.text\n'
    txt += body + "\n"
    txt += '.section .rodata,"a"\n.p2align 6\n' + kd + "\n"
    open(out, "w").write(txt)


if __name__ == "__main__":
    for a in sys.argv[2:]:
        if a == "diag":
            DIAG = True
        elif a.startswith("probe="):
            PROBE = a[6:]
        elif "=" in a:
            k, v = a.split("=")
            OPT[k] = int(v)
    main(sys.argv[1])
```
